```python
import torch

def _softmax(x, axis=-1):
    return torch.softmax(x, dim=axis)

def _gelu(x):
    return torch.nn.functional.gelu(x, approximate='tanh')

def _silu(x):
    return torch.nn.functional.silu(x)

def _sigmoid(x):
    return torch.sigmoid(x)

def _layernorm(x, axis=-1, eps=1e-05):
    m = x.mean(dim=axis, keepdim=True)
    v = x.var(dim=axis, keepdim=True, unbiased=False)
    return (x - m) / torch.sqrt(v + eps)

def _scatter_add(tgt, idx, src, axis=0):
    return tgt.clone().index_add_(axis, idx, src)

def _segment_sum(src, seg, n):
    out = torch.zeros((n,) + src.shape[1:], dtype=src.dtype)
    return out.index_add_(0, seg, src)

def _pad(x, pw):
    flat = tuple((v for pair in reversed(pw) for v in pair))
    return torch.nn.functional.pad(x, flat)
kernel_name = 'interleave_layers__memory_aug_recurrent_mem_tr__glu_gated_geglu__prompt'

def setup_inputs():

    _w = lambda a: (lambda t: t.to(torch.bfloat16) if t.is_floating_point() else t)(torch.as_tensor(a))

    def _A_setup():
        B, S, Dm = (1, 2048, 576)
        H, Dh = (32, 128)
        M, seg = (8, 32)
        seg = min(seg, S)
        S = S // seg * seg
        return {'x': _w((lambda *s: torch.randn(*s, dtype=torch.bfloat16) * 0.05)(B, S, Dm)), 'mem0': _w((lambda *s: torch.randn(*s, dtype=torch.bfloat16) * 0.2)(B, M, Dm)), 'Wq': _w((lambda *s: torch.randn(*s, dtype=torch.bfloat16) * 1.6)(Dm, H, Dh) * Dm ** (-0.5)), 'Wk': _w((lambda *s: torch.randn(*s, dtype=torch.bfloat16) * 1.6)(Dm, H, Dh) * Dm ** (-0.5)), 'Wv': _w((lambda *s: torch.randn(*s, dtype=torch.bfloat16) * 0.2)(Dm, H, Dh) * Dm ** (-0.5)), 'Wo': _w((lambda *s: torch.randn(*s, dtype=torch.bfloat16) * 0.2)(H, Dh, Dm) * (H * Dh) ** (-0.5)), 'seg_len': seg}
    _A_in = _A_setup()

    def _B_setup():
        B, S, Dm, Df = (1, 2048, 576, 4608)
        return {'x': _w((lambda *s: torch.randn(*s, dtype=torch.bfloat16) * 0.05)(B, S, Dm)), 'w_gate': _w((lambda *s: torch.randn(*s, dtype=torch.bfloat16) * 0.4)(Dm, Df) * Dm ** (-0.5)), 'w_up': _w((lambda *s: torch.randn(*s, dtype=torch.bfloat16) * 0.4)(Dm, Df) * Dm ** (-0.5)), 'w_down': _w((lambda *s: torch.randn(*s, dtype=torch.bfloat16) * 0.4)(Df, Dm) * Df ** (-0.5))}
    _B_in = _B_setup()
    return {'A_x': _A_in['x'], 'A_mem0': _A_in['mem0'], 'A_Wq': _A_in['Wq'], 'A_Wk': _A_in['Wk'], 'A_Wv': _A_in['Wv'], 'A_Wo': _A_in['Wo'], 'A_seg_len': _A_in['seg_len'], 'B_x': _B_in['x'], 'B_w_gate': _B_in['w_gate'], 'B_w_up': _B_in['w_up'], 'B_w_down': _B_in['w_down']}

def reference(A_x, A_mem0, A_Wq, A_Wk, A_Wv, A_Wo, A_seg_len, B_x, B_w_gate, B_w_up, B_w_down):

    def _A_ref(x, mem0, Wq, Wk, Wv, Wo, seg_len):
        B, S, Dm = x.shape
        H, Dh = (Wq.shape[1], Wq.shape[2])
        M = mem0.shape[1]
        scale = Dh ** (-0.5)
        n_seg = S // seg_len
        L = M + seg_len
        idx = torch.arange(L)
        mask = (idx[:, None] < M) | (idx[:, None] >= idx[None, :])
        mem = mem0
        outs = []
        for s in range(n_seg):
            xs = x[:, s * seg_len:(s + 1) * seg_len, :].clone()
            h = torch.concatenate([mem, xs], axis=1)
            q = torch.einsum('btd,dhe->bhte', h, Wq)
            k = torch.einsum('btd,dhe->bhte', h, Wk)
            v = torch.einsum('btd,dhe->bhte', h, Wv)
            scores = torch.einsum('bhqe,bhke->bhqk', q, k) * scale
            scores = torch.where(mask[None, None], scores, -1000000000.0)
            p = _softmax(scores, axis=-1)
            o = torch.einsum('bhqk,bhke->bhqe', p, v)
            o = torch.einsum('bhte,hed->btd', o, Wo)
            mem = o[:, :M, :].clone()
            outs.append(o[:, M:, :])
        return torch.concatenate(outs, axis=1)

    def _B_ref(x, w_gate, w_up, w_down):
        g = torch.einsum('bsd,df->bsf', x, w_gate)
        u = torch.einsum('bsd,df->bsf', x, w_up)
        h = _gelu(g) * u
        return torch.einsum('bsf,fd->bsd', h, w_down)
    x = A_x
    x = x + _A_ref(_layernorm(x, axis=-1), A_mem0, A_Wq, A_Wk, A_Wv, A_Wo, A_seg_len)
    x = x + _B_ref(_layernorm(x, axis=-1), B_w_gate, B_w_up, B_w_down)
    x = x + _A_ref(_layernorm(x, axis=-1), A_mem0, A_Wq, A_Wk, A_Wv, A_Wo, A_seg_len)
    x = x + _B_ref(_layernorm(x, axis=-1), B_w_gate, B_w_up, B_w_down)
    return x
```

```python
import re

_REG = re.compile(r'^(-|abs\()?([vas])(?:(\d+)|\[(\d+):(\d+)\])\)?$')
TRANS = ('v_exp_f32', 'v_log_f32', 'v_rcp_f32', 'v_rsq_f32', 'v_sqrt_f32', 'v_sin_f32', 'v_cos_f32')


def regs_of(tok):
    tok = tok.strip()
    if tok == 'vcc':
        return {('s', 106), ('s', 107)}
    if tok == 'exec':
        return {('s', 126), ('s', 127)}
    if tok in ('vcc_lo', 'vcc_hi', 'exec_lo', 'exec_hi', 'm0'):
        return {('s', {'vcc_lo': 106, 'vcc_hi': 107, 'exec_lo': 126, 'exec_hi': 127, 'm0': 124}[tok])}
    m = _REG.match(tok)
    if not m:
        return set()
    k = m.group(2)
    lo = int(m.group(3) if m.group(3) is not None else m.group(4))
    hi = int(m.group(3) if m.group(3) is not None else m.group(5))
    if k == 'a':
        return {('v', 256 + i) for i in range(lo, hi + 1)}
    return {(k, i) for i in range(lo, hi + 1)}


def R(n, cnt=1):
    k, b = ('v', n) if n < 256 else ('a', n - 256)
    assert b + cnt <= 256, (n, cnt)
    return f'{k}{b}' if cnt == 1 else f'{k}[{b}:{b + cnt - 1}]'


def S(n, cnt=1):
    return f's{n}' if cnt == 1 else f's[{n}:{n + cnt - 1}]'


class Ins:
    def __init__(self, text):
        self.text = text
        t = text.split(';')[0].strip()
        p = t.split(None, 1)
        self.op = p[0]
        rest = p[1] if len(p) > 1 else ''
        ops = [o.strip() for o in rest.split(',')] if rest else []
        self.mods = []
        if ops:
            last = ops[-1].split()
            ops[-1] = last[0]
            self.mods = last[1:]
        clean = []
        for o in ops:
            if ' ' in o:
                w = o.split()
                clean.append(w[0])
                self.mods += w[1:]
                break
            clean.append(o)
        self.ops = clean
        op = self.op
        rs = [regs_of(o) for o in self.ops]
        U = lambda l: set().union(*l) if l else set()
        self.kind = 'other'
        self.w, self.r = set(), set()
        self.srcC = set()
        self.srcAB = set()
        if op.startswith('v_mfma'):
            self.kind = 'mfma'
            self.w = rs[0]
            self.srcAB = rs[1] | rs[2]
            self.srcC = rs[3]
            self.r = self.srcAB | self.srcC
        elif op.startswith('v_'):
            self.kind = 'valu'
            if 'permlane' in op and 'swap' in op:
                self.w = rs[0] | rs[1]
                self.r = rs[0] | rs[1]
            else:
                self.w = rs[0]
                self.r = U(rs[1:])
                if op.startswith(('v_fmac', 'v_dot2c', 'v_pk_fmac')) or '_dpp' in op:
                    self.r |= rs[0]
        elif op.startswith('ds_'):
            self.kind = 'ds'
            if op.startswith(('ds_read', 'ds_bpermute', 'ds_swizzle')):
                self.w = rs[0]
                self.r = U(rs[1:])
            else:
                self.r = U(rs)
        elif op.startswith('buffer_'):
            self.kind = 'vmem'
            if op.startswith('buffer_load') and 'lds' not in self.mods:
                self.w = rs[0]
                self.r = U(rs[1:])
            else:
                self.r = U(rs)
                if op.startswith('buffer_atomic') and 'sc0' in self.mods:
                    self.w = rs[0]
                if 'lds' in self.mods:
                    self.r |= {('s', 124)}
        elif op.startswith('s_'):
            self.kind = 'salu'
            if op.startswith(('s_cmp', 's_bitcmp', 's_cbranch', 's_branch', 's_waitcnt', 's_nop', 's_barrier',
                              's_sleep', 's_setprio', 's_endpgm')):
                self.r = U(rs)
            else:
                self.w = rs[0] if rs else set()
                self.r = U(rs[1:])
        self.states = 1
        if op == 's_nop':
            self.states = int(self.ops[0]) + 1


def need(p, c):
    n = 0
    pv = {x for x in p.w if x[0] == 'v'}
    ps = {x for x in p.w if x[0] == 's'}
    if p.kind == 'valu':
        if c.kind == 'mfma' and pv & c.r:
            n = max(n, 2)
        if c.kind == 'valu':
            if pv & c.r:
                if 'permlane' in c.op or '_dpp' in c.op:
                    n = max(n, 2)
                if c.op.startswith(('v_readlane', 'v_readfirstlane')):
                    n = max(n, 1)
                if p.op.startswith(TRANS):
                    n = max(n, 1)
            if ps & c.r:
                n = max(n, 4 if c.op.startswith(('v_readlane', 'v_writelane')) else 2)
        if c.kind == 'vmem' and ps & c.r:
            n = max(n, 5)
        if c.kind in ('ds', 'vmem') and p.op.startswith(TRANS) and pv & c.r:
            n = max(n, 1)
        if c.kind == 'salu' and ps & c.r:
            n = max(n, 1)
    if p.kind == 'mfma':
        if c.kind == 'mfma':
            if pv & c.srcAB:
                n = max(n, 8)
            if pv & c.srcC and pv != c.srcC:
                n = max(n, 6)
            if pv & c.w and pv != c.srcC:
                n = max(n, 6)
        elif c.kind in ('valu', 'ds', 'vmem'):
            if pv & (c.r | c.w):
                n = max(n, 8)
            if p.srcC & c.w:
                n = max(n, 3)
    if p.kind == 'vmem' and p.op.startswith(('buffer_store_dwordx4', 'buffer_store_dwordx3')):
        data = regs_of(p.ops[0])
        if data & c.w:
            n = max(n, 2)
    if p.kind == 'salu' and ('s', 124) in p.w and c.kind == 'vmem' and 'lds' in c.mods:
        n = max(n, 1)
    return n


def worst(p):
    if p.kind == 'mfma':
        return 8
    if p.kind == 'valu':
        return 5 if any(x[0] == 's' for x in p.w) else 2
    if p.kind == 'vmem' and p.op.startswith('buffer_store'):
        return 2
    if p.kind == 'salu' and ('s', 124) in p.w:
        return 1
    return 0


class Asm:
    def __init__(self):
        self.out = []
        self.hist = []
        self.vm = []
        self.lg = []
        self.uid = 0
        self.ninst = 0

    def raw(self, s):
        self.out.append(s)

    def c(self, s):
        self.out.append('    ; ' + s)

    def _emit(self, ins):
        self.out.append('    ' + ins.text)
        self.hist.append(ins)
        self.ninst += 1
        if len(self.hist) > 12:
            self.hist.pop(0)

    def _pad(self, fn):
        d = 0
        req = 0
        for p in reversed(self.hist):
            req = max(req, fn(p) - d)
            d += p.states
            if d >= 9:
                break
        if req > 0:
            self._emit(Ins(f's_nop {req - 1}'))

    def _cnt(self, q, pred):
        for i in range(len(q) - 1, -1, -1):
            if pred(q[i]):
                return len(q) - 1 - i
        return None

    def waitcnt(self, vm=None, lg=None):
        parts = []
        if vm is not None:
            vm = min(vm, 63)
            parts.append(f'vmcnt({vm})')
            self.vm = self.vm[len(self.vm) - vm:] if vm < len(self.vm) and vm > 0 else ([] if vm == 0 else self.vm)
        if lg is not None:
            lg = min(lg, 15)
            parts.append(f'lgkmcnt({lg})')
            self.lg = self.lg[len(self.lg) - lg:] if lg < len(self.lg) and lg > 0 else ([] if lg == 0 else self.lg)
        self._emit(Ins('s_waitcnt ' + ' '.join(parts)))

    def wait_tag(self, tag):
        v = self._cnt(self.vm, lambda e: tag in e[1])
        l = self._cnt(self.lg, lambda e: tag in e[1])
        if v is not None or l is not None:
            self.waitcnt(v, l)

    def i(self, text, tag=None, nohaz=False):
        ins = Ins(text)
        assert ins.op != 's_waitcnt', 'use waitcnt()'
        touched = ins.r | ins.w
        v = self._cnt(self.vm, lambda e: e[0] & touched)
        l = self._cnt(self.lg, lambda e: e[0] & touched)
        if v is not None or l is not None:
            self.waitcnt(v, l)
        if ins.op.startswith(('s_cbranch', 's_branch')) and not nohaz:
            self._pad(lambda p: max(worst(p) - 1, need(p, ins)))
        else:
            self._pad(lambda p: need(p, ins))
        self._emit(ins)
        tg = {tag} if tag else set()
        if ins.kind == 'vmem':
            self.vm.append((set(ins.w), tg))
        elif ins.kind == 'ds':
            self.lg.append((set(ins.w), tg))
        elif ins.op.startswith(('s_load', 's_memrealtime', 's_memtime')):
            self.lg.append((set(ins.w), tg | {'smem'}))
            self.join()

    def join(self):
        for name in ('vm', 'lg'):
            q = getattr(self, name)
            if q:
                regs = set().union(*[e[0] for e in q])
                tags = set().union(*[e[1] for e in q])
                setattr(self, name, [(regs, tags)])

    def label(self, name):
        self.join()
        self.out.append(name + ':')

    def new(self, p='L'):
        self.uid += 1
        return f'{p}_{self.uid}'

    def barrier(self, lg=0):
        if lg is not None and self.lg:
            self.waitcnt(lg=lg)
        self.i('s_barrier')

    def mfma(self, d, a, b, c, k=32):
        n = 4 if k == 32 else 2
        cs = '0' if c is None else R(c, 4)
        self.i(f'v_mfma_f32_16x16x{k}_bf16 {R(d, 4)}, {R(a, n)}, {R(b, n)}, {cs}')

    def text(self):
        return '\n'.join(self.out) + '\n'
```

```python
import math
import struct
from common import *

WORK = 147456
MEMO, SAO, S1O, OO = 0, 9216, 9216 + 4096, 9216 + 5120
vLn, vMd, vWc, vPs, vAg, vSa, vFl, vT, vKs, vSh, vS1, vOw = range(12)
SEL, A, B, C, Dr, E = 12, 16, 32, 48, 56, 72
sT, sTask, sRS, sAG0, sAG1, sAG2, sPst, sPs8, sU, sC, sKV, sAGb, sXb, sYb, sFo, sFk = range(30, 46)
sM1, sHi, sPx = 46, 48, 50
sH256, sW1k, sW256 = 52, 53, 54


def f2u(x):
    return struct.unpack('<I', struct.pack('<f', x))[0]


def frag_map():
    m = {}
    nxt = [80]

    def al(key):
        m[key] = nxt[0]
        nxt[0] += 4
    for j in range(18):
        for b in range(2):
            al(('q', b, j))
            al(('v', b, j))
            if j & 1:
                al(('k', b, j))
    for i in range(9):
        al(('o', i, 0))
        al(('o', i, 1))
    assert nxt[0] == 512, nxt
    return m


def task_id(a):
    a.i(f's_lshl_b32 s{sTask}, s{sIDX}, 1')
    a.i(f's_add_u32 s{sTask}, s{sTask}, s{sW}')
    a.i(f's_add_u32 s28, s{sIDX}, 64')
    a.i(f's_cmp_eq_u32 s{sW}, 2')
    a.i(f's_cselect_b32 s{sTask}, s28, s{sTask}')
    a.i(f's_cmp_eq_u32 s{sW}, 3')
    a.i(f's_cselect_b32 s{sTask}, 100, s{sTask}')


def chain(a, stamps=False):
    W = frag_map()
    a.label('L_chain')
    rt_stamp(a, stamps, 0)
    a.i(f's_lshl_b32 s{sH256}, s{sIDX}, 8')
    a.i(f's_lshl_b32 s{sW1k}, s{sW}, 10')
    a.i(f's_lshl_b32 s{sW256}, s{sW}, 8')
    task_id(a)
    a.i(f's_mov_b32 s{sM1}, 0x00ff00ff')
    a.i(f's_mov_b32 s{sM1 + 1}, 0x00ff00ff')
    a.i(f's_mov_b32 s{sHi}, 0')
    a.i(f's_mov_b32 s{sHi + 1}, -1')
    a.i(f's_mov_b32 s{sC}, {hex(f2u(128 ** -0.5 * math.log2(math.e)))}')
    a.i(f's_mul_i32 s{sRS}, s{sL}, {CRS_L}')
    a.i(f's_add_u32 s{sPst}, s{sRS}, {CRS}')
    a.i(f's_lshl_b32 s28, s{sTask}, 12')
    a.i(f's_add_u32 s{sRS}, s{sPst}, s28')
    a.i(f's_mul_i32 s{sAG0}, s{sL}, {CAG_L}')
    a.i(f's_add_u32 s{sAG0}, s{sAG0}, {CAG}')
    a.i(f's_add_u32 s{sAG1}, s{sAG0}, {CAG_SLOT}')
    a.i(f's_add_u32 s{sAG2}, s{sAG0}, {2 * CAG_SLOT}')
    a.i('v_lshlrev_b32 v10, 4, v0')
    bits(a, vAg, 0, [(0, 7, 4), (4, 1, 3)], 12)
    srd(a, 12, K_MEM0, 9216)
    a.i(f's_cmp_ge_u32 s{sTask}, 72')
    a.i('s_cbranch_scc1 L_ch_noinit')
    for k in range(4):
        a.i(f'v_mov_b32 v{16 + k}, 1')
    a.i('v_mov_b32 v20, -1')
    a.i('v_mov_b32 v21, -1')
    for i in range(4):
        a.i(f'buffer_store_dwordx4 v[16:19], v10, {WS}, s{sRS} offen offset:{i * 1024}')
    a.i(f's_lshl_b32 s60, s{sTask}, 7')
    for sl in (sAG1, sAG2):
        a.i(f's_add_u32 s28, s60, s{sl}')
        a.i(f'buffer_store_dwordx2 v[20:21], v{vAg}, {WS}, s28 offen')
    a.i('v_and_b32 v12, 7, v0')
    a.i('v_mul_u32_u24 v12, 1152, v12')
    a.i('v_bfe_u32 v13, v0, 4, 1')
    a.i('v_lshl_add_u32 v12, v13, 5, v12')
    a.i(f's_lshr_b32 s28, s{sTask}, 2')
    a.i('s_lshl_b32 s28, s28, 6')
    a.i(f's_and_b32 s61, s{sTask}, 3')
    a.i('s_lshl_b32 s61, s61, 3')
    a.i('s_add_u32 s28, s28, s61')
    a.i(f'buffer_load_dwordx2 v[22:23], v12, {IO}, s28 offen')
    a.i('v_min_u32 v22, -2, v22')
    a.i('v_min_u32 v23, -2, v23')
    a.i(f's_add_u32 s28, s60, s{sAG0}')
    a.i(f'buffer_store_dwordx2 v[22:23], v{vAg}, {WS}, s28 offen')
    a.label('L_ch_noinit')
    arrive(a)
    vq, v9 = 16, 17
    aQK, aV0, aV1, aO0, aO1, aO8, tA = 26, 27, 28, 29, 30, 31, 32
    dma_voff_pow2(a, vq, 16, 8192, SWZ['p2', 'pair'], 40, 41)
    dma_voff_72(a, v9, SWZ['p1', 'pair'], 40, 41, 42)
    a.i(f's_lshl_b32 s62, s{sW}, 2')
    a.i(f's_lshl_b32 s63, s{sW}, 1')

    def u_qk(t):
        a.i(f'v_and_b32 v{t}, 3, v0')
        a.i(f'v_add_u32 v{t}, s62, v{t}')

    def u_nat(sreg, add):
        def f(t):
            a.i(f'v_bfe_u32 v{t}, v0, 1, 1')
            a.i(f'v_add_u32 v{t}, s{sreg}, v{t}')
            if add:
                a.i(f'v_add_u32 v{t}, {add}, v{t}')
        return f

    def sub8(t):
        a.i(f'v_and_b32 v{t}, 1, v0')
        a.i(f'v_lshlrev_b32 v{t}, 3, v{t}')
    tr_addr(a, aQK, 256, 'pair', SWZ['p2', 'pair'], u_qk, None, 40, 41)
    tr_addr(a, aV0, 256, 'pair', SWZ['p2', 'pair'], u_nat(62, 0), sub8, 40, 41)
    tr_addr(a, aV1, 256, 'pair', SWZ['p2', 'pair'], u_nat(62, 2), sub8, 40, 41)
    tr_addr(a, aO0, 1152, 'pair', SWZ['p1', 'pair'], u_nat(62, 0), sub8, 40, 41)
    tr_addr(a, aO1, 1152, 'pair', SWZ['p1', 'pair'], u_nat(62, 2), sub8, 40, 41)
    tr_addr(a, aO8, 1152, 'pair', SWZ['p1', 'pair'], u_nat(63, 64), sub8, 40, 41)
    ds = DsAddr(a, tA)
    a.i(f's_mul_i32 s60, s{sW}, 9216')
    a.i(f's_mul_i32 s61, s{sIDX}, {128 * 1152}')
    chunks = [('q', list(range(0, 9))), ('q', list(range(9, 18))), ('v', list(range(0, 9))), ('v', list(range(9, 18))),
              ('k', list(range(1, 18, 2))), ('o', [0, 1]), ('k', list(range(0, 18, 2))), ('o', [2, 3])]
    karg = {'q': K_WQ, 'k': K_WK, 'v': K_WV, 'o': K_WO}

    def issue(c):
        m, blks = chunks[c]
        buf = (BUF0, BUF1)[c & 1]
        srd(a, 8, karg[m], 576 * 4096 * 2)
        for bi, j in enumerate(blks):
            if m != 'o':
                for hh in range(2):
                    dma(a, vq, WT, sW1k, buf + bi * 8192 + hh * 4096, sH256, (32 * j + 16 * hh) * 8192)
            else:
                for n in range(9):
                    dma(a, v9 + n, WT, 60, buf + bi * 36864 + n * 1024, 61, j * 36864)

    def reads(c, sel=None, dst=None):
        m, blks = chunks[c]
        buf = (BUF0, BUF1)[c & 1]
        for bi, j in enumerate(blks):
            if sel is not None and bi not in sel:
                continue
            if m == 'o':
                for i in range(9):
                    ar, o = (aO8, 0) if i == 8 else ((aO0, aO1)[i & 1], 256 * (i >> 1))
                    tr_frag(a, ds, dst(('o', i, j)), ar, buf + bi * 36864 + o, 1152, 'pair')
            else:
                for b in range(2):
                    ar, o = (aQK, 8 * b) if m != 'v' else ((aV0, aV1)[b], 0)
                    tr_frag(a, ds, dst((m, b, j)), ar, buf + bi * 8192 + o, 256, 'pair')
    issue(0)
    issue(1)
    for c in range(6):
        a.waitcnt(vm=18)
        a.i('s_barrier')
        reads(c, dst=lambda k: W[k])
        a.barrier()
        issue(c + 2)
    a.i('v_lshlrev_b32 v33, 4, v0')
    a.i(f's_lshl_b32 s{sXb}, s{sW}, 11')
    a.i(f's_add_u32 s{sYb}, s60, {BUF1}')
    a.waitcnt(vm=18)
    a.i('s_barrier')
    for sel in ([0, 1, 2, 3, 4], [5, 6, 7, 8]):
        tmp = {}
        reads(6, sel, dst=lambda k: tmp.setdefault(k, 40 + 4 * len(tmp)))
        a.barrier()
        a.i(f'v_add_u32 v34, s{sXb}, v33')
        a.i(f'v_add_u32 v34, {sel[0] * 8192}, v34')
        for (m, b, j), r in tmp.items():
            a.i(f'ds_write_b128 v34, {R(r, 4)} offset:{(j // 2 - sel[0]) * 8192 + b * 1024}')
    a.waitcnt(vm=0)
    a.barrier()
    a.i(f'v_add_u32 v34, s{sYb}, v33')
    for bi in range(2):
        tmp = {}
        reads(7, [bi], dst=lambda k: tmp.setdefault(k, 40 + 4 * len(tmp)))
        a.barrier()
        for (m, i, j), r in tmp.items():
            a.i(f'ds_write_b128 v34, {R(r, 4)} offset:{bi * 36864 + i * 1024}')
    sel_frag(a, SEL, 16, 17)
    bits(a, vMd, 0, [(0, 7, 4), (4, 3, 7)], 16)
    bits(a, vPs, 0, [(0, 7, 4), (4, 3, 12), (3, 1, 30)], 16)
    bits(a, vKs, 0, [(0, 7, 4), (4, 3, 7), (3, 1, 30)], 16)
    bits(a, vSh, 0, [(5, 1, 4)], 16)
    a.i(f'v_add_u32 v{vMd}, {WORK}, v{vMd}')
    a.i(f's_lshl_b32 s28, s{sW}, 9')
    a.i(f'v_add_u32 v{vOw}, s28, v{vMd}')
    a.i(f'v_lshlrev_b32 v{vS1}, 2, v0')
    a.i(f'v_add_u32 v{vS1}, {WORK + S1O}, v{vS1}')
    a.i(f'v_lshlrev_b32 v{vLn}, 4, v0')
    a.i(f'v_add_u32 v{vSa}, {WORK}, v{vLn}')
    a.i(f's_lshl_b32 s28, s{sIDX}, 7')
    a.i(f's_add_u32 s{sPst}, s{sPst}, s28')
    a.i(f's_lshr_b32 s28, s{sW}, 1')
    a.i('s_add_u32 s28, s28, 16')
    a.i('s_lshl_b32 s28, s28, 14')
    a.i(f's_add_u32 s{sPs8}, s{sPst}, s28')
    a.i(f's_and_b32 s28, s{sW}, 1')
    a.i('s_lshl_b32 s28, s28, 3')
    a.i(f's_add_u32 s{sPs8}, s{sPs8}, s28')
    a.i(f's_lshl_b32 s28, s{sW}, 14')
    a.i(f's_add_u32 s{sPst}, s{sPst}, s28')
    a.i(f's_mul_i32 s{sAGb}, s{sW}, 3072')
    a.i(f's_mul_i32 s{sU}, s{sIDX}, 24576')
    a.i(f's_add_u32 s{sU}, s{sU}, s{sXb}')
    a.i(f's_mul_i32 s28, s{sL}, {64 * QKV_UNIT}')
    a.i(f's_add_u32 s{sU}, s{sU}, s28')
    a.i(f's_add_u32 s{sU}, s{sU}, {QKV + 8192}')
    a.i(f's_lshl_b32 s{sFo}, s{sIDX}, 11')
    a.i(f's_lshl_b32 s28, s{sW}, 9')
    a.i(f's_add_u32 s{sFo}, s{sFo}, s28')
    a.i(f's_lshl_b32 s{sKV}, s{sIDX}, 12')
    a.i(f's_add_u32 s{sKV}, s{sKV}, s28')
    a.i(f's_lshl_b32 s28, s{sL}, 8')
    a.i(f's_add_u32 s{sFo}, s{sFo}, s28')
    a.i(f's_add_u32 s{sFo}, s{sFo}, {F_KV}')
    a.i(f's_lshl_b32 s{sFk}, s{sIDX}, 9')
    a.i(f's_add_u32 s{sFk}, s{sFk}, s28')
    a.i(f's_add_u32 s{sFk}, s{sFk}, {F_KVM - 4}')
    a.i(f's_mul_i32 s28, s{sL}, {64 * KVM_UNIT}')
    a.i(f's_add_u32 s{sKV}, s{sKV}, s28')
    a.i(f's_add_u32 s{sKV}, s{sKV}, {KVM}')
    a.i(f's_mov_b64 s[{sPx}:{sPx + 1}], 0')
    a.i(f's_mov_b32 s{sT}, 0')
    wait_init(a, 16)
    a.i(f'v_mov_b32 v{vFl}, 0')
    a.barrier()
    rt_stamp(a, stamps, 1, 16)

    def I(text, **kw):
        return lambda: a.i(text, **kw)
    a.label('L_ch_loop')
    Lslots = [C, C + 4, E, E + 4]
    a.i(f'v_add_u32 v{vWc}, s{sXb}, v{vLn}')

    def lread(n):
        off = (n // 2) * 8192 + (n & 1) * 1024
        if n == 16:
            a.i(f'v_add_u32 v{vWc}, 0x10000, v{vWc}')
        if n >= 16:
            off -= 0x10000
        a.i(f'ds_read_b128 {R(Lslots[n % 4], 4)}, v{vWc} offset:{off}')
    for n in range(4):
        lread(n)
    stamp(a, stamps, 0)
    a.i(f's_cmp_lg_u32 s{sW}, 3')
    a.i('s_cbranch_scc1 L_ch_ag', nohaz=True)
    a.waitcnt(vm=0)
    a.i('s_branch L_ch_agok')
    a.label('L_ch_ag')
    a.i(f's_add_u32 s60, s{sAG0}, s{sAGb}')
    a.i(f'v_add_u32 v{vT}, s{sAGb}, v{vSa}')
    l = spin_head(a, 2)
    for i in range(3):
        a.i(f'buffer_load_dwordx4 {R(A + 4 * i, 4)}, v{vLn}, {WS}, s60 offen offset:{i * 1024} sc1')
    m0 = A + 12
    for i in range(3):
        r = A + 4 * i
        a.i(f'ds_write_b128 v{vT}, {R(r, 4)} offset:{MEMO + i * 1024}')
        if i == 0:
            a.i(f'v_max_u32 v{m0}, v{r}, v{r + 1}')
        else:
            a.i(f'v_max3_u32 v{m0}, v{r}, v{r + 1}, v{m0}')
        a.i(f'v_max3_u32 v{m0}, v{r + 2}, v{r + 3}, v{m0}')
    a.i(f'v_cmp_eq_u32 vcc, -1, v{m0}')
    a.i(f's_cbranch_vccnz {l}', nohaz=True)
    a.label('L_ch_agok')
    stamp(a, stamps, 1)
    a.i(f'v_cmp_eq_u32 vcc, 0, v{vFl}')
    a.barrier()
    ring = [Dr + 4 * x for x in range(4)]
    for j in range(4):
        a.i(f'ds_read_b128 {R(ring[j], 4)}, v{vMd} offset:{MEMO + j * 512}')
    a.i('s_cbranch_vccz L_ch_kvok', nohaz=True)
    l = spin_head(a, 3)
    a.i(f'buffer_load_dword v{vFl}, off, {WS}, s{sFo} sc1')
    a.i(f'v_cmp_eq_u32 vcc, 0, v{vFl}')
    a.i(f's_cbranch_vccnz {l}', nohaz=True)
    lgq = a.lg
    a.out.append('L_ch_kvok:')
    a.i(f's_add_u32 s60, s{sU}, 8192')
    for x in range(4):
        a.i(f'buffer_load_dwordx4 {R(B + 4 * x, 4)}, v{vLn}, {WS}, s{sU if x < 2 else 60} offen offset:{(x & 1) * 1024} sc1')
    stamp(a, stamps, 2)
    side = {}

    def at(k, fn):
        side.setdefault(k, []).append(fn)

    def pub():
        a.i(f's_mov_b64 exec, s[{sPx}:{sPx + 1}]')
        a.i(f'buffer_store_dword v{vMd}, off, {WS}, s{sFk} sc1')
        a.vm.pop()
        a.i('s_mov_b64 exec, -1')
    at(2, pub)
    at(5, I(f's_cmp_eq_u32 s{sW}, 3'))
    at(5, I(f's_cselect_b32 s{sPx}, 1, 0'))
    at(6, I(f's_add_u32 s{sFk}, s{sFk}, 4'))
    at(6, I(f's_add_u32 s{sFo}, s{sFo}, 4'))
    at(7, I(f's_add_u32 s{sU}, s{sU}, {QKV_UNIT}'))
    k = 0
    for j in range(18):
        mf = ring[j % 4]
        for oi, (m, b) in enumerate([('k', 0), ('k', 1), ('q', 0), ('q', 1)]):
            acc = A + (8 if m == 'k' else 0) + 4 * b
            wr = W[(m, b, j)] if (m, b, j) in W else Lslots[(j + b) % 4]
            a.mfma(acc, wr, mf, None if j == 0 else acc)
            if (m, b, j) not in W and j + b + 4 < 18:
                lread(j + b + 4)
            if oi == 3:
                a.i(f'ds_read_b128 {R(mf, 4)}, v{vMd} offset:{MEMO + ((j + 4) % 18) * 512}')
            for fn in side.get(k, []):
                fn()
            k += 1
    stamp(a, stamps, 3)
    VA = E
    qf, kf, sm = A, A + 8, A + 12
    X, xm, t0, t1 = B, B + 4, B + 5, B + 6
    seq = []
    for x in range(4):
        seq.append(I(f'v_cvt_pk_bf16_f32 v{kf + x}, v{A + 8 + 2 * x}, v{A + 9 + 2 * x}'))
    for x in range(4):
        seq.append(I(f'v_cvt_pk_bf16_f32 v{qf + x}, v{A + 2 * x}, v{A + 1 + 2 * x}'))
    seq.append(I(f'buffer_store_dwordx4 {R(kf, 4)}, v{vKs}, {WS}, s{sKV} offen sc1'))
    seq.append(lambda: a.mfma(sm, kf, qf, None))
    seq.append(lambda: a.mfma(B, B, qf, None))
    seq.append(lambda: a.mfma(B + 4, B + 4, qf, None))
    seq.append(I(f'v_add_u32 v{vT}, s{sW1k}, v{vSa}'))
    seq.append(I(f'v_add_u32 v{vWc}, s{sW256}, v{vS1}'))
    seq += ['gap', 'gap']
    seq.append(I(f'v_cndmask_b32 v{sm}, v{sm}, v{sm + 1}, s[{sHi}:{sHi + 1}]'))
    seq.append(I(f'v_cndmask_b32 v{sm + 2}, v{sm + 2}, v{sm + 3}, s[{sHi}:{sHi + 1}]'))
    seq.append(I(f'v_cndmask_b32 v{sm}, v{sm + 2}, v{sm}, s[{sM1}:{sM1 + 1}]'))
    seq.append(I(f'ds_write_b32 v{vWc}, v{sm}', tag='sw'))
    for x in range(4):
        seq.append(I(f'v_cndmask_b32 v{B + x}, v{B + 4 + x}, v{B + x}, s[{sM1}:{sM1 + 1}]'))
    seq.append(I(f'ds_write_b128 v{vT}, {R(B, 4)} offset:{SAO}', tag='sw'))
    seq.append('bar')
    for w in range(4):
        seq.append(I(f'ds_read_b128 {R(A + 4 * w, 4)}, v{vSa} offset:{SAO + w * 1024}'))
    seq.append(I(f'ds_read2st64_b32 {R(B + 4, 2)}, v{vS1} offset0:0 offset1:1'))
    seq.append(I(f'ds_read2st64_b32 {R(B + 6, 2)}, v{vS1} offset0:2 offset1:3'))
    seq += ['gap', 'gap']
    for x in range(4):
        seq.append(I(f'v_add_f32 v{A + x}, v{A + x}, v{A + 4 + x}'))
    for x in range(4):
        seq.append(I(f'v_add_f32 v{A + 8 + x}, v{A + 8 + x}, v{A + 12 + x}'))
    seq.append(I(f'v_add_f32 v{B + 4}, v{B + 4}, v{B + 5}'))
    seq.append(I(f'v_add_f32 v{B + 6}, v{B + 6}, v{B + 7}'))
    for x in range(4):
        seq.append(I(f'v_add_f32 v{X + x}, v{A + x}, v{A + 8 + x}'))
    seq.append(I(f'v_add_f32 v{xm}, v{B + 4}, v{B + 6}'))
    seq.append(I(f'v_max3_f32 v{t0}, v{X}, v{X + 1}, v{X + 2}'))
    seq.append(I(f'v_max3_f32 v{t0}, v{X + 3}, v{xm}, v{t0}'))
    seq.append('gap')
    seq.append(I(f'v_max_f32_dpp v{t0}, v{t0}, v{t0} row_ror:8 row_mask:0xf bank_mask:0xf'))
    for sw in (16, 32):
        seq.append(I(f'v_mov_b32 v{t1}, v{t0}'))
        seq.append('gap')
        seq.append(I(f'v_permlane{sw}_swap_b32 v{t0}, v{t1}'))
        seq.append(I(f'v_max_f32 v{t0}, v{t0}, v{t1}'))
    seq.append(I(f'v_mul_f32 v{t0}, s{sC}, v{t0}'))
    for x in range(5):
        seq.append(I(f'v_fma_f32 v{X + x}, v{X + x}, s{sC}, -v{t0}'))
    for x in range(5):
        seq.append(I(f'v_exp_f32 v{X + x}, v{X + x}'))
    P, Pm = A, A + 4
    seq.append(I(f'v_cvt_pk_bf16_f32 v{P}, v{X}, v{X + 1}'))
    seq.append(I(f'v_cvt_pk_bf16_f32 v{P + 1}, v{X + 2}, v{X + 3}'))
    seq.append(I(f'v_cvt_pk_bf16_f32 v{Pm}, v{xm}, 0'))
    seq.append(I(f'v_add_f32 v{t0}, v{X}, v{X + 1}'))
    seq.append(I(f'v_mov_b32_dpp v{P + 2}, v{P} row_ror:8 row_mask:0xf bank_mask:0xf'))
    seq.append(I(f'v_mov_b32_dpp v{P + 3}, v{P + 1} row_ror:8 row_mask:0xf bank_mask:0xf'))
    seq.append(I(f'v_lshlrev_b32 v{Pm}, v{vSh}, v{Pm}'))
    seq.append(I(f'v_add_f32 v{t1}, v{X + 2}, v{X + 3}'))
    OA, OB = A + 8, A + 12
    seq.append(lambda: a.mfma(OA, B + 8, P, None))
    seq.append(I(f'v_mov_b32_dpp v{Pm + 1}, v{Pm} row_ror:8 row_mask:0xf bank_mask:0xf'))
    seq.append(lambda: a.mfma(OB, B + 12, P, None))
    seq.append(I(f'v_add_f32 v{t0}, v{t0}, v{xm}'))
    seq.append(I(f'v_add_f32 v{t0}, v{t0}, v{t1}'))
    seq.append('gap')
    seq.append(I(f'v_add_f32_dpp v{t0}, v{t0}, v{t0} row_ror:8 row_mask:0xf bank_mask:0xf'))
    for sw in (16, 32):
        seq.append(I(f'v_mov_b32 v{t1}, v{t0}'))
        seq.append('gap')
        seq.append(I(f'v_permlane{sw}_swap_b32 v{t0}, v{t1}'))
        seq.append(I(f'v_add_f32 v{t0}, v{t0}, v{t1}'))
    seq.append(I(f'v_rcp_f32 v{t0}, v{t0}'))
    wring = [C + 4, Dr, Dr + 4, Dr + 8, Dr + 12]
    groups = [(0, 1), (2, 3), (4, 5), (6, 7, 8)]
    lorder = [(i, kb) for g in groups for kb in (2, 3) for i in g]

    def wread(n):
        i, kb = lorder[n]
        a.i(f'ds_read_b128 {R(wring[n % 5], 4)}, v{vWc} offset:{(kb - 2) * 36864 + i * 1024}')
    pos = 0
    k = 0
    for j in range(18):
        mf = ring[(j + 18) % 4]
        for b in range(2):
            acc = VA + 4 * b
            a.mfma(acc, mf, W[('v', b, j)], None if j == 0 else acc)
            if b == 1 and j + 4 < 18:
                a.i(f'ds_read_b128 {R(mf, 4)}, v{vMd} offset:{MEMO + (j + 4) * 512}')
            k += 1
            if k < 3:
                continue
            n = 0
            while pos < len(seq) and n < 3:
                s = seq[pos]
                pos += 1
                if s == 'gap':
                    break
                if s == 'bar':
                    a.wait_tag('sw')
                    stamp(a, stamps, 4)
                    a.i('s_barrier')
                    continue
                s()
                n += 1
    stamp(a, stamps, 5)
    a.i(f'v_add_u32 v{vWc}, s{sYb}, v{vLn}')
    rest = [s for s in seq[pos:] if s != 'gap']
    assert 'bar' not in rest
    vpk = [I(f'v_cvt_pk_bf16_f32 v{VA + x}, v{VA + 2 * x}, v{VA + 1 + 2 * x}') for x in range(4)]
    for n in range(5):
        wread(n)
        if rest:
            rest.pop(0)()
    for f in vpk:
        f()
    for f in rest:
        f()
    a.mfma(OA, VA, Pm, OA, k=16)
    a.mfma(OB, VA + 2, Pm, OB, k=16)
    a.i(f's_not_b64 exec, s[{sHi}:{sHi + 1}]')
    a.i(f'buffer_store_dwordx4 {R(VA, 4)}, v{vLn}, {WS}, s{sKV} offen offset:2048 sc1')
    a.i(f's_mov_b64 exec, s[{sM1}:{sM1 + 1}]')
    a.i(f'buffer_load_dword v{vFl}, off, {WS}, s{sFo} sc1')
    a.i(f's_add_u32 s{sKV}, s{sKV}, {KVM_UNIT}')
    a.i(f's_mov_b32 s60, s{sPst}')
    for x in range(8):
        a.i(f'v_mul_f32 v{OA + x}, v{t0}, v{OA + x}')
    for x in range(4):
        a.i(f'v_cvt_pk_bf16_f32 v{B + x}, v{OA + 2 * x}, v{OA + 2 * x + 1}')
    a.i(f'ds_write_b128 v{vOw}, {R(B, 4)} offset:{OO}')
    a.i('s_mov_b64 exec, -1')
    a.i(f's_cmp_eq_u32 s{sT}, 63')
    a.i('s_cbranch_scc1 L_ch_end', nohaz=True)
    a.barrier()
    for kb in range(4):
        a.i(f'ds_read_b128 {R(A + 4 * kb, 4)}, v{vMd} offset:{OO + kb * 512}')
    stamp(a, stamps, 6)
    pend = []
    ln = 0
    for gi, g in enumerate(groups):
        n = 0
        for kb in range(4):
            for i in g:
                acc = B + 4 * (i % 4) if i < 8 else C
                if kb < 2:
                    a.mfma(acc, W[('o', i, kb)], A + 4 * kb, None if kb == 0 else acc)
                else:
                    a.mfma(acc, wring[ln % 5], A + 4 * kb, acc)
                    if ln + 5 < 18:
                        wread(ln + 5)
                    ln += 1
                n += 1
                if n >= 3:
                    for _ in range(2):
                        if pend:
                            pend.pop(0)()
        pk = E + 4 * (gi & 1)
        a0 = B + 4 * (g[0] % 4)
        pend.append(I(f'v_cvt_pk_bf16_f32 v{pk}, v{a0}, v{a0 + 1}'))
        pend.append(I(f'v_cvt_pk_bf16_f32 v{pk + 1}, v{a0 + 2}, v{a0 + 3}'))
        pend.append(I(f'v_bfi_b32 v{pk}, 1, s{sT}, v{pk}'))
        pend.append(I(f'v_cvt_pk_bf16_f32 v{pk + 2}, v{a0 + 4}, v{a0 + 5}'))
        pend.append(I(f'v_cvt_pk_bf16_f32 v{pk + 3}, v{a0 + 6}, v{a0 + 7}'))
        pend.append(I(f'v_bfi_b32 v{pk + 2}, 1, s{sT}, v{pk + 2}'))
        pend.append(I(f'buffer_store_dwordx4 {R(pk, 4)}, v{vPs}, {WS}, s60 offen'))
        pend.append(I('s_add_u32 s60, s60, 65536'))
    tail = pend
    a.i(f's_lshl_b32 s62, s{sTask}, 7')
    a.i(f's_add_u32 s63, s62, s{sAG0}')
    a.i(f's_add_u32 s62, s62, s{sAG1}')
    for f in tail[:-1]:
        f()
    a.i(f'v_cvt_pk_bf16_f32 v{E}, v{C}, v{C + 1}')
    a.i(f'v_cvt_pk_bf16_f32 v{E + 1}, v{C + 2}, v{C + 3}')
    a.i(f'v_bfi_b32 v{E}, 1, s{sT}, v{E}')
    a.i(f'buffer_store_dwordx2 {R(E, 2)}, v{vPs}, {WS}, s{sPs8} offen')
    stamp(a, stamps, 7)
    a.i(f's_cmp_ge_u32 s{sTask}, 72')
    a.i('s_cbranch_scc1 L_ch_next', nohaz=True)
    a.i(f'v_mov_b32 v{Dr + 2}, -1')
    a.i(f'v_mov_b32 v{Dr + 3}, -1')
    l = spin_head(a, 4)
    for i in range(4):
        a.i(f'buffer_load_dwordx4 {R(A + 4 * i, 4)}, v{vLn}, {WS}, s{sRS} offen offset:{i * 1024} sc1')
    for i in range(4):
        a.mfma(B, SEL, A + 4 * i, None if i == 0 else B)
        a.i(f'v_bitop3_b32 v{B + 4 + i}, v{A + 4 * i}, v{A + 4 * i + 2}, s{sT} bitop3:0x7e')
    a.i(f'v_or3_b32 v{B + 4}, v{B + 4}, v{B + 5}, v{B + 6}')
    a.i(f'v_bitop3_b32 v{B + 4}, v{B + 4}, v{B + 7}, 1 bitop3:0xa8')
    a.i(f'v_cmp_ne_u32 vcc, 0, v{B + 4}')
    a.i(f's_cbranch_vccnz {l}', nohaz=True)
    for x in range(4):
        a.i(f'v_add_f32_dpp v{B + x}, v{B + x}, v{B + x} row_ror:8 row_mask:0xf bank_mask:0xf')
    a.i(f'v_cvt_pk_bf16_f32 v{Dr}, v{B}, v{B + 1}')
    a.i(f'v_cvt_pk_bf16_f32 v{Dr + 1}, v{B + 2}, v{B + 3}')
    a.i(f'v_min_u32 v{Dr}, -2, v{Dr}')
    a.i(f'v_min_u32 v{Dr + 1}, -2, v{Dr + 1}')
    a.i(f'buffer_store_dwordx2 {R(Dr, 2)}, v{vAg}, {WS}, s62 offen')
    a.i(f'buffer_store_dwordx2 {R(Dr + 2, 2)}, v{vAg}, {WS}, s63 offen')
    a.label('L_ch_next')
    stamp(a, stamps, 8)
    stamp_flush(a, stamps, 9, sT, A)
    a.i(f's_mov_b32 s60, s{sAG0}')
    a.i(f's_mov_b32 s{sAG0}, s{sAG1}')
    a.i(f's_mov_b32 s{sAG1}, s{sAG2}')
    a.i(f's_mov_b32 s{sAG2}, s60')
    a.i(f's_add_u32 s{sT}, s{sT}, 1')
    a.i('s_branch L_ch_loop')
    a.label('L_ch_end')
    a.waitcnt(vm=0, lg=0)
    a.i('s_barrier')
    rt_stamp(a, stamps, 2, 16)
    a.i(f's_cmp_lg_u32 s{sW}, 3')
    a.i('s_cbranch_scc1 L_exit')
    a.i('s_mov_b64 exec, 1')
    a.i(f'buffer_store_dword v{vMd}, off, {WS}, s{sFk} sc1')
    a.i('s_endpgm')
```

```python
from asmlib import *
from layout import *

WS = 's[4:7]'
WT = 's[8:11]'
IO = 's[12:15]'
DBG = 's[16:19]'
sW, sIDX, sGID, sTO = 20, 21, 22, 23
sL = 24
TIMEOUT = 1 << 15
BUF0, BUF1 = 0, 73728


def srd(a, base, karg, nbytes):
    a.i(f's_load_dwordx2 s[{base}:{base + 1}], s[0:1], {karg}')
    a.i(f's_mov_b32 s{base + 2}, {nbytes}')
    a.i(f's_mov_b32 s{base + 3}, 0x20000')
    a.waitcnt(lg=0)


def prologue(a, roles):
    a.i(f's_load_dwordx2 s[4:5], s[0:1], {K_WS}')
    a.i(f's_load_dwordx2 s[16:17], s[0:1], {K_DBG}')
    a.i(f's_load_dwordx2 s[8:9], s[0:1], {K_WQ}')
    a.i(f's_load_dwordx2 s[12:13], s[0:1], {K_X}')
    a.i('s_getreg_b32 s25, hwreg(HW_REG_XCC_ID)')
    a.i('s_and_b32 s25, s25, 7')
    a.i('v_lshrrev_b32 v1, 6, v0')
    a.i(f'v_readfirstlane_b32 s{sW}, v1')
    a.i(f's_mov_b32 s6, {WS_BYTES}')
    a.i('s_mov_b32 s7, 0x20000')
    a.i('s_mov_b32 s10, 0')
    a.i('s_mov_b32 s11, 0x20000')
    a.i('s_mov_b32 s14, 0')
    a.i('s_mov_b32 s15, 0x20000')
    a.i('s_mov_b32 s18, 256')
    a.i('s_mov_b32 s19, 0x20000')
    a.i('v_lshlrev_b32 v4, 3, v0')
    a.i('v_and_b32 v0, 63, v0')
    a.i('v_mov_b32 v2, 1')
    a.i('s_lshl_b32 s26, s25, 5')
    a.i('v_mov_b32 v3, s26')
    a.i('v_mov_b32 v5, 0')
    a.waitcnt(lg=0)
    a.i(f's_cmp_lg_u32 s{sW}, 0')
    a.i('s_cbranch_scc1 L_tick_done')
    a.i('s_mov_b64 exec, 1')
    a.i(f'buffer_atomic_add v2, v3, {DBG}, 0 offen sc0 sc1')
    a.i('ds_write_b32 v5, v2')
    a.i('s_mov_b64 exec, -1')
    a.label('L_tick_done')
    a.waitcnt(vm=0, lg=0)
    a.i('s_barrier')
    a.i('ds_read_b32 v2, v5')
    a.i('v_readfirstlane_b32 s27, v2')
    a.i('s_cmp_ge_u32 s27, 32')
    a.i('s_cbranch_scc1 L_exit')
    a.i(f's_add_u32 s{sGID}, s26, s27')
    a.i('s_barrier')
    a.i('v_mov_b32 v6, 0')
    a.i('v_mov_b32 v7, 0')
    a.i(f's_lshl_b32 s28, s{sGID}, 11')
    a.i(f'buffer_store_dwordx2 v[6:7], v4, {WS}, s28 offen sc1')
    a.i(f's_and_b32 s{sL}, s25, 1')
    a.i('s_lshr_b32 s25, s25, 1')
    a.i(f's_mov_b32 s{sIDX}, s27')
    a.i('s_cmp_eq_u32 s25, 0')
    a.i(f's_cbranch_scc1 {roles["chain"]}')
    a.i('s_cmp_eq_u32 s25, 3')
    a.i(f's_cbranch_scc1 {roles["up"]}')
    a.i(f's_lshr_b32 s{sIDX}, s27, 1')
    a.i('s_bitcmp1_b32 s27, 0')
    a.i('s_cbranch_scc1 L_disp_proj')
    a.i('s_cmp_eq_u32 s25, 1')
    a.i(f's_cbranch_scc1 {roles["att"]}')
    a.i(f's_branch {roles["down"]}')
    a.label('L_disp_proj')
    a.i('s_lshl_b32 s28, s25, 4')
    a.i(f's_add_u32 s{sIDX}, s{sIDX}, s28')
    a.i(f's_sub_u32 s{sIDX}, s{sIDX}, 16')
    a.i(f's_branch {roles["proj"]}')
    a.label('L_spare')
    arrive(a)
    a.label('L_exit')
    a.i('s_endpgm')
    a.label('L_abort')
    a.i('s_mov_b64 exec, 1')
    a.i(f's_lshl_b32 s28, s{sGID}, 8')
    a.i('s_or_b32 s29, s29, s28')
    a.i(f's_lshl_b32 s28, s{sW}, 16')
    a.i('s_or_b32 s29, s29, s28')
    a.i('s_or_b32 s29, s29, 0x40000000')
    a.i('v_mov_b32 v2, s29')
    a.i(f'buffer_store_dword v2, off, {DBG}, 0 offset:20 sc1')
    a.i('s_endpgm')


def arrive(a, v=2):
    l = a.new('L_arr')
    a.waitcnt(vm=0)
    a.i('s_barrier')
    a.i(f's_cmp_lg_u32 s{sW}, 0')
    a.i(f's_cbranch_scc1 {l}')
    a.i('s_mov_b64 exec, 1')
    a.i(f'v_mov_b32 v{v}, 1')
    a.i(f'buffer_atomic_add v{v}, off, {DBG}, 0 offset:16 sc1')
    a.i('s_mov_b64 exec, -1')
    a.label(l)


def spin_head(a, code):
    a.i(f's_mov_b32 s{sTO}, {TIMEOUT}')
    a.i(f's_mov_b32 s29, {code}')
    l = a.new('L_spin')
    a.label(l)
    a.i(f's_sub_u32 s{sTO}, s{sTO}, 1')
    a.i('s_cbranch_scc1 L_abort')
    return l


def wait_init(a, v=2):
    l = spin_head(a, 1)
    a.i('s_sleep 4')
    a.i(f'buffer_load_dword v{v}, off, {DBG}, 0 offset:16 sc1')
    a.i(f'v_cmp_gt_u32 vcc, 256, v{v}')
    a.i(f's_cbranch_vccnz {l}')


class DsAddr:
    def __init__(self, a, tmp):
        self.a, self.tmp, self.cur = a, tmp, None

    def __call__(self, reg, off):
        if off < 65536:
            return f'v{reg}', off
        hi = off & ~0x7fff
        if self.cur != (reg, hi):
            if self.cur and self.cur[0] == reg and 0 <= off - self.cur[1] < 65536:
                return f'v{self.tmp}', off - self.cur[1]
            self.a.i(f'v_add_u32 v{self.tmp}, {hi}, v{reg}')
            self.cur = (reg, hi)
        return f'v{self.tmp}', off - hi


def bits(a, dst, src, spec, tmp):
    first = True
    for s, m, d in spec:
        t = dst if first else tmp
        a.i(f'v_lshrrev_b32 v{t}, {s}, v{src}')
        a.i(f'v_and_b32 v{t}, {m}, v{t}')
        if first:
            if d:
                a.i(f'v_lshlrev_b32 v{t}, {d}, v{t}')
        else:
            a.i(f'v_lshl_or_b32 v{dst}, v{t}, {d}, v{dst}')
        first = False


SWZ = {
    ('p2', 'pair'): [(0, 7, 1)],
    ('p1', 'pair'): [(1, 3, 1)],
    ('p1', 'nat'): [(1, 1, 1), (3, 1, 2)],
    ('p2', 'nat'): [(0, 3, 1), (3, 1, 3)],
    'x': [(1, 7, 0)],
}


def dma_voff_pow2(a, dst, upr, gpitch, swz, t0, t1):
    lg = {8: 3, 16: 4}[upr]
    rpi = 64 // upr
    a.i(f'v_lshrrev_b32 v{t0}, {lg}, v0')
    a.i(f's_mul_i32 s28, s{sW}, {rpi}')
    a.i(f'v_add_u32 v{t0}, s28, v{t0}')
    bits(a, dst, t0, swz, t1)
    a.i(f'v_and_b32 v{t1}, {upr - 1}, v0')
    a.i(f'v_xor_b32 v{dst}, v{dst}, v{t1}')
    a.i(f'v_lshlrev_b32 v{dst}, 4, v{dst}')
    a.i(f'v_mul_u32_u24 v{t0}, {gpitch}, v{t0}')
    a.i(f'v_add_u32 v{dst}, v{dst}, v{t0}')


def dma_voff_72(a, dst9, swz, t0, t1, t2):
    a.i(f's_lshl_b32 s28, s{sW}, 3')
    for n in range(9):
        d = dst9 + n
        a.i(f'v_add_u32 v{t2}, {64 * n}, v0')
        a.i(f'v_mul_u32_u24 v{t0}, 911, v{t2}')
        a.i(f'v_lshrrev_b32 v{t0}, 16, v{t0}')
        a.i(f'v_mul_u32_u24 v{t1}, 72, v{t0}')
        a.i(f'v_sub_u32 v{t2}, v{t2}, v{t1}')
        a.i(f'v_add_u32 v{t0}, s28, v{t0}')
        bits(a, d, t0, swz, t1)
        a.i(f'v_xor_b32 v{d}, v{d}, v{t2}')
        a.i(f'v_lshlrev_b32 v{d}, 4, v{d}')
        a.i(f'v_mul_u32_u24 v{t0}, 1152, v{t0}')
        a.i(f'v_add_u32 v{d}, v{d}, v{t0}')


assert all((u * 911) >> 16 == u // 72 for u in range(576))


def dma(a, voff, srdn, s_lds, lds_off, s_src, src_off, mods='', tag=None):
    a.i(f's_add_u32 m0, s{s_lds}, {lds_off}')
    a.i(f's_add_u32 s28, s{s_src}, {src_off}')
    a.i(f'buffer_load_dwordx4 v{voff}, {srdn}, s28 offen{mods} lds', tag=tag)


def tr_addr(a, dst, pitch, korder, swz, unit_expr, sub_expr, t0, t1):
    if korder == 'pair':
        a.i(f'v_lshrrev_b32 v{t0}, 2, v0')
    else:
        bits(a, t0, 0, [(2, 3, 0), (4, 3, 3)], t1)
    bits(a, dst, t0, swz, t1)
    unit_expr(t1)
    a.i(f'v_xor_b32 v{dst}, v{dst}, v{t1}')
    a.i(f'v_lshlrev_b32 v{dst}, 4, v{dst}')
    a.i(f'v_mul_u32_u24 v{t0}, {pitch}, v{t0}')
    a.i(f'v_add_u32 v{dst}, v{dst}, v{t0}')
    if sub_expr:
        sub_expr(t1)
        a.i(f'v_add_u32 v{dst}, v{dst}, v{t1}')


def tr_frag(a, ds, dreg, areg, off, pitch, korder):
    half = (16 if korder == 'pair' else 4) * pitch
    for h in range(2):
        r, o = ds(areg, off + h * half)
        a.i(f'ds_read_b64_tr_b16 {R(dreg + 2 * h, 2)}, {r} offset:{o}')


def stamp(a, on, k):
    if on:
        a.i(f's_memtime s[{80 + 2 * k}:{81 + 2 * k}]')


def stamp_flush(a, on, n, sstep, v0):
    if not on:
        return
    a.waitcnt(lg=0)
    for k in range(n):
        a.i(f'v_mov_b32 v{v0 + k}, s{80 + 2 * k}')
    a.i(f's_lshl_b32 s28, s{sstep}, 8')
    a.i(f's_add_u32 s28, s28, s{sGID}')
    a.i('s_lshl_b32 s28, s28, 2')
    a.i(f's_add_u32 s28, s28, s{sW}')
    a.i('s_lshl_b32 s28, s28, 6')
    a.i(f's_add_u32 s28, s28, {STAMP + 65536}')
    a.i('s_mov_b64 exec, 1')
    for k in range(0, n, 4):
        a.i(f'buffer_store_dwordx4 {R(v0 + k, 4)}, off, {WS}, s28 offset:{4 * k}')
    a.i('s_mov_b64 exec, -1')


def rt_stamp(a, on, slot, v0=8):
    if not on:
        return
    l = a.new('L_rt')
    a.i(f's_cmp_lg_u32 s{sW}, 0')
    a.i(f's_cbranch_scc1 {l}')
    a.i('s_memrealtime s[76:77]')
    a.waitcnt(lg=0)
    a.i(f'v_mov_b32 v{v0}, s76')
    a.i(f's_lshl_b32 s28, s{sGID}, 6')
    a.i(f's_add_u32 s28, s28, {STAMP}')
    a.i('s_mov_b64 exec, 1')
    a.i(f'buffer_store_dword v{v0}, off, {WS}, s28 offset:{slot * 4}')
    a.i('s_mov_b64 exec, -1')
    a.label(l)


def sel_frag(a, dst, t0, t1, dual=False):
    a.i(f'v_and_b32 v{t0}, 1, v0')
    a.i(f'v_lshlrev_b32 v{t0}, 4, v{t0}')
    a.i(f'v_mov_b32 v{t1}, 0x3f80')
    a.i(f'v_lshlrev_b32 v{t1}, v{t0}, v{t1}')
    if dual:
        a.i(f'v_lshrrev_b32 v{t0}, 2, v0')
        a.i(f'v_xor_b32 v{t0}, v{t0}, v0')
        a.i(f'v_and_b32 v{t0}, 8, v{t0}')
        a.i(f'v_cmp_eq_u32 vcc, 0, v{t0}')
        a.i(f'v_cndmask_b32 v{t1}, 0, v{t1}, vcc')
    a.i(f'v_bfe_u32 v{t0}, v0, 1, 2')
    for k in range(4):
        a.i(f'v_cmp_eq_u32 vcc, {k}, v{t0}')
        a.i(f'v_cndmask_b32 v{dst + k}, 0, v{t1}, vcc')
```

```python
import math
from common import *
from chain import f2u

vLn, vPs, vR1, vR2, vC1, vC2, vFa, vFl, vT, vSt, vKm, vVm = range(12)
SELD, SEL = 12, 16
sS, sTag, sPst, sRd, sRes, sYo, sNo, sFp, sFn, sIn, sSl, sW1k, sSp = range(30, 43)
STO = 65536 - 64


def kstage(a, W, nkb, karg, nbytes, rowbase_bytes_sgpr, blk_src, blk8_sgpr=None):
    v9, at, tA = 20, 29, 33
    sw = SWZ['p1', 'pair']
    dma_voff_72(a, v9, sw, 40, 41, 42)
    a.i(f's_mul_i32 s62, s{sW}, 18')
    for i in range(4):
        def un(t, i=i):
            a.i(f'v_and_b32 v{t}, 1, v0')
            a.i(f'v_add_u32 v{t}, s62, v{t}')
            if i:
                a.i(f'v_add_u32 v{t}, {2 * i}, v{t}')

        def sub(t):
            a.i(f'v_and_b32 v{t}, 2, v0')
            a.i(f'v_lshlrev_b32 v{t}, 2, v{t}')
        tr_addr(a, at + i, 1152, 'pair', sw, un, sub, 40, 41)
    ds = DsAddr(a, tA)
    a.i(f's_mul_i32 s60, s{sW}, 9216')
    srd(a, 8, karg, nbytes)
    chunks = [list(range(k, min(k + 2, nkb))) for k in range(0, nkb, 2)]

    def issue(c):
        for bi, kb in enumerate(chunks[c]):
            for n in range(9):
                dma(a, v9 + n, WT, 60, (BUF0, BUF1)[c & 1] + bi * 36864 + n * 1024,
                    blk8_sgpr if kb == 8 else rowbase_bytes_sgpr, blk_src(kb))
    issue(0)
    issue(1)
    for c in range(len(chunks)):
        a.waitcnt(vm=9 * len(chunks[c + 1]) if c + 1 < len(chunks) else 0)
        a.i('s_barrier')
        for bi, kb in enumerate(chunks[c]):
            for i in range(9):
                tr_frag(a, ds, W[(i, kb)], at + (i & 3), (BUF0, BUF1)[c & 1] + bi * 36864 + 128 * (i >> 2), 1152, 'pair')
        a.barrier()
        if c + 2 < len(chunks):
            issue(c + 2)


def kinit(a, grp):
    a.i(f's_lshl_b32 s{sW1k}, s{sW}, 10')
    a.i(f's_add_u32 s28, s{sL}, {grp}')
    a.i(f's_mul_i32 s{sSl}, s28, {2 * PRS_SLOT}')
    a.i(f's_add_u32 s{sSl}, s{sSl}, {PRS}')
    a.i(f's_mul_i32 s{sPst}, s{sIDX}, {UNIT}')
    a.i(f's_add_u32 s{sPst}, s{sPst}, s{sSl}')
    a.i('v_lshlrev_b32 v10, 4, v0')
    for k in range(4):
        a.i(f'v_mov_b32 v{16 + k}, 1')
    a.i(f's_mul_i32 s60, s{sW}, 9216')
    a.i(f's_add_u32 s60, s60, s{sPst}')
    for sl in range(2):
        for n in range(9):
            a.i(f's_add_u32 s28, s60, {sl * PRS_SLOT + n * 1024}')
            a.i(f'buffer_store_dwordx4 v[16:19], v10, {WS}, s28 offen')
    arrive(a)


def ksetup(a):
    t0, t1 = 40, 41
    sel_frag(a, SELD, t0, t1, dual=True)
    sel_frag(a, SEL, t0, t1)
    bits(a, t0, 0, [(0, 15, 0), (5, 1, 4)], t1)
    a.i(f'v_mul_u32_u24 v{vPs}, 1152, v{t0}')
    a.i(f'v_and_b32 v{t1}, 16, v0')
    a.i(f'v_add_u32 v{vPs}, v{vPs}, v{t1}')
    a.i(f'v_mul_u32_u24 v{vR1}, {UNIT // 16}, v{t1}')
    a.i(f'v_lshl_add_u32 v{vR1}, v{t0}, 4, v{vR1}')
    a.i(f'v_lshrrev_b32 v{t1}, 1, v{t1}')
    a.i(f'v_lshl_add_u32 v{vC1}, v{t0}, 4, v{t1}')
    bits(a, t0, 0, [(2, 3, 2), (4, 3, 0)], vR2)
    a.i(f'v_mul_u32_u24 v{vR2}, {UNIT}, v{t0}')
    a.i(f'v_and_b32 v{t0}, 3, v0')
    a.i(f'v_lshlrev_b32 v{t0}, 4, v{t0}')
    a.i(f'v_add_u32 v{t0}, 512, v{t0}')
    a.i(f'v_add_u32 v{vR2}, v{vR2}, v{t0}')
    a.i(f'v_add_u32 v{vC2}, v{t0}, v{t1}')
    a.i(f's_lshl_b32 s28, s{sW}, 3')
    a.i(f's_add_u32 s28, s28, {STO}')
    a.i(f'v_mov_b32 v{vSt}, s28')
    a.i(f's_mul_i32 s28, s{sW}, 288')
    a.i(f's_add_u32 s{sPst}, s{sPst}, s28')
    a.i(f's_mul_i32 s{sRes}, s{sIDX}, 2304')
    a.i(f's_mul_i32 s28, s{sW}, 576')
    a.i(f's_add_u32 s{sRes}, s{sRes}, s28')
    a.i(f's_add_u32 s{sRd}, s{sSl}, s{sRes}')
    a.i(f's_lshl_b32 s{sFp}, s{sIDX}, 11')
    a.i(f's_lshl_b32 s28, s{sW}, 9')
    a.i(f's_add_u32 s{sFp}, s{sFp}, s28')
    a.i(f's_mov_b32 s{sSp}, {PRS_SLOT}')
    a.i(f's_mov_b32 s{sS}, 0')
    a.i(f'v_lshlrev_b32 v{vLn}, 4, v0')


def kgemm(a, W, nkb, X, ACC, PK, hooks=None):
    a.i(f's_lshr_b32 s{sTag}, s{sS}, 1')
    pend = []
    for i in range(10):
        acc = ACC + 8 * (i & 1)
        if i < 9:
            for kb in range(nkb):
                for rt in range(2):
                    a.mfma(acc + 4 * rt, W[(i, kb)], X + 4 * (rt * nkb + kb), None if kb == 0 else acc + 4 * rt)
                    if kb >= 2 and pend:
                        a.i(pend.pop(0))
            if hooks and i in hooks:
                hooks[i]()
        while pend:
            a.i(pend.pop(0))
        if i < 9:
            pk = PK + 4 * (i & 1)
            pend = [f'v_cvt_pk_bf16_f32 v{pk + x}, v{acc + 2 * x}, v{acc + 2 * x + 1}' for x in (0, 2, 1, 3)]
            pend += [f'v_permlane32_swap_b32 v{pk}, v{pk + 2}', f'v_permlane32_swap_b32 v{pk + 1}, v{pk + 3}',
                     f'v_bfi_b32 v{pk}, 1, s{sTag}, v{pk}', f'v_bfi_b32 v{pk + 2}, 1, s{sTag}, v{pk + 2}',
                     f'buffer_store_dwordx4 {R(pk, 4)}, v{vPs}, {WS}, s{sPst} offen offset:{32 * i}']


def allred(a, regs, tmps):
    for m in ('quad_perm:[1,0,3,2]', 'quad_perm:[2,3,0,1]', 'row_half_mirror', 'row_mirror'):
        for r in regs:
            a.i(f'v_add_f32_dpp v{r}, v{r}, v{r} {m} row_mask:0xf bank_mask:0xf')
    for sw in (16, 32):
        for r, t in zip(regs, tmps):
            a.i(f'v_mov_b32 v{t}, v{r}')
        for r, t in zip(regs, tmps):
            a.i(f'v_permlane{sw}_swap_b32 v{r}, v{t}')
        for r, t in zip(regs, tmps):
            a.i(f'v_add_f32 v{r}, v{r}, v{t}')


def kreduce(a, pfx, code, L, RS, res_srd, final_lbl=None, stamps=False, st0=0):
    Y, T = L + 36, L + 48
    PKD, F = L + 36, L + 40
    l = spin_head(a, code)
    for x in range(8):
        a.i(f's_add_u32 s28, s{sRd}, {2 * x * UNIT}')
        a.i(f'buffer_load_dwordx4 {R(L + 4 * x, 4)}, v{vR1}, {WS}, s28 offen sc1')
    a.i(f'buffer_load_dwordx4 {R(L + 32, 4)}, v{vR2}, {WS}, s{sRd} offen sc1')
    for x in range(9):
        if x < 8:
            a.mfma(F, SELD, L + 4 * x, None if x == 0 else F)
        else:
            a.mfma(F + 4, SEL, L + 32, None)
        a.i(f'v_bitop3_b32 v{T + (1 if x else 0)}, v{L + 4 * x}, v{L + 4 * x + 2}, s{sTag} bitop3:0x7e')
        if x:
            a.i(f'v_or_b32 v{T}, v{T}, v{T + 1}')
    a.i(f'v_and_b32 v{T}, 1, v{T}')
    a.i(f'v_cmp_ne_u32 vcc, 0, v{T}')
    a.i(f's_cbranch_vccnz {l}', nohaz=True)
    stamp(a, stamps, st0)
    for k in range(4):
        a.i(f'v_lshlrev_b32 v{L + 2 * k}, 16, v{RS + k}')
        a.i(f'v_and_b32 v{L + 2 * k + 1}, 0xffff0000, v{RS + k}')
    for m in ('row_ror:4', 'row_ror:8'):
        for k in range(4):
            a.i(f'v_add_f32_dpp v{F + 4 + k}, v{F + 4 + k}, v{F + 4 + k} {m} row_mask:0xf bank_mask:0xf')
    for k in range(8):
        a.i(f'v_add_f32 v{F + k}, v{F + k}, v{L + k}')
    for k in range(4):
        a.i(f'v_cvt_pk_bf16_f32 v{PKD + k}, v{F + 2 * k}, v{F + 2 * k + 1}')
    if final_lbl:
        a.i(f's_cmp_eq_u32 s{sL}, 1')
        a.i(f's_cbranch_scc1 {final_lbl}')
    a.i(f'buffer_store_dwordx2 {R(PKD, 2)}, v{vC1}, {WS}, s{sYo} offen sc1')
    a.i(f'buffer_store_dwordx2 {R(PKD + 2, 2)}, v{vC2}, {WS}, s{sYo} offen sc1')
    for k in range(4):
        a.i(f'v_lshlrev_b32 v{F + 2 * k}, 16, v{PKD + k}')
        a.i(f'v_and_b32 v{F + 2 * k + 1}, 0xffff0000, v{PKD + k}')
    a.i(f'v_readfirstlane_b32 s60, v{F}')
    for k in range(8):
        a.i(f'v_subrev_f32 v{L + k}, s60, v{F + k}')
    s1, q1, s2, q2 = T, T + 1, T + 2, T + 3
    a.i(f'v_add_f32 v{s1}, v{L}, v{L + 1}')
    a.i(f'v_add_f32 v{s2}, v{L + 4}, v{L + 5}')
    a.i(f'v_mul_f32 v{q1}, v{L}, v{L}')
    a.i(f'v_mul_f32 v{q2}, v{L + 4}, v{L + 4}')
    for k in (1, 2, 3):
        if k > 1:
            a.i(f'v_add_f32 v{s1}, v{s1}, v{L + k}')
            a.i(f'v_add_f32 v{s2}, v{s2}, v{L + 4 + k}')
        a.i(f'v_fmac_f32 v{q1}, v{L + k}, v{L + k}')
        a.i(f'v_fmac_f32 v{q2}, v{L + 4 + k}, v{L + 4 + k}')
    a.i(f'v_fmac_f32 v{s1}, 0x3e000000, v{s2}')
    a.i(f'v_fmac_f32 v{q1}, 0x3e000000, v{q2}')
    allred(a, [s1, q1], [s2, q2])
    a.i(f'v_mul_f32 v{s2}, {hex(f2u(1 / 288))}, v{s1}')
    a.i(f'v_fma_f32 v{q1}, -v{s1}, v{s2}, v{q1}')
    a.i(f'v_add_f32 v{s1}, s60, v{s2}')
    a.i(f'ds_write_b64 v{vSt}, {R(s1, 2)}')
    a.i(f'v_xor_b32 v{L}, 8, v{vSt}')
    a.barrier()
    a.i(f'ds_read_b64 {R(s2, 2)}, v{L}')
    a.i(f'v_mov_b32 v{L + 1}, {hex(f2u(1e-5))}')
    a.i(f'v_sub_f32 v{L}, v{s1}, v{s2}')
    a.i(f'v_add_f32 v{q1}, v{q1}, v{q2}')
    a.i(f'v_add_f32 v{s1}, v{s1}, v{s2}')
    a.i(f'v_mul_f32 v{L}, v{L}, v{L}')
    a.i(f'v_fmac_f32 v{q1}, {hex(f2u(144.0))}, v{L}')
    a.i(f'v_fmac_f32 v{L + 1}, {hex(f2u(1 / 576))}, v{q1}')
    a.i(f'v_rsq_f32 v{L + 1}, v{L + 1}')
    a.i(f'v_mul_f32 v{s1}, 0.5, v{s1}')
    for k in range(8):
        a.i(f'v_sub_f32 v{F + k}, v{F + k}, v{s1}')
    for k in range(8):
        a.i(f'v_mul_f32 v{F + k}, v{F + k}, v{L + 1}')
    for k in range(4):
        a.i(f'v_cvt_pk_bf16_f32 v{L + 4 + k}, v{F + 2 * k}, v{F + 2 * k + 1}')
    a.i(f'buffer_store_dwordx2 {R(L + 4, 2)}, v{vC1}, {WS}, s{sNo} offen sc1')
    a.i(f'buffer_store_dwordx2 {R(L + 6, 2)}, v{vC2}, {WS}, s{sNo} offen sc1', tag='n')


def kpublish(a):
    a.wait_tag('n')
    a.i('s_mov_b64 exec, 1')
    a.i(f'buffer_store_dword v{vSt}, off, {WS}, s{sFp} sc1')
    a.i('s_mov_b64 exec, -1')


def kadvance(a):
    for r in (sRes, sYo, sNo):
        a.i(f's_add_u32 s{r}, s{r}, {UNIT}')
    a.i(f's_add_u32 s{sFp}, s{sFp}, 4')
    a.i(f's_add_u32 s{sFn}, s{sFn}, 4')
    a.i(f's_add_u32 s{sPst}, s{sPst}, s{sSp}')
    a.i(f's_add_u32 s{sRd}, s{sRd}, s{sSp}')
    a.i(f's_sub_u32 s{sSp}, 0, s{sSp}')
    a.i(f's_add_u32 s{sS}, s{sS}, 1')
    a.i(f's_cmp_lt_u32 s{sS}, 64')


def res_load(a, RS, srdn):
    a.i(f'buffer_load_dwordx2 {R(RS, 2)}, v{vC1}, {srdn}, s{sRes} offen sc1')
    a.i(f'buffer_load_dwordx2 {R(RS + 2, 2)}, v{vC2}, {srdn}, s{sRes} offen sc1')


def down(a, stamps=False):
    a.label('L_down')
    rt_stamp(a, stamps, 0)
    kinit(a, 2)
    W = {}
    for i in range(9):
        for kb in range(9):
            W[(i, kb)] = 188 + 4 * len(W)
    assert 188 + 4 * len(W) == 512
    a.i(f's_mul_i32 s61, s{sIDX}, {288 * 1152}')
    a.i(f's_cmp_lt_u32 s{sW}, 2')
    a.i(f's_cselect_b32 s63, 1, 2')
    a.i(f's_mul_i32 s63, s63, {128 * 1152}')
    a.i('s_add_u32 s63, s63, s61')
    kstage(a, W, 9, K_WD, 4608 * 1152, 61, lambda kb: 0 if kb == 8 else (144 * (kb // 4) + 32 * (kb % 4)) * 1152, 63)
    a.i(f'v_and_b32 v{vFa}, 7, v0')
    a.i(f'v_lshlrev_b32 v{vFa}, 9, v{vFa}')
    ksetup(a)
    srd(a, 12, K_OUT, 2048 * 1152)
    a.i(f's_add_u32 s{sYo}, s{sRes}, {X2}')
    a.i(f's_add_u32 s{sNo}, s{sRes}, {NA + 64 * UNIT}')
    a.i(f's_cmp_eq_u32 s{sL}, 1')
    a.i(f's_cselect_b32 s{sYo}, s{sRes}, s{sYo}')
    a.i(f's_mul_i32 s28, s{sL}, {64 * UNIT}')
    a.i(f's_add_u32 s{sRes}, s{sRes}, s28')
    a.i(f's_add_u32 s{sRes}, s{sRes}, {YB}')
    a.i(f's_add_u32 s{sFp}, s{sFp}, {F_NA + 256}')
    a.i(f's_lshl_b32 s{sFn}, s{sIDX}, 12')
    a.i(f's_lshl_b32 s28, s{sL}, 8')
    a.i(f's_add_u32 s{sFn}, s{sFn}, s28')
    a.i(f's_add_u32 s{sFn}, s{sFn}, {F_H}')
    a.i(f's_mul_i32 s{sIn}, s{sL}, {64 * H_UNIT}')
    a.i(f's_mul_i32 s28, s{sIDX}, 9216')
    a.i(f's_add_u32 s{sIn}, s{sIn}, s28')
    a.i(f's_add_u32 s{sIn}, s{sIn}, {HB}')
    a.i(f's_lshr_b32 s28, s{sW}, 1')
    a.i(f's_mul_i32 s44, s28, 9216')
    a.i(f's_mul_i32 s28, s28, {144 * 1024}')
    a.i(f's_add_u32 s{sIn}, s{sIn}, s28')
    a.i(f's_and_b32 s28, s{sW}, 1')
    a.i('s_lshl_b32 s28, s28, 12')
    a.i('s_add_u32 s44, s44, s28')
    a.i(f's_add_u32 s{sIn}, s{sIn}, s28')
    wait_init(a, 40)
    rt_stamp(a, stamps, 1, 40)
    X, ACC, PK, RS, L = 20, 92, 108, 116, 120
    a.label('L_down_loop')
    stamp(a, stamps, 0)
    l = spin_head(a, 9)
    a.i(f'buffer_load_dword v{vFl}, v{vFa}, {WS}, s{sFn} offen sc1')
    a.i(f'v_cmp_eq_u32 vcc, 0, v{vFl}')
    a.i(f's_cbranch_vccnz {l}', nohaz=True)
    stamp(a, stamps, 1)
    for n in range(5):
        dma(a, vLn, WS, 44, n * 1024, sIn, n * 1024, mods=' sc1', tag='x')
    res_load(a, RS, WS)
    a.i(f's_add_u32 s{sIn}, s{sIn}, {H_UNIT}')
    a.wait_tag('x')
    a.i('s_barrier')
    stamp(a, stamps, 2)
    for kb in range(9):
        for rt in range(2):
            a.i(f'ds_read_b128 {R(X + 4 * (rt * 9 + kb), 4)}, v{vLn} offset:{(rt * 9 + kb) * 1024}')
    kgemm(a, W, 9, X, ACC, PK)
    stamp(a, stamps, 3)
    kreduce(a, 'L_down', 10, L, RS, WS, final_lbl='L_down_fin', stamps=stamps, st0=4)
    stamp(a, stamps, 5)
    kpublish(a)
    a.i('s_branch L_down_adv')
    a.label('L_down_fin')
    a.i(f'buffer_store_dwordx2 {R(L + 36, 2)}, v{vC1}, {IO}, s{sYo} offen')
    a.i(f'buffer_store_dwordx2 {R(L + 38, 2)}, v{vC2}, {IO}, s{sYo} offen')
    a.i('s_barrier')
    stamp(a, stamps, 5)
    a.label('L_down_adv')
    stamp(a, stamps, 6)
    stamp_flush(a, stamps, 7, sS, ACC)
    kadvance(a)
    a.i('s_cbranch_scc1 L_down_loop')
    rt_stamp(a, stamps, 2, 40)
    a.i('s_endpgm')


def att(a, stamps=False):
    a.label('L_att')
    rt_stamp(a, stamps, 0)
    kinit(a, 0)
    W = {}
    for i in range(9):
        for kb in range(8):
            W[(i, kb)] = 224 + 4 * len(W)
    assert 224 + 4 * len(W) == 512
    a.i(f's_mul_i32 s61, s{sIDX}, {256 * 1152}')
    kstage(a, W, 8, K_WO, 4096 * 1152, 61, lambda kb: kb * 36864)
    MK = 20
    sH, sQt, sC, sKm, sOw = 44, 45, 46, 47, 48
    a.i(f's_lshr_b32 s{sH}, s{sW}, 1')
    a.i(f's_lshl_b32 s{sOw}, s{sH}, 12')
    a.i(f's_lshl_b32 s28, s{sIDX}, 1')
    a.i(f's_add_u32 s{sH}, s{sH}, s28')
    a.i(f's_and_b32 s{sQt}, s{sW}, 1')
    a.i(f's_lshl_b32 s28, s{sQt}, 13')
    a.i(f's_add_u32 s{sOw}, s{sOw}, s28')
    a.i(f's_mov_b32 s{sC}, {hex(f2u(128 ** -0.5 * math.log2(math.e)))}')
    a.i('v_and_b32 v40, 15, v0')
    a.i(f's_lshl_b32 s28, s{sQt}, 4')
    a.i('v_add_u32 v40, s28, v40')
    a.i('v_lshrrev_b32 v41, 4, v0')
    a.i('v_lshlrev_b32 v41, 2, v41')
    a.i('v_mov_b32 v42, 0xff800000')
    for T in range(2):
        for r in range(4):
            a.i(f'v_add_u32 v43, {16 * T + r}, v41')
            a.i('v_cmp_gt_u32 vcc, v43, v40')
            a.i(f'v_cndmask_b32 v{MK + 4 * T + r}, 0, v42, vcc')
    a.i('v_cmp_lt_u32 vcc, 31, v0')
    for r in range(4):
        a.i(f'v_cndmask_b32 v{MK + 8 + r}, 0, v42, vcc')
    bits(a, vFa, 0, [(0, 3, 9), (2, 1, 16)], 40)
    a.i(f's_mul_i32 s28, s{sH}, 1536')
    a.i(f's_sub_u32 s28, {(F_KVM - F_Q) & 0xffffffff}, s28')
    a.i('v_mov_b32 v40, s28')
    a.i('v_cmp_lt_u32 vcc, 7, v0')
    a.i(f'v_cndmask_b32 v{vFa}, v{vFa}, v40, vcc')
    a.i(f's_lshl_b32 s28, s{sH}, 11')
    a.i(f's_add_u32 s28, s28, {F_Q}')
    a.i(f'v_add_u32 v{vFa}, s28, v{vFa}')
    bits(a, vKm, 0, [(0, 7, 4), (4, 3, 7)], 40)
    bits(a, vVm, 0, [(0, 31, 4)], 40)
    ksetup(a)
    a.i(f's_lshl_b32 s{sFn}, s{sL}, 8')
    a.i(f's_mul_i32 s28, s{sL}, {64 * UNIT}')
    a.i(f's_add_u32 s28, s28, s{sRes}')
    a.i(f's_add_u32 s{sYo}, s28, {YB}')
    a.i(f's_add_u32 s{sNo}, s28, {NB}')
    a.i(f's_add_u32 s{sFp}, s{sFp}, s{sFn}')
    a.i(f's_add_u32 s{sFp}, s{sFp}, {F_NB}')
    a.i(f's_mul_i32 s{sIn}, s{sL}, {64 * QKV_UNIT}')
    a.i(f's_mul_i32 s28, s{sH}, 24576')
    a.i(f's_add_u32 s{sIn}, s{sIn}, s28')
    a.i(f's_add_u32 s{sIn}, s{sIn}, {QKV}')
    a.i(f's_mul_i32 s{sKm}, s{sL}, {64 * KVM_UNIT}')
    a.i(f's_lshl_b32 s28, s{sH}, 12')
    a.i(f's_add_u32 s{sKm}, s{sKm}, s28')
    a.i(f's_add_u32 s{sKm}, s{sKm}, {KVM}')
    srd(a, 12, K_X, 2048 * 1152)
    a.i(f's_cmp_eq_u32 s{sL}, 0')
    a.i('s_cbranch_scc1 L_att_res')
    srd(a, 12, K_WS, WS_BYTES)
    a.i(f's_add_u32 s{sRes}, s{sRes}, {X2}')
    a.label('L_att_res')
    wait_init(a, 40)
    rt_stamp(a, stamps, 1, 40)
    X, ACC, PK, RS = 32, 96, 112, 120
    Q, K, V, KM, VM = 96, 124, 156, 188, 204
    a.label('L_att_loop')
    stamp(a, stamps, 0)
    l = spin_head(a, 11)
    a.i(f'buffer_load_dword v{vFl}, v{vFa}, {WS}, s{sFn} offen sc1')
    a.i(f'v_cmp_eq_u32 vcc, 0, v{vFl}')
    a.i(f's_cbranch_vccnz {l}', nohaz=True)
    stamp(a, stamps, 1)
    a.i(f's_lshl_b32 s28, s{sQt}, 10')
    a.i(f's_add_u32 s60, s{sIn}, s28')
    a.i('s_add_u32 s61, s60, 4096')
    for kb in range(4):
        a.i(f'buffer_load_dwordx4 {R(Q + 4 * kb, 4)}, v{vLn}, {WS}, s{60 + (kb >> 1)} offen offset:{(kb & 1) * 2048} sc1')
    for kb in range(4):
        a.i(f'buffer_load_dwordx4 {R(KM + 4 * kb, 4)}, v{vKm}, {WS}, s{sKm} offen offset:{kb * 512} sc1')
    for n in range(16):
        if n % 4 == 0:
            a.i(f's_add_u32 s28, s{sIn}, {8192 + n * 1024}')
        a.i(f'buffer_load_dwordx4 {R(K + 4 * n, 4)}, v{vLn}, {WS}, s28 offen offset:{(n & 3) * 1024} sc1')
    for kb in range(4):
        a.i(f'buffer_load_dwordx4 {R(VM + 4 * kb, 4)}, v{vVm}, {WS}, s{sKm} offen offset:{2048 + kb * 512} sc1')
    res_load(a, RS, IO)
    a.i(f's_add_u32 s{sIn}, s{sIn}, {QKV_UNIT}')
    a.i(f's_add_u32 s{sKm}, s{sKm}, {KVM_UNIT}')
    Sx, O, t0, t1, P = X, X + 16, X + 12, X + 13, X + 48
    for kb in range(4):
        a.mfma(Sx + 8, KM + 4 * kb, Q + 4 * kb, MK + 8 if kb == 0 else Sx + 8)
    for kb in range(4):
        for T in range(2):
            a.mfma(Sx + 4 * T, K + 4 * (2 * kb + T), Q + 4 * kb, MK + 4 * T if kb == 0 else Sx + 4 * T)
    stamp(a, stamps, 2)
    a.i(f'v_max3_f32 v{t0}, v{Sx + 8}, v{Sx + 9}, v{Sx + 10}')
    a.i(f'v_max3_f32 v{t0}, v{Sx + 11}, v{Sx}, v{t0}')
    a.i(f'v_max3_f32 v{t0}, v{Sx + 1}, v{Sx + 2}, v{t0}')
    a.i(f'v_max3_f32 v{t0}, v{Sx + 3}, v{Sx + 4}, v{t0}')
    a.i(f'v_max3_f32 v{t0}, v{Sx + 5}, v{Sx + 6}, v{t0}')
    a.i(f'v_max_f32 v{t0}, v{Sx + 7}, v{t0}')
    for sw in (16, 32):
        a.i(f'v_mov_b32 v{t1}, v{t0}')
        a.i(f'v_permlane{sw}_swap_b32 v{t0}, v{t1}')
        a.i(f'v_max_f32 v{t0}, v{t0}, v{t1}')
    a.i(f'v_mul_f32 v{t0}, s{sC}, v{t0}')
    for x in range(12):
        a.i(f'v_fma_f32 v{Sx + x}, v{Sx + x}, s{sC}, -v{t0}')
    for x in range(12):
        a.i(f'v_exp_f32 v{Sx + x}, v{Sx + x}')
    a.i(f'v_add_f32 v{t0}, v{Sx}, v{Sx + 1}')
    a.i(f'v_add_f32 v{t1}, v{Sx + 2}, v{Sx + 3}')
    for x in range(4, 12, 2):
        a.i(f'v_add_f32 v{t0}, v{t0}, v{Sx + x}')
        a.i(f'v_add_f32 v{t1}, v{t1}, v{Sx + x + 1}')
    a.i(f'v_add_f32 v{t0}, v{t0}, v{t1}')
    for sw in (16, 32):
        a.i(f'v_mov_b32 v{t1}, v{t0}')
        a.i(f'v_permlane{sw}_swap_b32 v{t0}, v{t1}')
        a.i(f'v_add_f32 v{t0}, v{t0}, v{t1}')
    a.i(f'v_rcp_f32 v{t0}, v{t0}')
    for x in range(12):
        a.i(f'v_mul_f32 v{Sx + x}, v{t0}, v{Sx + x}')
    for x in range(6):
        a.i(f'v_cvt_pk_bf16_f32 v{P + x}, v{Sx + 2 * x}, v{Sx + 2 * x + 1}')
    a.i(f'v_add_u32 v{vT}, s{sOw}, v{vLn}')
    for d in range(8):
        a.mfma(O + 4 * d, V + 4 * d, P, None)
    for d in range(8):
        a.mfma(O + 4 * d, VM + 2 * d, P + 4, O + 4 * d, k=16)
    for kb in range(4):
        for x in range(4):
            a.i(f'v_cvt_pk_bf16_f32 v{O + 8 * kb + x}, v{O + 8 * kb + 2 * x}, v{O + 8 * kb + 2 * x + 1}')
        a.i(f'ds_write_b128 v{vT}, {R(O + 8 * kb, 4)} offset:{kb * 1024}')
    a.barrier()
    stamp(a, stamps, 3)
    for kb in range(8):
        for rt in range(2):
            a.i(f'ds_read_b128 {R(X + 4 * (rt * 8 + kb), 4)}, v{vLn} offset:{(rt * 8 + kb) * 1024}')
    kgemm(a, W, 8, X, ACC, PK)
    stamp(a, stamps, 4)
    kreduce(a, 'L_att', 12, X, RS, IO, stamps=stamps, st0=5)
    stamp(a, stamps, 6)
    kpublish(a)
    stamp(a, stamps, 7)
    stamp_flush(a, stamps, 8, sS, ACC)
    kadvance(a)
    a.i('s_cbranch_scc1 L_att_loop')
    rt_stamp(a, stamps, 2, 40)
    a.i('s_endpgm')
```

```python
MB = 1 << 20
UNIT = 32 * 576 * 2
F_NA = 0
F_NB = 32 * 1024
F_KVM = 64 * 1024
F_Q = 128 * 1024
F_KV = 192 * 1024
F_H = 256 * 1024
FLAG_BYTES = 512 * 1024
NA = 1 * MB
NB = 6 * MB
YB = 11 * MB
X2 = 16 * MB
CRS = 19 * MB
CAG = 20 * MB
PRS = 22 * MB
STAMP = 27 * MB
KVM = 32 * MB
HB = 64 * MB
QKV = 128 * MB
WS_BYTES = 268435456
CRS_L = 72 * 4096
CAG_SLOT = 9216
CAG_L = 32768
PRS_SLOT = 16 * UNIT
H_UNIT = 2 * 144 * 1024
QKV_UNIT = 32 * 24576
KVM_UNIT = 32 * 4096
OOB = 0x40000000
K_X, K_MEM0, K_WQ, K_WK, K_WV, K_WO, K_SEG, K_BX, K_WG, K_WU, K_WD, K_OUT, K_DBG, K_WS = [8 * i for i in range(14)]
```

```python
import math
from common import *
from chain import f2u

vLn, vXe, vXo, vFa, vFl, vT = 0, 1, 2, 3, 4, 5
vD9 = 6
sS, sPre, sSrc, sFn, sLb, sW1k, sW9k, sOut, sFp, sFq, sPq = range(30, 41)
sDx = 44
XB = UNIT


def publish(a, sflag, vnz=vXo):
    a.i('s_mov_b64 exec, 1')
    a.i(f'buffer_store_dword v{vnz}, off, {WS}, s{sflag} sc1')
    a.i('s_mov_b64 exec, -1')


def x_setup(a, nbase, fbase, t0, t1, t2):
    dma_voff_72(a, vD9, SWZ['x'], t0, t1, t2)
    a.i(f'v_and_b32 v{t0}, 15, v0')
    a.i(f'v_bfe_u32 v{t1}, v0, 1, 3')
    a.i(f'v_lshrrev_b32 v{t2}, 4, v0')
    a.i(f'v_xor_b32 v{t1}, v{t1}, v{t2}')
    a.i(f'v_mul_u32_u24 v{t0}, 1152, v{t0}')
    a.i(f'v_lshl_add_u32 v{vXe}, v{t1}, 4, v{t0}')
    a.i(f'v_xor_b32 v{t1}, 4, v{t1}')
    a.i(f'v_lshl_add_u32 v{vXo}, v{t1}, 4, v{t0}')
    a.i(f'v_and_b32 v{vFa}, 15, v0')
    a.i(f'v_lshlrev_b32 v{vFa}, 9, v{vFa}')
    a.i(f's_mul_i32 s{sSrc}, s{sL}, {64 * UNIT}')
    a.i(f's_add_u32 s{sSrc}, s{sSrc}, {nbase}')
    a.i(f's_lshl_b32 s{sFn}, s{sW}, 13')
    a.i(f's_lshl_b32 s28, s{sL}, 8')
    a.i(f's_add_u32 s{sFn}, s{sFn}, s28')
    a.i(f's_add_u32 s{sFn}, s{sFn}, {fbase}')
    a.i(f's_mov_b32 s{sLb}, s{sW9k}')
    a.i(f's_mov_b32 s{sS}, 0')
    a.i(f's_mov_b32 s{sDx}, {XB}')
    a.i(f's_mov_b64 s[{sPq}:{sPq + 1}], 0')
    a.i(f'v_lshlrev_b32 v{vLn}, 4, v0')


def x_poll(a):
    a.i(f'buffer_load_dword v{vFl}, v{vFa}, {WS}, s{sFn} offen sc1')


def x_dma(a):
    for n in range(9):
        a.i(f's_add_u32 m0, s{sLb}, {n * 1024}')
        a.i(f'buffer_load_dwordx4 v{vD9 + n}, {WS}, s{sSrc} offen sc1 lds', tag='x')
    a.i(f's_add_u32 s{sSrc}, s{sSrc}, {UNIT}')
    a.i(f's_add_u32 s{sFn}, s{sFn}, 4')
    a.i(f's_add_u32 s28, s{sW9k}, {XB}')
    a.i(f's_cmp_eq_u32 s{sLb}, s{sW9k}')
    a.i(f's_cselect_b32 s{sLb}, s28, s{sW9k}')


def x_try(a, pfx):
    a.i(f's_mov_b32 s{sPre}, 0')
    a.i(f'v_cmp_eq_u32 vcc, 0, v{vFl}')
    a.i(f's_cmp_eq_u32 s{sS}, 63')
    a.i(f's_cbranch_scc1 {pfx}_notry', nohaz=True)
    a.i(f's_cbranch_vccnz {pfx}_notry', nohaz=True)
    lg = list(a.lg)
    x_dma(a)
    a.i(f's_mov_b32 s{sPre}, 1')
    a.label(f'{pfx}_notry')
    a.lg = lg


def x_block(a, code):
    l = spin_head(a, code)
    x_poll(a)
    a.i(f'v_cmp_eq_u32 vcc, 0, v{vFl}')
    a.i(f's_cbranch_vccnz {l}', nohaz=True)
    x_dma(a)


def x_next(a, pfx, code, late_publish, extra=()):
    a.i(f's_cmp_eq_u32 s{sPre}, 1')
    a.i(f's_cbranch_scc1 {pfx}_pre', nohaz=True)
    vm = list(a.vm)
    a.waitcnt(vm=0)
    late_publish()
    a.i(f's_mov_b64 s[{sPq}:{sPq + 1}], 0')
    a.i(f's_cmp_eq_u32 s{sS}, 63')
    a.i(f's_cbranch_scc1 {pfx}_done')
    x_block(a, code)
    a.waitcnt(vm=0)
    a.i(f's_branch {pfx}_go')
    a.out.append(f'{pfx}_pre:')
    a.vm = vm
    a.wait_tag('x')
    a.i(f's_mov_b64 s[{sPq}:{sPq + 1}], 1')
    a.label(f'{pfx}_go')
    a.i(f's_add_u32 s{sS}, s{sS}, 1')
    for r in (vXe, vXo) + tuple(extra):
        a.i(f'v_add_u32 v{r}, s{sDx}, v{r}')
    a.i(f's_sub_u32 s{sDx}, 0, s{sDx}')
    a.i(f's_branch {pfx}_loop')


def xread(a, dst, rt, j):
    a.i(f'ds_read_b128 {R(dst, 4)}, v{(vXe, vXo)[j & 1]} offset:{(j >> 1) * 128 + rt * 18432}')


def stage256(a, mats, gpitch, scol, W, qk_style):
    vq, a0, a1, aq, tA = 20, 21, 22, 23, 24
    sw = SWZ['p2', 'nat']
    dma_voff_pow2(a, vq, 16, gpitch, sw, 30, 31)
    a.i(f's_lshl_b32 s62, s{sW}, 2')

    def u_qk(t):
        a.i(f'v_and_b32 v{t}, 3, v0')
        a.i(f'v_add_u32 v{t}, s62, v{t}')

    def u_nat(add):
        def f(t):
            a.i(f'v_bfe_u32 v{t}, v0, 1, 1')
            a.i(f'v_add_u32 v{t}, s62, v{t}')
            if add:
                a.i(f'v_add_u32 v{t}, {add}, v{t}')
        return f

    def sub8(t):
        a.i(f'v_and_b32 v{t}, 1, v0')
        a.i(f'v_lshlrev_b32 v{t}, 3, v{t}')
    tr_addr(a, aq, 256, 'nat', sw, u_qk, None, 30, 31)
    tr_addr(a, a0, 256, 'nat', sw, u_nat(0), sub8, 30, 31)
    tr_addr(a, a1, 256, 'nat', sw, u_nat(2), sub8, 30, 31)
    ds = DsAddr(a, tA)
    chunks = [(m, h) for m in mats for h in range(2)]

    def issue(c):
        (m, karg, nb), h = chunks[c]
        srd(a, 8, karg, nb)
        for bi in range(9):
            for hh in range(2):
                dma(a, vq, WT, sW1k, (BUF0, BUF1)[c & 1] + bi * 8192 + hh * 4096, scol, (32 * (9 * h + bi) + 16 * hh) * gpitch)
    issue(0)
    issue(1)
    for c in range(len(chunks)):
        a.waitcnt(vm=18 if c + 1 < len(chunks) else 0)
        a.i('s_barrier')
        (m, _, _), h = chunks[c]
        for bi in range(9):
            for b in range(2):
                ar, o = (aq, 8 * b) if m in qk_style else ((a0, a1)[b], 0)
                tr_frag(a, ds, W[(m, b, 9 * h + bi)], ar, (BUF0, BUF1)[c & 1] + bi * 8192 + o, 256, 'nat')
        a.barrier()
        if c + 2 < len(chunks):
            issue(c + 2)


def proj(a, stamps=False):
    a.label('L_proj')
    rt_stamp(a, stamps, 0)
    arrive(a)
    W = {}
    for m in 'kvq':
        for j in range(18):
            for b in range(2):
                W[(m, b, j)] = 80 + 4 * len(W)
    a.i(f's_lshl_b32 s{sW1k}, s{sW}, 10')
    a.i(f's_mul_i32 s{sW9k}, s{sW}, 9216')
    a.i(f's_lshl_b32 s61, s{sIDX}, 8')
    nb = 576 * 4096 * 2
    stage256(a, [('k', K_WK, nb), ('v', K_WV, nb), ('q', K_WQ, nb)], 8192, 61, W, 'qk')
    x_setup(a, NA, F_NA, 30, 31, 32)
    a.i(f's_mul_i32 s{sOut}, s{sL}, {64 * QKV_UNIT}')
    a.i(f's_mul_i32 s28, s{sIDX}, 24576')
    a.i(f's_add_u32 s{sOut}, s{sOut}, s28')
    a.i(f's_lshl_b32 s28, s{sW}, 11')
    a.i(f's_add_u32 s{sOut}, s{sOut}, s28')
    a.i(f's_add_u32 s{sOut}, s{sOut}, {QKV}')
    a.i(f's_lshl_b32 s{sFp}, s{sIDX}, 11')
    a.i(f's_lshl_b32 s28, s{sW}, 9')
    a.i(f's_add_u32 s{sFp}, s{sFp}, s28')
    a.i(f's_lshl_b32 s28, s{sL}, 8')
    a.i(f's_add_u32 s{sFp}, s{sFp}, s28')
    a.i(f's_add_u32 s{sFq}, s{sFp}, {F_Q - 4}')
    a.i(f's_add_u32 s{sFp}, s{sFp}, {F_KV}')
    wait_init(a, 30)
    rt_stamp(a, stamps, 1, 30)
    x_block(a, 5)
    a.waitcnt(vm=0)
    KA, VA, QA, RG = 16, 32, 48, 64
    a.label('L_proj_loop')
    a.i('s_barrier')
    stamp(a, stamps, 0)
    x_poll(a)
    r1 = [RG, RG + 4, RG + 8, RG + 12, QA, QA + 4]
    for n in range(6):
        xread(a, r1[n], n & 1, n >> 1)
    r2 = [RG, RG + 4, RG + 8, RG + 12, KA + 4, KA + 12]
    for j in range(18):
        for rt in range(2):
            n = 2 * j + rt
            x = r1[n % 6]
            for b in range(2):
                acc = KA + 8 * rt + 4 * b
                a.mfma(acc, W[('k', b, j)], x, None if j == 0 else acc)
                acc = VA + 8 * b + 4 * rt
                a.mfma(acc, x, W[('v', b, j)], None if j == 0 else acc)
            if n + 6 < 36:
                xread(a, x, (n + 6) & 1, (n + 6) >> 1)
            elif x in r2[:4]:
                m = r2.index(x)
                xread(a, x, m & 1, m >> 1)
        if j == 6:
            a.waitcnt(vm=0)
            a.i(f's_mov_b64 exec, s[{sPq}:{sPq + 1}]')
            a.i(f'buffer_store_dword v{vXo}, off, {WS}, s{sFq} sc1')
            a.vm.pop()
            a.i('s_mov_b64 exec, -1')
            a.i(f's_add_u32 s{sFq}, s{sFq}, 4')
            x_try(a, 'L_proj')
    stamp(a, stamps, 1)
    pend = []
    a.i(f's_add_u32 s60, s{sOut}, 8192')
    a.i(f's_add_u32 s61, s{sOut}, 16384')
    for gi, (base, so) in enumerate(((KA, 60), (KA + 8, 60), (VA, 61), (VA + 8, 61))):
        for x in range(4):
            pend.append(f'v_cvt_pk_bf16_f32 v{base + x}, v{base + 2 * x}, v{base + 2 * x + 1}')
        pend.append(f'buffer_store_dwordx4 {R(base, 4)}, v{vLn}, {WS}, s{so} offen offset:{(gi & 1) * 1024} sc1')
        if gi == 1:
            pend.append(('rd', 4))
            pend.append(('rd', 5))
    for n in range(36):
        j, rt = n >> 1, n & 1
        x = r2[n % 6]
        for b in range(2):
            acc = QA + 8 * rt + 4 * b
            a.mfma(acc, W[('q', b, j)], x, None if j == 0 else acc)
            if n >= 1:
                for _ in range(2):
                    if pend:
                        p = pend.pop(0)
                        if isinstance(p, tuple):
                            xread(a, r2[p[1]], p[1] & 1, p[1] >> 1)
                        else:
                            a.i(p, tag='kv')
        if n + 6 < 36:
            xread(a, x, (n + 6) & 1, (n + 6) >> 1)
        if n == 32:
            a.wait_tag('kv')
            publish(a, sFp)
            a.i(f's_add_u32 s{sFp}, s{sFp}, 4')
    for rt in range(2):
        base = QA + 8 * rt
        for x in range(4):
            a.i(f'v_cvt_pk_bf16_f32 v{base + x}, v{base + 2 * x}, v{base + 2 * x + 1}')
        a.i(f'buffer_store_dwordx4 {R(base, 4)}, v{vLn}, {WS}, s{sOut} offen offset:{rt * 1024} sc1')
    a.i(f's_add_u32 s{sOut}, s{sOut}, {QKV_UNIT}')
    stamp(a, stamps, 2)
    stamp_flush(a, stamps, 3, sS, KA)
    x_next(a, 'L_proj', 6, lambda: publish(a, sFq))
    a.label('L_proj_done')
    rt_stamp(a, stamps, 2, 30)
    a.i('s_endpgm')


def ln_init(a):
    X, F, t = 16, 64, 140
    srd(a, 12, K_X, 2048 * 1152)
    a.i(f's_lshl_b32 s60, s{sL}, 5')
    a.i(f's_add_u32 s60, s60, s{sIDX}')
    a.i(f's_mul_i32 s61, s60, {UNIT}')
    a.i(f's_add_u32 s61, s61, s{sW9k}')
    a.i(f'v_lshrrev_b32 v{t}, 3, v0')
    a.i(f'v_mul_u32_u24 v{t}, 1152, v{t}')
    a.i(f'v_and_b32 v{t + 1}, 7, v0')
    a.i(f'v_lshl_add_u32 v{t}, v{t + 1}, 4, v{t}')
    for i in range(9):
        a.i(f'buffer_load_dwordx4 {R(X + 4 * i, 4)}, v{t}, {IO}, s61 offen offset:{i * 128}')
    for d in range(36):
        a.i(f'v_lshlrev_b32 v{F + 2 * d}, 16, v{X + d}')
        a.i(f'v_and_b32 v{F + 2 * d + 1}, 0xffff0000, v{X + d}')
    s_, q_ = t + 2, t + 3

    def red(r):
        for m in ('quad_perm:[1,0,3,2]', 'quad_perm:[2,3,0,1]', 'row_half_mirror'):
            a.i(f'v_add_f32_dpp v{r}, v{r}, v{r} {m} row_mask:0xf bank_mask:0xf')
    a.i(f'v_add_f32 v{s_}, v{F}, v{F + 1}')
    for d in range(2, 72):
        a.i(f'v_add_f32 v{s_}, v{s_}, v{F + d}')
    red(s_)
    a.i(f'v_mul_f32 v{s_}, {hex(f2u(1 / 576))}, v{s_}')
    for d in range(72):
        a.i(f'v_sub_f32 v{F + d}, v{F + d}, v{s_}')
    a.i(f'v_mul_f32 v{q_}, v{F}, v{F}')
    for d in range(1, 72):
        a.i(f'v_fmac_f32 v{q_}, v{F + d}, v{F + d}')
    red(q_)
    a.i(f'v_mov_b32 v{s_}, {hex(f2u(1e-5))}')
    a.i(f'v_fmac_f32 v{s_}, {hex(f2u(1 / 576))}, v{q_}')
    a.i(f'v_rsq_f32 v{s_}, v{s_}')
    for d in range(72):
        a.i(f'v_mul_f32 v{F + d}, v{F + d}, v{s_}')
    for d in range(36):
        a.i(f'v_cvt_pk_bf16_f32 v{X + d}, v{F + 2 * d}, v{F + 2 * d + 1}')
    a.i(f's_add_u32 s61, s61, {NA}')
    for i in range(9):
        a.i(f'buffer_store_dwordx4 {R(X + 4 * i, 4)}, v{t}, {WS}, s61 offen offset:{i * 128} sc1')
    wait_init(a, t + 1)
    a.i(f'v_and_b32 v{t}, 15, v0')
    a.i(f'v_lshlrev_b32 v{t}, 9, v{t}')
    a.i(f's_lshl_b32 s61, s{sW}, 13')
    a.i('s_lshl_b32 s60, s60, 2')
    a.i('s_add_u32 s61, s61, s60')
    a.i(f'v_mov_b32 v{t + 1}, 1')
    a.i('s_mov_b64 exec, 0xffff')
    a.i(f'buffer_store_dword v{t + 1}, v{t}, {WS}, s61 offen offset:{F_NA} sc1')
    a.i('s_mov_b64 exec, -1')


def geglu(g, u, t, vc0, sc1):
    return [f'v_mul_f32 v{t}, v{g}, v{g}',
            f'v_fma_f32 v{t}, v{t}, s{sc1}, v{vc0}',
            f'v_mul_f32 v{t}, v{t}, v{g}',
            f'v_exp_f32 v{t}, v{t}',
            f'v_mul_f32 v{g}, v{g}, v{u}',
            f'v_add_f32 v{t}, 1.0, v{t}',
            f'v_rcp_f32 v{t}, v{t}',
            f'v_mul_f32 v{g}, v{g}, v{t}']


def up(a, stamps=False):
    a.label('L_up')
    rt_stamp(a, stamps, 0)
    arrive(a)
    a.i(f's_lshl_b32 s{sW1k}, s{sW}, 10')
    a.i(f's_mul_i32 s{sW9k}, s{sW}, 9216')
    ln_init(a)
    W = {}
    for m in 'gu':
        for j in range(18):
            for b in range(2):
                W[(m, b, j)] = 152 + 4 * len(W)
        for i in range(9):
            W[(m, 'x', i)] = 152 + 4 * len(W)
    assert 152 + 4 * len(W) == 512
    a.i(f's_mul_i32 s61, s{sIDX}, 288')
    nb = 576 * 4608 * 2
    stage256(a, [('g', K_WG, nb), ('u', K_WU, nb)], 9216, 61, W, '')
    a.i('v_lshrrev_b32 v20, 1, v0')
    a.i('v_mul_u32_u24 v20, 9216, v20')
    a.i('v_and_b32 v21, 1, v0')
    a.i('v_lshl_add_u32 v20, v21, 4, v20')
    a.i(f's_lshr_b32 s62, s{sW}, 1')
    a.i(f's_mul_i32 s62, s62, {288 * 9216}')
    a.i('s_add_u32 s61, s61, s62')
    a.i(f's_mul_i32 s60, s{sW}, 18432')
    for mi, karg in enumerate((K_WG, K_WU)):
        srd(a, 8, karg, nb)
        for i in range(9):
            dma(a, 20, WT, 60, mi * 9216 + i * 1024, 61, 256 + i * 32 * 9216)
    bits(a, 21, 0, [(0, 15, 3), (4, 3, 8)], 22)
    a.i('v_add_u32 v21, s60, v21')
    a.waitcnt(vm=0)
    for mi, m in enumerate('gu'):
        for i in range(9):
            if mi * 9216 + i * 1024 >= 0:
                for h in range(2):
                    a.i(f'ds_read_b64_tr_b16 {R(W[(m, "x", i)] + 2 * h, 2)}, v21 offset:{mi * 9216 + i * 1024 + h * 128}')
    a.barrier()
    vE0, vE1, vEx, vEr, vHs, vC0 = 15, 16, 17, 18, 19, 20
    sC1, sOx = 42, 43
    a.i(f'v_lshlrev_b32 v{vHs}, 4, v0')
    x_setup(a, NB, F_NB, 30, 31, 32)
    a.i(f's_and_b32 s60, s{sW}, 1')
    a.i('s_mul_i32 s60, s60, 18432')
    a.i(f's_cmp_ge_u32 s{sW}, 2')
    a.i('s_cselect_b64 vcc, -1, 0')
    a.i(f'v_add_u32 v30, 512, v{vXo}')
    a.i(f'v_add_u32 v31, 640, v{vXe}')
    a.i(f'v_cndmask_b32 v{vE0}, v{vXe}, v30, vcc')
    a.i(f'v_cndmask_b32 v{vE1}, v{vXo}, v31, vcc')
    a.i(f'v_add_u32 v{vE0}, s60, v{vE0}')
    a.i(f'v_add_u32 v{vE1}, s60, v{vE1}')
    a.i(f's_cselect_b32 s60, {OOB}, 0')
    a.i(f'v_add_u32 v{vHs}, s60, v{vHs}')
    EXO = 2 * UNIT
    a.i(f's_lshl_b32 s60, s{sW}, 11')
    a.i(f's_add_u32 s61, s60, {EXO}')
    a.i(f'v_add_u32 v{vEx}, s61, v{vLn}')
    a.i('s_xor_b32 s60, s60, 4096')
    a.i(f's_add_u32 s61, s60, {EXO}')
    a.i(f'v_add_u32 v{vEr}, s61, v{vLn}')
    c0 = -2 * math.sqrt(2 / math.pi) * math.log2(math.e)
    a.i(f'v_mov_b32 v{vC0}, {hex(f2u(c0))}')
    a.i(f's_mov_b32 s{sC1}, {hex(f2u(c0 * 0.044715))}')
    a.i(f's_mul_i32 s{sOut}, s{sL}, {64 * H_UNIT}')
    a.i(f's_add_u32 s{sOut}, s{sOut}, {HB}')
    a.i(f's_lshr_b32 s28, s{sIDX}, 1')
    a.i('s_mul_i32 s28, s28, 9216')
    a.i(f's_add_u32 s{sOut}, s{sOut}, s28')
    a.i(f's_and_b32 s60, s{sIDX}, 1')
    a.i(f's_and_b32 s61, s{sW}, 1')
    a.i(f's_mul_i32 s61, s61, {144 * 1024}')
    a.i(f's_add_u32 s{sOx}, s{sOut}, s61')
    a.i('s_lshl_b32 s61, s60, 3')
    a.i(f's_add_u32 s{sOx}, s{sOx}, s61')
    a.i(f's_add_u32 s{sOx}, s{sOx}, 8192')
    a.i('s_lshl_b32 s60, s60, 12')
    a.i(f's_add_u32 s{sOut}, s{sOut}, s60')
    a.i(f's_add_u32 s{sOut}, s{sOut}, s{sW1k}')
    a.i(f's_lshl_b32 s{sFq}, s{sIDX}, 11')
    a.i(f's_lshl_b32 s28, s{sW}, 9')
    a.i(f's_add_u32 s{sFq}, s{sFq}, s28')
    a.i(f's_lshl_b32 s28, s{sL}, 8')
    a.i(f's_add_u32 s{sFq}, s{sFq}, s28')
    a.i(f's_add_u32 s{sFq}, s{sFq}, {F_H - 4}')
    rt_stamp(a, stamps, 1, 30)
    x_block(a, 7)
    a.waitcnt(vm=0)
    ACC, XA, XP, TM, RG = 24, 56, 64, 72, 88
    a.label('L_up_loop')
    a.i('s_barrier')
    stamp(a, stamps, 0)
    x_poll(a)
    er = [RG + 4 * i for i in range(9)]
    for i in range(9):
        a.i(f'ds_read_b128 {R(er[i], 4)}, v{(vE0, vE1)[i & 1]} offset:{(i >> 1) * 128}')
    ring = [RG + 36 + 4 * i for i in range(5)]
    for n in range(5):
        xread(a, ring[n], 0, n)
    for i in range(9):
        a.mfma(XA, W[('g', 'x', i)], er[i], None if i == 0 else XA)
        a.mfma(XA + 4, W[('u', 'x', i)], er[i], None if i == 0 else XA + 4)
    pend = []

    def inter(lists):
        out = []
        for k in range(8):
            for l in lists:
                out.append(l[k])
        return out
    for n in range(36):
        rt, j = divmod(n, 18)
        x = ring[n % 5]
        for mi, m in enumerate('gu'):
            for b in range(2):
                acc = ACC + 16 * rt + 8 * mi + 4 * b
                a.mfma(acc, W[(m, b, j)], x, None if j == 0 else acc)
                for _ in range(2):
                    if pend:
                        a.i(pend.pop(0), tag='h')
        if n + 5 < 36:
            xread(a, x, (n + 5) // 18, (n + 5) % 18)
        if n == 1:
            a.i(f'ds_write_b128 v{vEx}, {R(XA, 4)}', tag='ex')
            a.i(f'ds_write_b128 v{vEx}, {R(XA + 4, 4)} offset:1024', tag='ex')
        if n == 4:
            a.wait_tag('ex')
            a.i('s_barrier')
            a.i(f'ds_read_b128 {R(XP, 4)}, v{vEr}')
            a.i(f'ds_read_b128 {R(XP + 4, 4)}, v{vEr} offset:1024')
        if n == 6:
            pend += [f'v_add_f32 v{XA + k}, v{XA + k}, v{XP + k}' for k in range(8)]
            pend += inter([geglu(XA + k, XA + 4 + k, TM + k, vC0, sC1) for k in range(4)])
            pend += [f'v_cvt_pk_bf16_f32 v{XA}, v{XA}, v{XA + 1}', f'v_cvt_pk_bf16_f32 v{XA + 1}, v{XA + 2}, v{XA + 3}',
                     f'buffer_store_dwordx2 {R(XA, 2)}, v{vHs}, {WS}, s{sOx} offen sc1']
        if n == 5:
            a.waitcnt(vm=0)
            a.i(f's_mov_b64 exec, s[{sPq}:{sPq + 1}]')
            a.i(f'buffer_store_dword v{vXo}, off, {WS}, s{sFq} sc1')
            a.vm.pop()
            a.i('s_mov_b64 exec, -1')
            a.i(f's_add_u32 s{sFq}, s{sFq}, 4')
            x_try(a, 'L_up')
        if n == 19:
            pend += inter([geglu(ACC + k, ACC + 8 + k, TM + k, vC0, sC1) for k in range(8)])
            pend += [f'v_cvt_pk_bf16_f32 v{ACC + k}, v{ACC + 2 * k}, v{ACC + 2 * k + 1}' for k in range(4)]
            pend += [f'buffer_store_dwordx4 {R(ACC, 4)}, v{vLn}, {WS}, s{sOut} offen sc1']
    assert not pend
    stamp(a, stamps, 1)
    A1 = ACC + 16
    a.i(f's_add_u32 s60, s{sOut}, {144 * 1024}')
    a.i(f's_add_u32 s{sOut}, s{sOut}, {H_UNIT}')
    a.i(f's_add_u32 s{sOx}, s{sOx}, {H_UNIT}')
    for p in inter([geglu(A1 + k, A1 + 8 + k, TM + k, vC0, sC1) for k in range(8)]):
        a.i(p)
    for k in range(4):
        a.i(f'v_cvt_pk_bf16_f32 v{A1 + k}, v{A1 + 2 * k}, v{A1 + 2 * k + 1}')
    a.i(f'buffer_store_dwordx4 {R(A1, 4)}, v{vLn}, {WS}, s60 offen sc1')
    stamp(a, stamps, 2)
    stamp_flush(a, stamps, 3, sS, TM)
    x_next(a, 'L_up', 8, lambda: publish(a, sFq), extra=(vE0, vE1))
    a.label('L_up_done')
    rt_stamp(a, stamps, 2, 30)
    a.i('s_endpgm')
```

```python
import sys
from common import *
from chain import chain

NAME = 'interleave_layers__memory_aug_recurrent_mem_tr__glu_gated_geglu__prompt'


def build(enabled=('chain', 'proj', 'att', 'up', 'down'), stamps=False, noflagzero=False):
    a = Asm()
    hdr = open(f'cdna_kernels/{NAME}.s.ref').read().split('; Override launch')[0]
    a.raw(hdr.rstrip())
    a.raw('; @launch grid=(256,1,1) block=(256,1,1) lds=163840')
    a.raw('.amdgcn_target "amdgcn-amd-amdhsa--gfx950"')
    a.raw('.text')
    a.raw(f'.globl {NAME}_kernel')
    a.raw('.p2align 8')
    a.raw(f'.type {NAME}_kernel,@function')
    a.raw(f'{NAME}_kernel:')
    roles = {r: (f'L_{r}' if r in enabled else 'L_spare') for r in ('chain', 'proj', 'att', 'up', 'down')}
    prologue(a, roles)
    if noflagzero:
        a.out = [l for l in a.out if 'buffer_store_dwordx2 v[6:7], v4' not in l]
    if 'chain' in enabled:
        chain(a, stamps)
    try:
        import workers
        for r in ('proj', 'att', 'up', 'down'):
            if r in enabled:
                getattr(workers, r)(a, stamps)
    except ImportError:
        pass
    a.raw('.section .rodata,"a"')
    a.raw('.p2align 6')
    a.raw(f'.amdhsa_kernel {NAME}_kernel')
    for l in ('next_free_vgpr 512', 'next_free_sgpr 102', 'accum_offset 256', 'group_segment_fixed_size 0',
              'kernarg_size 112', 'user_sgpr_count 2', 'user_sgpr_kernarg_segment_ptr 1',
              'system_sgpr_workgroup_id_x 1', 'float_denorm_mode_32 3'):
        a.raw('  .amdhsa_' + l)
    a.raw('.end_amdhsa_kernel')
    return a


if __name__ == '__main__':
    out = sys.argv[1]
    en = sys.argv[2].split(',') if len(sys.argv) > 2 and sys.argv[2] != 'all' else ('chain', 'proj', 'att', 'up', 'down')
    opts = sys.argv[3:]
    a = build(en, stamps='stamps' in opts, noflagzero='nozero' in opts)
    open(out, 'w').write(a.text())
    print('instructions:', a.ninst, 'bytes of text:', len(a.text()))
```

```python
import re

_REG = re.compile(r'^(-|abs\()?([vas])(?:(\d+)|\[(\d+):(\d+)\])\)?$')
TRANS = ('v_exp_f32', 'v_log_f32', 'v_rcp_f32', 'v_rsq_f32', 'v_sqrt_f32', 'v_sin_f32', 'v_cos_f32')


def regs_of(tok):
    tok = tok.strip()
    if tok == 'vcc':
        return {('s', 106), ('s', 107)}
    if tok == 'exec':
        return {('s', 126), ('s', 127)}
    if tok in ('vcc_lo', 'vcc_hi', 'exec_lo', 'exec_hi', 'm0'):
        return {('s', {'vcc_lo': 106, 'vcc_hi': 107, 'exec_lo': 126, 'exec_hi': 127, 'm0': 124}[tok])}
    m = _REG.match(tok)
    if not m:
        return set()
    k = m.group(2)
    lo = int(m.group(3) if m.group(3) is not None else m.group(4))
    hi = int(m.group(3) if m.group(3) is not None else m.group(5))
    if k == 'a':
        return {('v', 256 + i) for i in range(lo, hi + 1)}
    return {(k, i) for i in range(lo, hi + 1)}


def R(n, cnt=1):
    k, b = ('v', n) if n < 256 else ('a', n - 256)
    assert b + cnt <= 256, (n, cnt)
    return f'{k}{b}' if cnt == 1 else f'{k}[{b}:{b + cnt - 1}]'


def S(n, cnt=1):
    return f's{n}' if cnt == 1 else f's[{n}:{n + cnt - 1}]'


class Ins:
    def __init__(self, text):
        self.text = text
        t = text.split(';')[0].strip()
        p = t.split(None, 1)
        self.op = p[0]
        rest = p[1] if len(p) > 1 else ''
        ops = [o.strip() for o in rest.split(',')] if rest else []
        self.mods = []
        if ops:
            last = ops[-1].split()
            ops[-1] = last[0]
            self.mods = last[1:]
        clean = []
        for o in ops:
            if ' ' in o:
                w = o.split()
                clean.append(w[0])
                self.mods += w[1:]
                break
            clean.append(o)
        self.ops = clean
        op = self.op
        rs = [regs_of(o) for o in self.ops]
        U = lambda l: set().union(*l) if l else set()
        self.kind = 'other'
        self.w, self.r = set(), set()
        self.srcC = set()
        self.srcAB = set()
        if op.startswith('v_mfma'):
            self.kind = 'mfma'
            self.w = rs[0]
            self.srcAB = rs[1] | rs[2]
            self.srcC = rs[3]
            self.r = self.srcAB | self.srcC
        elif op.startswith('v_'):
            self.kind = 'valu'
            if 'permlane' in op and 'swap' in op:
                self.w = rs[0] | rs[1]
                self.r = rs[0] | rs[1]
            else:
                self.w = rs[0]
                self.r = U(rs[1:])
                if op.startswith(('v_fmac', 'v_dot2c', 'v_pk_fmac')) or '_dpp' in op:
                    self.r |= rs[0]
        elif op.startswith('ds_'):
            self.kind = 'ds'
            if op.startswith(('ds_read', 'ds_bpermute', 'ds_swizzle')):
                self.w = rs[0]
                self.r = U(rs[1:])
            else:
                self.r = U(rs)
        elif op.startswith('buffer_'):
            self.kind = 'vmem'
            if op.startswith('buffer_load') and 'lds' not in self.mods:
                self.w = rs[0]
                self.r = U(rs[1:])
            else:
                self.r = U(rs)
                if op.startswith('buffer_atomic') and 'sc0' in self.mods:
                    self.w = rs[0]
                if 'lds' in self.mods:
                    self.r |= {('s', 124)}
        elif op.startswith('s_'):
            self.kind = 'salu'
            if op.startswith(('s_cmp', 's_bitcmp', 's_cbranch', 's_branch', 's_waitcnt', 's_nop', 's_barrier',
                              's_sleep', 's_setprio', 's_endpgm')):
                self.r = U(rs)
            else:
                self.w = rs[0] if rs else set()
                self.r = U(rs[1:])
        self.states = 1
        if op == 's_nop':
            self.states = int(self.ops[0]) + 1


def need(p, c):
    n = 0
    pv = {x for x in p.w if x[0] == 'v'}
    ps = {x for x in p.w if x[0] == 's'}
    if p.kind == 'valu':
        if c.kind == 'mfma' and pv & c.r:
            n = max(n, 2)
        if c.kind == 'valu':
            if pv & c.r:
                if 'permlane' in c.op or '_dpp' in c.op:
                    n = max(n, 2)
                if c.op.startswith(('v_readlane', 'v_readfirstlane')):
                    n = max(n, 1)
                if p.op.startswith(TRANS):
                    n = max(n, 1)
            if ps & c.r:
                n = max(n, 4 if c.op.startswith(('v_readlane', 'v_writelane')) else 2)
        if c.kind == 'vmem' and ps & c.r:
            n = max(n, 5)
        if c.kind in ('ds', 'vmem') and p.op.startswith(TRANS) and pv & c.r:
            n = max(n, 1)
        if c.kind == 'salu' and ps & c.r:
            n = max(n, 1)
    if p.kind == 'mfma':
        x = 4 if '32x32' in p.op else 0
        if c.kind == 'mfma':
            if pv & c.srcAB:
                n = max(n, 8 + x)
            if pv & c.srcC and pv != c.srcC:
                n = max(n, 6 + x)
            if pv & c.w and pv != c.srcC:
                n = max(n, 6 + x)
        elif c.kind in ('valu', 'ds', 'vmem'):
            if pv & (c.r | c.w):
                n = max(n, 8 + x)
            if p.srcC & c.w:
                n = max(n, 3 + x)
    if p.kind == 'vmem' and p.op.startswith(('buffer_store_dwordx4', 'buffer_store_dwordx3')):
        data = regs_of(p.ops[0])
        if data & c.w:
            n = max(n, 2)
    if p.kind == 'salu' and ('s', 124) in p.w and c.kind == 'vmem' and 'lds' in c.mods:
        n = max(n, 1)
    return n


def worst(p):
    if p.kind == 'mfma':
        return 12 if '32x32' in p.op else 8
    if p.kind == 'valu':
        return 5 if any(x[0] == 's' for x in p.w) else 2
    if p.kind == 'vmem' and p.op.startswith('buffer_store'):
        return 2
    if p.kind == 'salu' and ('s', 124) in p.w:
        return 1
    return 0


class Asm:
    def __init__(self):
        self.out = []
        self.hist = []
        self.vm = []
        self.lg = []
        self.uid = 0
        self.ninst = 0

    def raw(self, s):
        self.out.append(s)

    def c(self, s):
        self.out.append('    ; ' + s)

    def _emit(self, ins):
        self.out.append('    ' + ins.text)
        self.hist.append(ins)
        self.ninst += 1
        if len(self.hist) > 16:
            self.hist.pop(0)

    def _pad(self, fn):
        d = 0
        req = 0
        for p in reversed(self.hist):
            req = max(req, fn(p) - d)
            d += p.states
            if d >= 13:
                break
        if req > 0:
            self._emit(Ins(f's_nop {req - 1}'))

    def _cnt(self, q, pred):
        for i in range(len(q) - 1, -1, -1):
            if pred(q[i]):
                return len(q) - 1 - i
        return None

    def waitcnt(self, vm=None, lg=None):
        parts = []
        if vm is not None:
            vm = min(vm, 63)
            parts.append(f'vmcnt({vm})')
            self.vm = self.vm[len(self.vm) - vm:] if vm < len(self.vm) and vm > 0 else ([] if vm == 0 else self.vm)
        if lg is not None:
            lg = min(lg, 15)
            parts.append(f'lgkmcnt({lg})')
            self.lg = self.lg[len(self.lg) - lg:] if lg < len(self.lg) and lg > 0 else ([] if lg == 0 else self.lg)
        self._emit(Ins('s_waitcnt ' + ' '.join(parts)))

    def wait_tag(self, tag):
        v = self._cnt(self.vm, lambda e: tag in e[1])
        l = self._cnt(self.lg, lambda e: tag in e[1])
        if v is not None or l is not None:
            self.waitcnt(v, l)

    def i(self, text, tag=None, nohaz=False):
        ins = Ins(text)
        assert ins.op != 's_waitcnt', 'use waitcnt()'
        touched = ins.r | ins.w
        v = self._cnt(self.vm, lambda e: e[0] & touched)
        l = self._cnt(self.lg, lambda e: e[0] & touched)
        if v is not None or l is not None:
            self.waitcnt(v, l)
        if ins.op.startswith(('s_cbranch', 's_branch')) and not nohaz:
            self._pad(lambda p: max(worst(p) - 1, need(p, ins)))
        else:
            self._pad(lambda p: need(p, ins))
        self._emit(ins)
        tg = {tag} if tag else set()
        if ins.kind == 'vmem':
            self.vm.append((set(ins.w), tg))
        elif ins.kind == 'ds':
            self.lg.append((set(ins.w), tg))
        elif ins.op.startswith(('s_load', 's_memrealtime', 's_memtime')):
            self.lg.append((set(ins.w), tg | {'smem'}))
            vm = self.vm
            self.join()
            self.vm = vm

    def join(self):
        for name in ('vm', 'lg'):
            q = getattr(self, name)
            if q:
                regs = set().union(*[e[0] for e in q])
                tags = set().union(*[e[1] for e in q])
                setattr(self, name, [(regs, tags)])

    def join_vm_tag(self, tag):
        regs = set().union(*[e[0] for e in self.vm]) if self.vm else set()
        tags = set().union(*[e[1] for e in self.vm]) if self.vm else set()
        self.vm = [(regs, tags | {tag})]

    def label(self, name):
        self.join()
        self.out.append(name + ':')

    def new(self, p='L'):
        self.uid += 1
        return f'{p}_{self.uid}'

    def barrier(self, lg=0):
        if lg is not None and self.lg:
            self.waitcnt(lg=lg)
        self.i('s_barrier')

    def prof(self, marks):
        self.pm, self.pk = list(marks), 0

    def mfma(self, d, a, b, c, k=32):
        if getattr(self, 'pm', None) is not None:
            if self.pk in self.pm:
                ix = self.pm.index(self.pk)
                self._emit(Ins(f's_memtime s[{80 + 2 * ix}:{81 + 2 * ix}]'))
            self.pk += 1
        if k == 'big':
            self.i(f'v_mfma_f32_32x32x16_bf16 {R(d, 16)}, {R(a, 4)}, {R(b, 4)}, {"0" if c is None else R(c, 16)}')
            return
        n = 4 if k == 32 else 2
        cs = '0' if c is None else R(c, 4)
        self.i(f'v_mfma_f32_16x16x{k}_bf16 {R(d, 4)}, {R(a, n)}, {R(b, n)}, {cs}')

    def text(self):
        return '\n'.join(self.out) + '\n'
```

```python
from asmlib import *
from layout import *

WS = 's[4:7]'
WT = 's[8:11]'
IO = 's[12:15]'
DBG = 's[16:19]'
sW, sIDX, sGID, sTO = 20, 21, 22, 23
sL = 24
TIMEOUT = 1 << 15
BUF0, BUF1 = 0, 73728


def srd(a, base, karg, nbytes):
    a.i(f's_load_dwordx2 s[{base}:{base + 1}], s[0:1], {karg}')
    a.i(f's_mov_b32 s{base + 2}, {nbytes}')
    a.i(f's_mov_b32 s{base + 3}, 0x20000')
    a.waitcnt(lg=0)


def prologue(a, roles):
    a.i(f's_load_dwordx2 s[4:5], s[0:1], {K_WS}')
    a.i(f's_load_dwordx2 s[16:17], s[0:1], {K_DBG}')
    a.i(f's_load_dwordx2 s[8:9], s[0:1], {K_WQ}')
    a.i(f's_load_dwordx2 s[12:13], s[0:1], {K_X}')
    a.i('s_getreg_b32 s25, hwreg(HW_REG_XCC_ID)')
    a.i('s_and_b32 s25, s25, 7')
    a.i('v_lshrrev_b32 v1, 6, v0')
    a.i(f'v_readfirstlane_b32 s{sW}, v1')
    a.i(f's_mov_b32 s6, {WS_BYTES}')
    a.i('s_mov_b32 s7, 0x20000')
    a.i('s_mov_b32 s10, 0')
    a.i('s_mov_b32 s11, 0x20000')
    a.i('s_mov_b32 s14, 0')
    a.i('s_mov_b32 s15, 0x20000')
    a.i('s_mov_b32 s18, 256')
    a.i('s_mov_b32 s19, 0x20000')
    a.i('v_lshlrev_b32 v4, 3, v0')
    a.i('v_and_b32 v0, 63, v0')
    a.i('v_mov_b32 v2, 1')
    a.i('s_lshl_b32 s26, s25, 5')
    a.i('v_mov_b32 v3, s26')
    a.i('v_mov_b32 v5, 0')
    a.waitcnt(lg=0)
    a.i(f's_cmp_lg_u32 s{sW}, 0')
    a.i('s_cbranch_scc1 L_tick_done')
    a.i('s_mov_b64 exec, 1')
    a.i(f'buffer_atomic_add v2, v3, {DBG}, 0 offen sc0 sc1')
    a.i('ds_write_b32 v5, v2')
    a.i('s_mov_b64 exec, -1')
    a.label('L_tick_done')
    a.waitcnt(vm=0, lg=0)
    a.i('s_barrier')
    a.i('ds_read_b32 v2, v5')
    a.i('v_readfirstlane_b32 s27, v2')
    a.i('s_cmp_ge_u32 s27, 32')
    a.i('s_cbranch_scc1 L_exit')
    a.i(f's_add_u32 s{sGID}, s26, s27')
    a.i('s_barrier')
    a.i('v_mov_b32 v6, 0')
    a.i('v_mov_b32 v7, 0')
    a.i(f's_lshl_b32 s28, s{sGID}, 11')
    a.i(f'buffer_store_dwordx2 v[6:7], v4, {WS}, s28 offen sc1')
    a.i(f's_and_b32 s{sL}, s25, 1')
    a.i('s_lshr_b32 s25, s25, 1')
    a.i(f's_mov_b32 s{sIDX}, s27')
    a.i('s_cmp_eq_u32 s25, 0')
    a.i(f's_cbranch_scc1 {roles["chain"]}')
    a.i('s_bitcmp1_b32 s27, 0')
    a.i('s_cbranch_scc1 L_disp_odd')
    a.i(f's_lshr_b32 s{sIDX}, s27, 1')
    a.i('s_cmp_eq_u32 s25, 1')
    a.i(f's_cbranch_scc1 {roles["oproj"]}')
    a.i('s_cmp_eq_u32 s25, 2')
    a.i(f's_cbranch_scc1 {roles["down"]}')
    a.i(f's_lshr_b32 s{sIDX}, s27, 2')
    a.i('s_bitcmp0_b32 s27, 1')
    a.i(f's_cbranch_scc1 {roles["atn"]}')
    a.i(f's_add_u32 s{sIDX}, s{sIDX}, 24')
    a.i(f's_branch {roles["proj"]}')
    a.label('L_disp_odd')
    a.i('s_lshl_b32 s28, s25, 3')
    a.i(f's_lshr_b32 s{sIDX}, s27, 2')
    a.i(f's_add_u32 s{sIDX}, s{sIDX}, s28')
    a.i(f's_sub_u32 s{sIDX}, s{sIDX}, 8')
    a.i('s_bitcmp1_b32 s27, 1')
    a.i(f's_cbranch_scc1 {roles["proj"]}')
    a.i(f's_branch {roles["up"]}')
    a.label('L_spare')
    arrive(a)
    a.label('L_exit')
    a.i('s_endpgm')
    a.label('L_abort')
    a.i('s_mov_b64 exec, 1')
    a.i(f's_lshl_b32 s28, s{sGID}, 8')
    a.i('s_or_b32 s29, s29, s28')
    a.i(f's_lshl_b32 s28, s{sW}, 16')
    a.i('s_or_b32 s29, s29, s28')
    a.i('s_or_b32 s29, s29, 0x40000000')
    a.i('v_mov_b32 v2, s29')
    a.i(f'buffer_store_dword v2, off, {DBG}, 0 offset:20 sc1')
    a.i('s_endpgm')


def arrive(a, v=2):
    l = a.new('L_arr')
    a.waitcnt(vm=0)
    a.i('s_barrier')
    a.i(f's_cmp_lg_u32 s{sW}, 0')
    a.i(f's_cbranch_scc1 {l}')
    a.i('s_mov_b64 exec, 1')
    a.i(f'v_mov_b32 v{v}, 1')
    a.i(f'buffer_atomic_add v{v}, off, {DBG}, 0 offset:16 sc1')
    a.i('s_mov_b64 exec, -1')
    a.label(l)


def spin_head(a, code):
    a.i(f's_mov_b32 s{sTO}, {TIMEOUT}')
    a.i(f's_mov_b32 s29, {code}')
    l = a.new('L_spin')
    a.label(l)
    a.i(f's_sub_u32 s{sTO}, s{sTO}, 1')
    a.i('s_cbranch_scc1 L_abort')
    return l


def wait_init(a, v=2):
    l = spin_head(a, 1)
    a.i('s_sleep 4')
    a.i(f'buffer_load_dword v{v}, off, {DBG}, 0 offset:16 sc1')
    a.i(f'v_cmp_gt_u32 vcc, 256, v{v}')
    a.i(f's_cbranch_vccnz {l}')


class DsAddr:
    def __init__(self, a, tmp):
        self.a, self.tmp, self.cur = a, tmp, None

    def __call__(self, reg, off):
        if off < 65536:
            return f'v{reg}', off
        hi = off & ~0x7fff
        if self.cur != (reg, hi):
            if self.cur and self.cur[0] == reg and 0 <= off - self.cur[1] < 65536:
                return f'v{self.tmp}', off - self.cur[1]
            self.a.i(f'v_add_u32 v{self.tmp}, {hi}, v{reg}')
            self.cur = (reg, hi)
        return f'v{self.tmp}', off - hi


def bits(a, dst, src, spec, tmp):
    first = True
    for s, m, d in spec:
        t = dst if first else tmp
        a.i(f'v_lshrrev_b32 v{t}, {s}, v{src}')
        a.i(f'v_and_b32 v{t}, {m}, v{t}')
        if first:
            if d:
                a.i(f'v_lshlrev_b32 v{t}, {d}, v{t}')
        else:
            a.i(f'v_lshl_or_b32 v{dst}, v{t}, {d}, v{dst}')
        first = False


SWZ = {
    ('p2', 'pair'): [(0, 7, 1)],
    ('p1', 'pair'): [(1, 3, 1)],
    ('p1', 'nat'): [(1, 1, 1), (3, 1, 2)],
    ('p2', 'nat'): [(0, 3, 1), (3, 1, 3)],
    'x': [(1, 7, 0)],
}


def dma_voff_pow2(a, dst, upr, gpitch, swz, t0, t1):
    lg = {8: 3, 16: 4}[upr]
    rpi = 64 // upr
    a.i(f'v_lshrrev_b32 v{t0}, {lg}, v0')
    a.i(f's_mul_i32 s28, s{sW}, {rpi}')
    a.i(f'v_add_u32 v{t0}, s28, v{t0}')
    bits(a, dst, t0, swz, t1)
    a.i(f'v_and_b32 v{t1}, {upr - 1}, v0')
    a.i(f'v_xor_b32 v{dst}, v{dst}, v{t1}')
    a.i(f'v_lshlrev_b32 v{dst}, 4, v{dst}')
    a.i(f'v_mul_u32_u24 v{t0}, {gpitch}, v{t0}')
    a.i(f'v_add_u32 v{dst}, v{dst}, v{t0}')


def dma_voff_72(a, dst9, swz, t0, t1, t2, upr=72, gpitch=1152):
    magic = {72: 911, 24: 2731}[upr]
    assert all((u * magic) >> 16 == u // upr for u in range(8 * upr))
    a.i(f's_lshl_b32 s28, s{sW}, 3')
    for n in range(upr // 8):
        d = dst9 + n
        a.i(f'v_add_u32 v{t2}, {64 * n}, v0')
        a.i(f'v_mul_u32_u24 v{t0}, {magic}, v{t2}')
        a.i(f'v_lshrrev_b32 v{t0}, 16, v{t0}')
        a.i(f'v_mul_u32_u24 v{t1}, {upr}, v{t0}')
        a.i(f'v_sub_u32 v{t2}, v{t2}, v{t1}')
        a.i(f'v_add_u32 v{t0}, s28, v{t0}')
        bits(a, d, t0, swz, t1)
        a.i(f'v_xor_b32 v{d}, v{d}, v{t2}')
        a.i(f'v_lshlrev_b32 v{d}, 4, v{d}')
        a.i(f'v_mul_u32_u24 v{t0}, {gpitch}, v{t0}')
        a.i(f'v_add_u32 v{d}, v{d}, v{t0}')


def dma(a, voff, srdn, s_lds, lds_off, s_src, src_off, mods='', tag=None):
    a.i(f's_add_u32 m0, s{s_lds}, {lds_off}')
    a.i(f's_add_u32 s28, s{s_src}, {src_off}')
    a.i(f'buffer_load_dwordx4 v{voff}, {srdn}, s28 offen{mods} lds', tag=tag)


def tr_addr(a, dst, pitch, korder, swz, unit_expr, sub_expr, t0, t1):
    if korder == 'pair':
        a.i(f'v_lshrrev_b32 v{t0}, 2, v0')
    else:
        bits(a, t0, 0, [(2, 3, 0), (4, 3, 3)], t1)
    bits(a, dst, t0, swz, t1)
    unit_expr(t1)
    a.i(f'v_xor_b32 v{dst}, v{dst}, v{t1}')
    a.i(f'v_lshlrev_b32 v{dst}, 4, v{dst}')
    a.i(f'v_mul_u32_u24 v{t0}, {pitch}, v{t0}')
    a.i(f'v_add_u32 v{dst}, v{dst}, v{t0}')
    if sub_expr:
        sub_expr(t1)
        a.i(f'v_add_u32 v{dst}, v{dst}, v{t1}')


def tr_frag(a, ds, dreg, areg, off, pitch, korder):
    half = (16 if korder == 'pair' else 4) * pitch
    for h in range(2):
        r, o = ds(areg, off + h * half)
        a.i(f'ds_read_b64_tr_b16 {R(dreg + 2 * h, 2)}, {r} offset:{o}')


import os
PROF = os.environ.get('PROF')


def stamp(a, on, k):
    if on and PROF:
        if k == 0:
            a.prof([int(x) for x in PROF.split(',')])
        return
    if on:
        a.i(f'{"s_memrealtime" if os.environ.get("RT") else "s_memtime"} s[{80 + 2 * k}:{81 + 2 * k}]')


def stamp_flush(a, on, n, sstep, v0):
    if not on:
        return
    if PROF:
        n = len(PROF.split(',')) + 1
        a.i(f's_memtime s[{80 + 2 * (n - 1)}:{81 + 2 * (n - 1)}]')
        a.pm = None
    a.waitcnt(lg=0)
    for k in range(n):
        a.i(f'v_mov_b32 v{v0 + k}, s{80 + 2 * k}')
    a.i(f's_lshl_b32 s28, s{sstep}, 8')
    a.i(f's_add_u32 s28, s28, s{sGID}')
    a.i('s_lshl_b32 s28, s28, 2')
    a.i(f's_add_u32 s28, s28, s{sW}')
    a.i('s_lshl_b32 s28, s28, 6')
    a.i(f's_add_u32 s28, s28, {STAMP + 65536}')
    a.i('s_mov_b64 exec, 1')
    for k in range(0, n, 4):
        a.i(f'buffer_store_dwordx4 {R(v0 + k, 4)}, off, {WS}, s28 offset:{4 * k}')
    a.i('s_mov_b64 exec, -1')


def rt_stamp(a, on, slot, v0=8):
    if not on:
        return
    l = a.new('L_rt')
    a.i(f's_cmp_lg_u32 s{sW}, 0')
    a.i(f's_cbranch_scc1 {l}')
    a.i('s_memrealtime s[76:77]')
    a.waitcnt(lg=0)
    a.i(f'v_mov_b32 v{v0}, s76')
    a.i(f's_lshl_b32 s28, s{sGID}, 6')
    a.i(f's_add_u32 s28, s28, {STAMP}')
    a.i('s_mov_b64 exec, 1')
    a.i(f'buffer_store_dword v{v0}, off, {WS}, s28 offset:{slot * 4}')
    a.i('s_mov_b64 exec, -1')
    a.label(l)


def sel_frag(a, dst, t0, t1, dual=False):
    a.i(f'v_and_b32 v{t0}, 1, v0')
    a.i(f'v_lshlrev_b32 v{t0}, 4, v{t0}')
    a.i(f'v_mov_b32 v{t1}, 0x3f80')
    a.i(f'v_lshlrev_b32 v{t1}, v{t0}, v{t1}')
    if dual:
        a.i(f'v_lshrrev_b32 v{t0}, 2, v0')
        a.i(f'v_xor_b32 v{t0}, v{t0}, v0')
        a.i(f'v_and_b32 v{t0}, 8, v{t0}')
        a.i(f'v_cmp_eq_u32 vcc, 0, v{t0}')
        a.i(f'v_cndmask_b32 v{t1}, 0, v{t1}, vcc')
    a.i(f'v_bfe_u32 v{t0}, v0, 1, 2')
    for k in range(4):
        a.i(f'v_cmp_eq_u32 vcc, {k}, v{t0}')
        a.i(f'v_cndmask_b32 v{dst + k}, 0, v{t1}, vcc')
```

```python
import math
from common import *
from chain import f2u

vLn, vPs, vP1, vR1, vR2, vT1, vT2, vTr, vL2, vFa, vFl, vT, vKm, vVm, vXb, vXq = range(16)
SEL = 16
sS, sTag, sPst, sRd, sRes, sYo, sFp, sFn, sIn, sSl, sW1k, sSp, sPre, sLb, sDx = range(30, 45)
TBO = 16384
INB = 32768


def kstage(a, W, nkb, karg, nbytes, sbase, ko):
    v9, at, tA = 24, 33, 37
    sw = SWZ['p1', ko]
    dma_voff_72(a, v9, sw, 40, 41, 42)
    a.i(f's_mul_i32 s62, s{sW}, 18')
    for i in range(4):
        def un(t, i=i):
            a.i(f'v_bfe_u32 v{t}, v0, 1, 1')
            a.i(f'v_add_u32 v{t}, s62, v{t}')
            if i:
                a.i(f'v_add_u32 v{t}, {2 * i}, v{t}')

        def sub(t):
            a.i(f'v_and_b32 v{t}, 1, v0')
            a.i(f'v_lshlrev_b32 v{t}, 3, v{t}')
        tr_addr(a, at + i, 1152, ko, sw, un, sub, 40, 41)
    ds = DsAddr(a, tA)
    a.i(f's_mul_i32 s60, s{sW}, 9216')
    srd(a, 8, karg, nbytes)
    chunks = [list(range(k, min(k + 2, nkb))) for k in range(0, nkb, 2)]

    def issue(c):
        for bi, kb in enumerate(chunks[c]):
            for n in range(9):
                dma(a, v9 + n, WT, 60, (BUF0, BUF1)[c & 1] + bi * 36864 + n * 1024, sbase, kb * 36864)
    issue(0)
    issue(1)
    for c in range(len(chunks)):
        a.waitcnt(vm=9 * len(chunks[c + 1]) if c + 1 < len(chunks) else 0)
        a.i('s_barrier')
        for bi, kb in enumerate(chunks[c]):
            for i in range(9):
                tr_frag(a, ds, W[(i, kb)], at + (i & 3), (BUF0, BUF1)[c & 1] + bi * 36864 + 128 * (i >> 2), 1152, ko)
        a.barrier()
        if c + 2 < len(chunks):
            issue(c + 2)


def kinit(a, grp):
    a.i(f's_lshl_b32 s{sW1k}, s{sW}, 10')
    a.i(f's_add_u32 s28, s{sL}, {grp}')
    a.i(f's_mul_i32 s{sSl}, s28, {2 * PRS_SLOT}')
    a.i(f's_add_u32 s{sSl}, s{sSl}, {PRS}')
    a.i(f's_mul_i32 s{sRd}, s{sIDX}, {UNIT}')
    a.i(f's_add_u32 s{sRd}, s{sRd}, s{sSl}')
    a.i('v_lshlrev_b32 v10, 4, v0')
    for k in range(4):
        a.i(f'v_mov_b32 v{16 + k}, 1')
    a.i(f's_mul_i32 s60, s{sW}, 9216')
    a.i(f's_add_u32 s60, s60, s{sRd}')
    for sl in range(2):
        for n in range(9):
            a.i(f's_add_u32 s28, s60, {sl * PRS_SLOT + n * 1024}')
            a.i(f'buffer_store_dwordx4 v[16:19], v10, {WS}, s28 offen')
    arrive(a)


def ksetup(a, bufbytes):
    t0, t1, t2 = 40, 41, 42
    sel_frag(a, SEL, t0, t1)
    a.i(f'v_lshrrev_b32 v{t0}, 4, v0')
    a.i(f'v_and_b32 v{t1}, 15, v0')
    a.i(f'v_mul_u32_u24 v{t2}, {2 * UNIT}, v{t0}')
    a.i(f'v_lshl_add_u32 v{vPs}, v{t1}, 4, v{t2}')
    a.i(f'v_lshl_add_u32 v{vP1}, v{t1}, 2, v{t2}')
    a.i(f's_mul_i32 s60, s{sW}, 576')
    a.i(f's_add_u32 s61, s60, {TBO}')
    bits(a, vT1, 0, [(0, 15, 2), (4, 1, 7)], t2)
    a.i(f'v_add_u32 v{vT1}, s61, v{vT1}')
    bits(a, vT2, 0, [(0, 3, 4), (4, 1, 3)], t2)
    a.i(f'v_add_u32 v{vT2}, s61, v{vT2}')
    a.i(f'v_mul_u32_u24 v{t2}, 2304, v{t0}')
    a.i(f'v_lshl_add_u32 v{vR1}, v{t1}, 4, v{t2}')
    bits(a, t1, 0, [(2, 3, 2), (4, 3, 0)], t2)
    a.i(f'v_mul_u32_u24 v{vR2}, 2304, v{t1}')
    a.i(f'v_and_b32 v{t1}, 3, v0')
    a.i(f'v_lshl_add_u32 v{vR2}, v{t1}, 4, v{vR2}')
    a.i(f's_lshr_b32 s61, s{sW}, 1')
    a.i(f's_mul_i32 s62, s61, 2304')
    a.i(f's_add_u32 s62, s62, {TBO}')
    a.i(f'v_lshlrev_b32 v{vTr}, 5, v0')
    a.i(f'v_add_u32 v{vTr}, s62, v{vTr}')
    a.i(f'v_lshlrev_b32 v{vL2}, 1, v0')
    a.i(f's_mul_i32 s{sPst}, s{sIDX}, 2304')
    a.i(f's_mul_i32 s61, s61, 1152')
    a.i(f's_add_u32 s{sRes}, s{sPst}, s61')
    a.i(f's_add_u32 s{sPst}, s{sPst}, s60')
    a.i(f's_add_u32 s{sPst}, s{sPst}, s{sSl}')
    a.i(f's_add_u32 s{sRd}, s{sRd}, s60')
    a.i(f's_lshl_b32 s{sFp}, s{sIDX}, 11')
    a.i(f's_lshl_b32 s28, s{sW}, 9')
    a.i(f's_add_u32 s{sFp}, s{sFp}, s28')
    a.i(f's_add_u32 s28, s{sRd}, {PRS_SLOT}')
    a.i(f's_xor_b32 s{sSp}, s28, s{sRd}')
    a.i(f's_add_u32 s28, s{sPst}, {PRS_SLOT}')
    a.i(f's_xor_b32 s53, s28, s{sPst}')
    a.i(f's_bitcmp0_b32 s{sW}, 0')
    a.i(f's_cselect_b64 s[{sEv}:{sEv + 1}], -1, 0')
    a.i('s_mov_b64 s[56:57], 1')
    a.i(f's_add_u32 s28, s62, 2048')
    a.i(f'v_lshl_add_u32 v{vT}, v{vL2}, 1, s28')
    a.i(f's_lshl_b32 s28, s{sW}, 2')
    a.i(f's_add_u32 s28, s28, {VOTE}')
    a.i(f'v_mov_b32 v{vKm}, s28')
    a.i(f'v_mov_b32 v{vVm}, {VOTE}')
    a.i(f's_mov_b32 s{sDx}, {bufbytes}')
    a.i(f's_mov_b32 s{sS}, 0')
    a.i(f's_mov_b32 s{sPre}, 0')
    a.i('s_mov_b64 s[54:55], 0')
    a.i(f'v_lshlrev_b32 v{vLn}, 4, v0')


X, ACC, PK, L, F3, T, RS = 20, 92, 108, 128, 164, 176, 180
sTr, sEv = 51, 58
VOTE = TBO + 6144


def rs_load(a, n):
    if n == 8:
        a.i(f'buffer_load_dwordx4 {R(L + 32, 4)}, v{vR2}, {WS}, s{sRd} offen offset:512 sc1')
        return
    x, G = n & 3, n >> 2
    if x:
        a.i(f's_add_u32 s28, s{sRd}, {x * 9216}')
    a.i(f'buffer_load_dwordx4 {R(L + 4 * n, 4)}, v{vR1}, {WS}, s{28 if x else sRd} offen offset:{256 * G} sc1')


def rs_group(a, code, ns, reload):
    lr, lc = a.new('L_rsr'), a.new('L_rsc')
    a.i(f's_branch {lc}', nohaz=True)
    vm, lg = list(a.vm), list(a.lg)
    pm, a.pm = getattr(a, 'pm', None), None
    a.label(lr)
    a.i(f's_mov_b32 s29, {code}')
    a.i(f's_sub_u32 s{sTO}, s{sTO}, 1')
    a.i('s_cbranch_scc1 L_abort')
    for n in reload:
        rs_load(a, n)
    a.waitcnt(vm=0)
    a.out.append(lc + ':')
    a.vm, a.lg = vm, lg
    acc = F3 + 4 * (ns[0] >> 2)
    for x, n in enumerate(ns):
        a.mfma(acc, SEL, L + 4 * n, None if x == 0 else acc)
        a.i(f'v_bitop3_b32 v{T + x}, v{L + 4 * n}, v{L + 4 * n + 2}, s{sTr} bitop3:0x7e')
    if len(ns) == 4:
        a.i(f'v_or3_b32 v{T}, v{T}, v{T + 1}, v{T + 2}')
    else:
        a.i(f'v_bitop3_b32 v{T + 3}, v{L + 33}, v{L + 35}, s{sTr} bitop3:0x7e')
    a.i(f'v_bitop3_b32 v{T}, v{T}, v{T + 3}, 1 bitop3:0xa8')
    a.i(f'v_cmp_ne_u32 vcc, 0, v{T}')
    a.i(f's_cbranch_vccnz {lr}', nohaz=True)
    a.pm = pm


def t_wr(G):
    if G < 2:
        return [f'ds_write_b32 v{vT1}, v{F3 + 4 * G + r} offset:{256 * G + (r & 1) * 2304 + (r >> 1) * 64}' for r in range(4)]
    return [f'v_add_f32_dpp v{F3 + 8 + k}, v{F3 + 8 + k}, v{F3 + 8 + k} row_ror:{d} row_mask:0xf bank_mask:0xf'
            for d in (4, 8) for k in range(4)] + \
           [f'ds_write_b32 v{vT2}, v{F3 + 8 + r} offset:{512 + (r & 1) * 2304 + (r >> 1) * 4}' for r in range(4)]


def reduce_phase(a, code, mid):
    rs_group(a, code, [0, 1, 2, 3], [0, 1, 2, 3])
    a.waitcnt(vm=4)
    for n in range(4, 8):
        rs_load(a, n)
    for p in t_wr(0):
        a.i(p)
    a.waitcnt(vm=4)
    rs_load(a, 8)
    poll(a)
    rs_group(a, code, [4, 5, 6, 7], [4, 5, 6, 7, 8])
    for p in t_wr(1):
        a.i(p)
    rs_group(a, code, [8], [8])
    for p in t_wr(2):
        a.i(p)


def ln_stream(out_srd, tb=0):
    F, PKD = L + 12, L + 24
    s1, q1, s2, q2 = T, T + 1, T + 2, T + 3
    o = [f'ds_read_b128 {R(F, 4)}, v{vTr} offset:{tb}', f'ds_read_b128 {R(F + 4, 4)}, v{vTr} offset:{tb + 16}', f'ds_read_b32 v{F + 8}, v{vT} offset:{tb}']
    for k in range(4):
        o += [f'v_lshlrev_b32 v{L + 2 * k}, 16, v{RS + k}', f'v_and_b32 v{L + 2 * k + 1}, 0xffff0000, v{RS + k}']
    o += [f'v_lshlrev_b32 v{L + 8}, 16, v{RS + 4}']
    o += [f'v_add_f32 v{F + k}, v{F + k}, v{L + k}' for k in range(9)]
    pk = [f'v_cvt_pk_bf16_f32 v{PKD + k}, v{F + 2 * k}, v{F + 2 * k + 1}' for k in range(4)] + [f'v_cvt_pk_bf16_f32 v{PKD + 4}, v{F + 8}, 0']
    o += pk
    for k in range(4):
        o += [f'v_lshlrev_b32 v{F + 2 * k}, 16, v{PKD + k}', f'v_and_b32 v{F + 2 * k + 1}, 0xffff0000, v{PKD + k}']
    o += [f'v_lshlrev_b32 v{F + 8}, 16, v{PKD + 4}', f'v_readfirstlane_b32 s60, v{F}',
          f's_andn2_b32 s60, s60, s{sEv}']
    o += [f'v_subrev_f32 v{F + k}, s60, v{F + k}' for k in range(9)]
    o += [f'v_add_f32 v{s1}, v{F}, v{F + 1}', f'v_mul_f32 v{q1}, v{F}, v{F}', f'v_fmac_f32 v{q1}, v{F + 1}, v{F + 1}']
    for k in range(2, 9):
        o += [f'v_add_f32 v{s1}, v{s1}, v{F + k}', f'v_fmac_f32 v{q1}, v{F + k}, v{F + k}']
    for m in ('quad_perm:[1,0,3,2]', 'quad_perm:[2,3,0,1]', 'row_half_mirror', 'row_mirror'):
        o += [f'v_add_f32_dpp v{r}, v{r}, v{r} {m} row_mask:0xf bank_mask:0xf' for r in (s1, q1)]
    for sw in (16, 32):
        o += [f'v_mov_b32 v{s2}, v{s1}', f'v_mov_b32 v{q2}, v{q1}', f'v_permlane{sw}_swap_b32 v{s1}, v{s2}',
              f'v_permlane{sw}_swap_b32 v{q1}, v{q2}', f'v_add_f32 v{s1}, v{s1}, v{s2}', f'v_add_f32 v{q1}, v{q1}, v{q2}']
    o += [f'v_mul_f32 v{s1}, {hex(f2u(1 / 576))}, v{s1}', f'v_mov_b32 v{q2}, {hex(f2u(1e-5))}',
          f'v_fmac_f32 v{q2}, {hex(f2u(1 / 576))}, v{q1}', f'v_fma_f32 v{q2}, -v{s1}, v{s1}, v{q2}', f'v_rsq_f32 v{q2}, v{q2}',
          f'v_cndmask_b32 v{s1}, v{s1}, 0, s[{sEv}:{sEv + 1}]', f'v_cndmask_b32 v{q2}, v{q2}, 1.0, s[{sEv}:{sEv + 1}]',
          f'v_mul_f32 v{s1}, v{s1}, v{q2}']
    o += [f'v_fma_f32 v{F + k}, v{F + k}, v{q2}, -v{s1}' for k in range(9)]
    o += pk
    o += [f'buffer_store_dwordx4 {R(PKD, 4)}, v{vLn}, {out_srd}, s{sYo} offen sc1',
          f'buffer_store_short v{PKD + 4}, v{vL2}, {out_srd}, s{sYo} offen offset:1024 sc1',
          f's_add_u32 s{sYo}, s{sYo}, {UNIT}', f's_add_u32 s{sRes}, s{sRes}, {UNIT}',
          f's_xor_b32 s{sRd}, s{sRd}, s{sSp}', 's_mov_b64 s[54:55], s[56:57]']
    return o


def klate(a):
    a.i('s_mov_b64 exec, s[54:55]')
    a.i(f'buffer_store_dword v{vTr}, off, {WS}, s{sFp} sc1')
    a.vm.pop()
    a.i('s_mov_b64 exec, -1')
    a.i('s_lshl_b32 s28, s54, 2')
    a.i(f's_add_u32 s{sFp}, s{sFp}, s28')
    a.i('s_mov_b64 s[54:55], 0')


def kgemm(a, W, nkb, side, stream):
    def xr(n):
        kb, rt = n >> 1, n & 1
        a.i(f'ds_read_b128 {R(X + 4 * (rt * nkb + kb), 4)}, v{vXb} offset:{(rt * nkb + kb) * 1024}')
    for n in range(8):
        xr(n)
    a.i(f's_lshr_b32 s{sTag}, s{sS}, 1')
    for q in range(1, 4):
        a.i(f's_add_u32 s{60 + q}, s{sPst}, {(8 * (q >> 1) + (q & 1)) * UNIT}')
    so = [sPst, 61, 62, 63]
    pend, low = [], []
    k = 0
    for i in range(10):
        acc = ACC + 8 * (i & 1)
        if i < 9:
            for kb in range(nkb):
                for rt in range(2):
                    a.mfma(acc + 4 * rt, X + 4 * (rt * nkb + kb), W[(i, kb)], None if kb == 0 else acc + 4 * rt)
                    room = 2
                    if k + 8 < 2 * nkb:
                        xr(k + 8)
                        room -= 1
                    if kb >= 2 and pend:
                        p = pend.pop(0)
                        if p:
                            a.i(p)
                            room -= 2 if p.startswith('buffer') else 1
                    if k in side:
                        if 'flush' in side[k]:
                            while low:
                                a.i(low.pop(0))
                        for f in side[k]:
                            if f != 'flush':
                                f()
                        room = 0
                    low += stream.get(k, [])
                    while room > 0 and low:
                        a.i(low.pop(0))
                        room -= 1
                    k += 1
        if i == 9:
            while low:
                a.i(low.pop(0))
        for p in pend:
            if p:
                a.i(p)
        pend = []
        if i == 9:
            break
        if i == 8:
            for q in range(4):
                r = PK + 16 + q
                pend += [f'v_cvt_pk_bf16_f32 v{r}, v{acc + 2 * q}, v{acc + 2 * q + 1}', f'v_bfi_b32 v{r}, 1, s{sTag}, v{r}',
                         f'buffer_store_dword v{r}, v{vP1}, {WS}, s{so[q]} offen offset:512']
        else:
            d = i & 3
            for q in range(4):
                r = PK + 4 * q + d
                pend.append(f'v_cvt_pk_bf16_f32 v{r}, v{acc + 2 * q}, v{acc + 2 * q + 1}')
                if not d & 1:
                    pend.append(f'v_bfi_b32 v{r}, 1, s{sTag}, v{r}')
                if d == 3:
                    pend.append(f'buffer_store_dwordx4 {R(PK + 4 * q, 4)}, v{vPs}, {WS}, s{so[q]} offen offset:{256 * (i >> 2)}')
                    pend.append(None)
    a.i(f's_mov_b32 s{sTr}, s{sTag}')
    a.i(f's_xor_b32 s{sPst}, s{sPst}, s53')


def res_load(a, srdn):
    a.i(f'buffer_load_dwordx4 {R(RS, 4)}, v{vLn}, {srdn}, s{sRes} offen sc1')
    a.i(f'buffer_load_ushort v{RS + 4}, v{vL2}, {srdn}, s{sRes} offen offset:1024 sc1')


def poll(a, off=0):
    a.i(f'buffer_load_dword v{vFl}, v{vFa}, {WS}, s{sFn} offen offset:{off} sc1')


def in_dma(a, n, stride, bufbytes):
    for k in range(n):
        if k % 4 == 0:
            a.i(f's_add_u32 m0, s{sLb}, {k * 1024}')
            a.i(f's_add_u32 s28, s{sIn}, {k * 1024}')
        a.i(f'buffer_load_dwordx4 v{vLn}, {WS}, s28 offen offset:{(k & 3) * 1024} sc1 lds', tag='x')
    a.i(f's_add_u32 s{sIn}, s{sIn}, {stride}')
    a.i(f's_add_u32 s{sLb}, s{sLb}, s50')
    a.i('s_sub_u32 s50, 0, s50')


def dma_spread(a, side, n, stride, first, step):
    for k in range(n):
        def f(k=k):
            l = a.new('L_sk')
            vm, lg = list(a.vm), list(a.lg)
            a.i(f's_cbranch_vccz {l}', nohaz=True)
            a.i(f's_add_u32 m0, s{sLb}, {k * 1024}')
            a.i(f's_add_u32 s28, s{sIn}, {k * 1024}')
            a.i(f'buffer_load_dwordx4 v{vLn}, {WS}, s28 offen sc1 lds')
            if k == n - 1:
                a.i(f's_add_u32 s{sIn}, s{sIn}, {stride}')
                a.i(f's_add_u32 s{sLb}, s{sLb}, s50')
                a.i('s_sub_u32 s50, 0, s50')
            a.out.append(l + ':')
            a.vm, a.lg = vm, lg
        side.setdefault(first + k * step, []).append(f)


def krole(a, nm, stamps):
    dn = nm == 'down'
    nkb = 9 if dn else 8
    P = f'L_{nm}'
    a.label(P)
    rt_stamp(a, stamps, 0)
    kinit(a, 2 if dn else 0)
    W = {}
    for i in range(9):
        for kb in range(nkb):
            W[(i, kb)] = 512 - 36 * nkb + 4 * len(W)
    a.i(f's_mul_i32 s61, s{sIDX}, {32 * nkb * 1152}')
    kstage(a, W, nkb, K_WD if dn else K_WO, 16 * 32 * nkb * 1152, 61, 'nat' if dn else 'pair')
    nfl = 6 if dn else 2
    a.i(f'v_min_u32 v{vFa}, {nfl - 1}, v0')
    a.i(f'v_lshlrev_b32 v{vFa}, 9, v{vFa}')
    BB = 2 * nkb * 1024
    IU, IB, FI = (H_UNIT, HB, F_H) if dn else (O_UNIT, OB, F_O)
    ksetup(a, BB)
    a.i(f's_mov_b32 s50, {BB}')
    a.i(f'v_add_u32 v{vXb}, {INB}, v{vLn}')
    a.i(f's_mul_i32 s60, s{sL}, {64 * UNIT}')
    a.i(f's_lshl_b32 s61, s{sL}, 8')
    if dn:
        srd(a, 12, K_OUT, 2048 * 1152)
        a.i(f's_bitcmp1_b32 s{sW}, 0')
        a.i(f's_cselect_b32 s{sYo}, {OOB}, s{sRes}')
        a.i('s_mov_b64 s[56:57], 0')
        a.i(f's_cmp_eq_u32 s{sL}, 1')
        a.i(f's_cbranch_scc1 {P}_o')
        srd(a, 12, K_WS, WS_BYTES)
        a.i('s_mov_b64 s[56:57], 1')
        a.i(f's_mov_b32 s{sYo}, s{sRes}')
        a.i(f's_bitcmp1_b32 s{sW}, 0')
        a.i(f's_mov_b32 s28, {X2}')
        a.i(f's_cselect_b32 s28, {NA + 64 * UNIT}, s28')
        a.i(f's_add_u32 s{sYo}, s{sYo}, s28')
        a.label(f'{P}_o')
        a.i(f's_add_u32 s{sRes}, s{sRes}, s60')
        a.i(f's_add_u32 s{sRes}, s{sRes}, {YB}')
        a.i(f's_add_u32 s{sFp}, s{sFp}, {F_NA + 256}')
        res_srd, out_srd = WS, IO
    else:
        a.i(f's_add_u32 s{sYo}, s60, s{sRes}')
        a.i(f's_bitcmp1_b32 s{sW}, 0')
        a.i(f's_mov_b32 s28, {YB}')
        a.i(f's_cselect_b32 s28, {NB}, s28')
        a.i(f's_add_u32 s{sYo}, s{sYo}, s28')
        a.i(f's_add_u32 s{sFp}, s{sFp}, s61')
        a.i(f's_add_u32 s{sFp}, s{sFp}, {F_NB}')
        srd(a, 12, K_X, 2048 * 1152)
        a.i(f's_cmp_eq_u32 s{sL}, 0')
        a.i(f's_cbranch_scc1 {P}_o')
        srd(a, 12, K_WS, WS_BYTES)
        a.i(f's_add_u32 s{sRes}, s{sRes}, {X2}')
        a.label(f'{P}_o')
        res_srd, out_srd = IO, WS
    a.i(f's_mul_i32 s{sFn}, s{sIDX}, {nfl * 512}')
    a.i(f's_add_u32 s{sFn}, s{sFn}, s61')
    a.i(f's_add_u32 s{sFn}, s{sFn}, {FI}')
    a.i(f's_mul_i32 s{sIn}, s{sL}, {64 * IU}')
    a.i(f's_mul_i32 s28, s{sIDX}, {nkb * 1024}')
    a.i(f's_add_u32 s{sIn}, s{sIn}, s28')
    a.i(f's_add_u32 s{sIn}, s{sIn}, {IB}')
    nd = nkb - 4
    a.i(f's_lshr_b32 s28, s{sW}, 1')
    a.i(f's_mul_i32 s{sLb}, s28, {nkb * 1024}')
    a.i(f's_mul_i32 s28, s28, {IU // 2}')
    a.i(f's_add_u32 s{sIn}, s{sIn}, s28')
    a.i(f's_and_b32 s28, s{sW}, 1')
    a.i('s_lshl_b32 s28, s28, 12')
    a.i(f's_add_u32 s{sLb}, s{sLb}, s28')
    a.i(f's_add_u32 s{sLb}, s{sLb}, {INB}')
    a.i(f's_add_u32 s{sIn}, s{sIn}, s28')
    wait_init(a, 40)
    rt_stamp(a, stamps, 1, 40)
    code = 10 if dn else 12

    def decide():
        a.i(f'v_cmp_eq_u32 vcc, 0, v{vFl}')
        a.i('s_cmp_eq_u64 vcc, 0')
        a.i('s_cselect_b64 vcc, 1, 0')
        a.i(f's_cmp_eq_u32 s{sS}, 63')
        a.i('s_cselect_b64 vcc, 0, vcc')
        a.i(f's_mov_b32 s{sPre}, vcc_lo')
        a.i(f'v_mov_b32 v{vFl}, s{sPre}')
        a.i(f'ds_write_b32 v{vKm}, v{vFl}', tag='v')

    def vbar():
        a.wait_tag('v')
        a.i('s_barrier')
        a.i(f'ds_read_b128 {R(F3, 4)}, v{vVm}')

    def body(carry):
        n8 = 2 * nkb * 8
        kD = n8 - 40
        side = {kD - 44: [lambda: poll(a, 4)], kD: [decide], n8 - 14: [vbar], n8 - 13: [lambda: res_load(a, res_srd)]}
        stream = {}
        if carry:
            side[2 * nkb - 2] = [lambda: rs_group(a, code, [0, 1, 2, 3], [0, 1, 2, 3])]
            stream[2 * nkb + 3] = t_wr(0)
            for n in range(4, 9):
                side[2 * nkb + 3 * n - 8] = [lambda n=n: rs_load(a, n)]
            side[42] = [lambda: rs_group(a, code, [4, 5, 6, 7], [4, 5, 6, 7, 8]), lambda: rs_group(a, code, [8], [8]),
                        lambda: klate(a)]
            stream[43] = t_wr(1) + t_wr(2)
            side[52] = ['flush', lambda: a.barrier()]
            stream[53] = ln_stream(out_srd)
            side[n8 - 15] = ['flush']
        dma_spread(a, side, nd, IU, kD + 2, 4)
        for n in range(4):
            side.setdefault(n8 - 11 + 3 * n, []).append(lambda n=n: rs_load(a, n))
        assert len({kD - 44, 42, 52} - set()) == 3
        kgemm(a, W, nkb, side, stream)

    a.label(f'{P}_loop')
    l = spin_head(a, 9 if dn else 11)
    poll(a)
    a.i(f'v_cmp_eq_u32 vcc, 0, v{vFl}')
    klate(a)
    a.i(f's_cbranch_vccnz {l}', nohaz=True)
    in_dma(a, nd, IU, BB)
    a.label(f'{P}_plain')
    a.waitcnt(vm=0)
    klate(a)
    a.i('s_barrier')
    if not PROF:
        stamp(a, stamps, 0)
    body(False)
    a.i(f's_branch {P}_end')
    vm = list(a.vm)
    a.label(f'{P}_carry')
    a.vm = []
    a.i('s_barrier')
    stamp(a, stamps, 0)
    body(True)
    a.vm = vm
    a.out.append(f'{P}_end:')
    stamp(a, stamps, 1)
    a.i(f'v_bitop3_b32 v{F3}, v{F3}, v{F3 + 1}, v{F3 + 2} bitop3:0x80')
    a.i(f'v_and_b32 v{F3}, v{F3}, v{F3 + 3}')
    a.i(f'v_cmp_ne_u32 vcc, 0, v{F3}')
    a.i(f's_mov_b32 s45, s{sS}')
    a.i(f's_mov_b32 s{sTO}, {TIMEOUT}')
    a.i(f'v_add_u32 v{vXb}, s{sDx}, v{vXb}')
    a.i(f's_sub_u32 s{sDx}, 0, s{sDx}')
    a.i(f's_add_u32 s{sFn}, s{sFn}, 4')
    a.i(f's_add_u32 s{sS}, s{sS}, 1')
    a.i(f's_cbranch_vccz {P}_drain', nohaz=True)
    vm = list(a.vm)
    a.waitcnt(vm=8)
    klate(a)
    for k in (2, 3):
        if stamps and not PROF:
            a.i(f's_mov_b32 s{80 + 2 * k}, 0')
    stamp_flush(a, stamps, 4, 45, ACC)
    a.i(f's_branch {P}_carry')
    a.out.append(f'{P}_drain:')
    a.vm = vm
    reduce_phase(a, code, None)
    klate(a)
    stamp(a, stamps, 2)
    a.barrier()
    ln = ln_stream(out_srd)
    for p in ln[:12]:
        a.i(p)
    a.i(f'v_cmp_eq_u32 vcc, 0, v{vFl}')
    a.i(f's_cmp_lg_u32 s{sPre}, 0')
    a.i(f's_cbranch_scc1 {P}_no2', nohaz=True)
    a.i(f's_cmp_eq_u32 s{sS}, 64')
    a.i(f's_cbranch_scc1 {P}_no2', nohaz=True)
    a.i(f's_cbranch_vccnz {P}_no2', nohaz=True)
    in_dma(a, nd, IU, BB)
    a.i(f's_mov_b32 s{sPre}, 1')
    a.label(f'{P}_no2')
    for p in ln[12:]:
        a.i(p)
    stamp(a, stamps, 3)
    stamp_flush(a, stamps, 4, 45, ACC)
    a.i(f's_cmp_lg_u32 s{sPre}, 0')
    a.i(f's_cbranch_scc1 {P}_plain')
    a.i(f's_cmp_lt_u32 s{sS}, 64')
    a.i(f's_cbranch_scc1 {P}_loop')
    a.waitcnt(vm=0)
    klate(a)
    rt_stamp(a, stamps, 2, 40)
    a.i('s_endpgm')


def down(a, stamps=False):
    krole(a, 'down', stamps)


def oproj(a, stamps=False):
    krole(a, 'oproj', stamps)


def atn(a, stamps=False):
    from nsplit import ln_init
    a.label('L_atn')
    rt_stamp(a, stamps, 0)
    arrive(a)
    ln_init(a, 24)
    MC, MM = 16, 20
    sH, sC, sKm, sOo = 45, 47, 48, 51
    a.i(f's_lshl_b32 s{sH}, s{sIDX}, 2')
    a.i(f's_add_u32 s{sH}, s{sH}, s{sW}')
    a.i(f's_mov_b32 s{sC}, {hex(f2u(128 ** -0.5 * math.log2(math.e)))}')
    a.i('v_and_b32 v40, 15, v0')
    a.i('v_lshrrev_b32 v41, 4, v0')
    a.i('v_lshlrev_b32 v41, 2, v41')
    a.i('v_mov_b32 v42, 0xff800000')
    for r in range(4):
        a.i(f'v_add_u32 v43, {r}, v41')
        a.i('v_cmp_gt_u32 vcc, v43, v40')
        a.i(f'v_cndmask_b32 v{MC + r}, 0, v42, vcc')
    a.i('v_cmp_lt_u32 vcc, 31, v0')
    for r in range(4):
        a.i(f'v_cndmask_b32 v{MM + r}, 0, v42, vcc')
    bits(a, vFa, 0, [(0, 3, 9), (2, 1, 16)], 40)
    a.i(f's_lshl_b32 s28, s{sH}, 11')
    a.i(f's_add_u32 s28, s28, {F_Q + 4}')
    a.i(f'v_add_u32 v{vFa}, s28, v{vFa}')
    a.i(f's_lshl_b32 s{sFp}, s{sH}, 9')
    a.i(f's_add_u32 s28, s{sFp}, {F_KVM}')
    a.i('v_mov_b32 v40, s28')
    a.i(f'v_cndmask_b32 v{vFa}, v{vFa}, v40, vcc')
    bits(a, vKm, 0, [(0, 7, 4), (4, 3, 7)], 40)
    bits(a, vVm, 0, [(0, 31, 4)], 40)
    a.i(f'v_lshlrev_b32 v{vLn}, 4, v0')
    a.i(f's_lshl_b32 s{sFn}, s{sL}, 8')
    a.i(f's_add_u32 s{sFp}, s{sFp}, s{sFn}')
    a.i(f's_add_u32 s{sFp}, s{sFp}, {F_O}')
    a.i(f'v_subrev_u32 v{vT}, 4, v{vFa}')
    a.i(f's_mul_i32 s{sIn}, s{sL}, {64 * QKV_UNIT}')
    a.i(f's_mul_i32 s28, s{sH}, 24576')
    a.i(f's_add_u32 s{sIn}, s{sIn}, s28')
    a.i(f's_add_u32 s{sIn}, s{sIn}, {QKV}')
    a.i(f's_mul_i32 s{sKm}, s{sL}, {64 * KVM_UNIT}')
    a.i(f's_lshl_b32 s28, s{sH}, 12')
    a.i(f's_add_u32 s{sKm}, s{sKm}, s28')
    a.i(f's_add_u32 s{sKm}, s{sKm}, {KVM}')
    a.i(f's_mul_i32 s{sOo}, s{sL}, {64 * O_UNIT}')
    a.i(f's_add_u32 s{sOo}, s{sOo}, s28')
    a.i(f's_add_u32 s{sOo}, s{sOo}, {OB}')
    a.i(f's_mov_b32 s{sS}, 0')
    Q, K, V, OX, KM, VM, S, P, M = 24, 56, 88, 120, 184, 200, 216, 228, 240
    mx, lx, t0, t1, al = M, M + 2, M + 4, M + 6, M + 8
    a.i(f'v_mov_b32 v{P + 2}, 0')
    a.i(f'v_mov_b32 v{P + 3}, 0')
    rt_stamp(a, stamps, 1, 40)

    def qkv_loads():
        for n in range(24):
            if n % 4 == 0:
                a.i(f's_add_u32 s28, s{sIn}, {n * 1024}')
            a.i(f'buffer_load_dwordx4 {R(Q + 4 * n, 4)}, v{vLn}, {WS}, s28 offen offset:{(n & 3) * 1024} sc1')
        a.i(f's_add_u32 s{sIn}, s{sIn}, {QKV_UNIT}')

    def both(fn):
        for ins in zip(fn(0), fn(1)):
            for x in ins:
                if x:
                    a.i(x)

    def xl(op, r, t):
        out = []
        for sw in (16, 32):
            out += [f'v_mov_b32 v{t}, v{r}', f'v_permlane{sw}_swap_b32 v{r}, v{t}', f'{op} v{r}, v{r}, v{t}']
        return out
    l = spin_head(a, 13)
    a.i(f'buffer_load_dword v{vFl}, v{vT}, {WS}, s{sFn} offen sc1')
    a.i(f'v_cmp_eq_u32 vcc, 0, v{vFl}')
    a.i('s_cmp_lg_u32 vcc_lo, 0')
    a.i(f's_cbranch_scc1 {l}', nohaz=True)
    qkv_loads()
    vm0 = list(a.vm)
    a.out.append('L_atn_loop:')
    stamp(a, stamps, 0)
    for kb in range(4):
        a.mfma(S, K + 8 * kb, Q + 8 * kb, MC if kb == 0 else S)
        a.mfma(S + 4, K + 8 * kb, Q + 8 * kb + 4, None if kb == 0 else S + 4)
        a.mfma(S + 8, K + 8 * kb + 4, Q + 8 * kb + 4, MC if kb == 0 else S + 8)
    a.i(f'v_max3_f32 v{mx}, v{S}, v{S + 1}, v{S + 2}')
    a.i(f'v_max3_f32 v{mx + 1}, v{S + 4}, v{S + 5}, v{S + 6}')
    a.i(f'v_max_f32 v{mx}, v{S + 3}, v{mx}')
    a.i(f'v_max3_f32 v{mx + 1}, v{S + 7}, v{S + 8}, v{mx + 1}')
    a.i(f'v_max3_f32 v{mx + 1}, v{S + 9}, v{S + 10}, v{mx + 1}')
    a.i(f'v_max_f32 v{mx + 1}, v{S + 11}, v{mx + 1}')
    both(lambda q: xl('v_max_f32', mx + q, t1 + q) + [f'v_mul_f32 v{mx + q}, s{sC}, v{mx + q}'])
    for x in range(12):
        a.i(f'v_fma_f32 v{S + x}, v{S + x}, s{sC}, -v{mx + (x >= 4)}')
    for x in range(12):
        a.i(f'v_exp_f32 v{S + x}, v{S + x}')
    for x in range(6):
        a.i(f'v_cvt_pk_bf16_f32 v{P + x + (2 if x >= 2 else 0)}, v{S + 2 * x}, v{S + 2 * x + 1}')
    adds = [f'v_add_f32 v{lx}, v{S}, v{S + 1}', f'v_add_f32 v{lx + 1}, v{S + 4}, v{S + 5}']
    adds += [f'v_add_f32 v{lx}, v{lx}, v{S + x}' for x in (2, 3)] + [f'v_add_f32 v{lx + 1}, v{lx + 1}, v{S + x}' for x in range(6, 12)]
    for d in range(8):
        for q in range(2):
            a.mfma(OX + 32 * q + 4 * d, V + 4 * d, P + 4 * q, None)
            if adds:
                a.i(adds.pop(0))
    stamp(a, stamps, 1)
    l = spin_head(a, 14)
    poll(a)
    a.i(f'v_cmp_eq_u32 vcc, 0, v{vFl}')
    a.i('s_cmp_lg_u32 vcc_hi, 0')
    a.i(f's_cbranch_scc1 {l}', nohaz=True)
    for kb in range(4):
        a.i(f'buffer_load_dwordx4 {R(KM + 4 * kb, 4)}, v{vKm}, {WS}, s{sKm} offen offset:{kb * 512} sc1')
    for kb in range(4):
        a.i(f'buffer_load_dwordx4 {R(VM + 4 * kb, 4)}, v{vVm}, {WS}, s{sKm} offen offset:{2048 + kb * 512} sc1')
    a.i('s_cmp_eq_u32 vcc_lo, 0')
    a.i('s_cselect_b64 vcc, 1, 0')
    a.i(f's_cmp_eq_u32 s{sS}, 63')
    a.i('s_cselect_b64 vcc, 0, vcc')
    a.i(f's_add_u32 s{sKm}, s{sKm}, {KVM_UNIT}')
    order = list(range(8, 16)) + list(range(0, 8)) + list(range(16, 24))

    def ld(n):
        a.i(f's_add_u32 s28, s{sIn}, {n * 1024}')
        a.i(f'buffer_load_dwordx4 {R(Q + 4 * n, 4)}, v{vLn}, {WS}, s28 offen sc1')

    def bulk(cnt=1):
        l = a.new('L_sk')
        vm, lg = list(a.vm), list(a.lg)
        a.i(f's_cbranch_vccz {l}', nohaz=True)
        for _ in range(cnt):
            ld(order.pop(0))
        a.out.append(l + ':')
        a.vm, a.lg = vm, lg
    a.i('s_cbranch_vccz L_atn_w0', nohaz=True)
    for _ in range(6):
        ld(order.pop(0))
    a.waitcnt(vm=6)
    a.i('s_branch L_atn_w1', nohaz=True)
    a.out.append('L_atn_w0:')
    a.waitcnt(vm=0)
    a.out.append('L_atn_w1:')
    stamp(a, stamps, 2)
    for kb in range(4):
        for q in range(2):
            a.mfma(S + 4 * q, KM + 4 * kb, Q + 8 * kb + 4 * q, MM if kb == 0 else S + 4 * q)
    bulk(2)
    stamp(a, stamps, 3)
    PM = S + 8

    def post(q):
        s, m, t, A = S + 4 * q, t0 + q, t1 + q, al + 2 * q
        return ([f'v_max3_f32 v{m}, v{s}, v{s + 1}, v{s + 2}', f'v_max_f32 v{m}, v{s + 3}, v{m}'] + xl('v_max_f32', m, t)
                + [f'v_mul_f32 v{m}, s{sC}, v{m}', f'v_max_f32 v{m}, v{m}, v{mx + q}', f'v_sub_f32 v{A}, v{mx + q}, v{m}']
                + [f'v_fma_f32 v{s + x}, v{s + x}, s{sC}, -v{m}' for x in range(4)]
                + [f'v_exp_f32 v{A}, v{A}'] + [f'v_exp_f32 v{s + x}, v{s + x}' for x in range(4)]
                + [f'v_fma_f32 v{m}, v{lx + q}, v{A}, v{s}', f'v_add_f32 v{t}, v{s + 1}, v{s + 2}',
                   f'v_add_f32 v{m}, v{m}, v{s + 3}', f'v_add_f32 v{m}, v{m}, v{t}'] + xl('v_add_f32', m, t)
                + [f'v_rcp_f32 v{m}, v{m}', f'v_mul_f32 v{A}, v{m}, v{A}']
                + [f'v_mul_f32 v{s + x}, v{m}, v{s + x}' for x in range(4)]
                + [f'v_mov_b32 v{A + 1}, v{A}', f'v_cvt_pk_bf16_f32 v{PM + 2 * q}, v{s}, v{s + 1}',
                   f'v_cvt_pk_bf16_f32 v{PM + 2 * q + 1}, v{s + 2}, v{s + 3}'])
    for ix, ins in enumerate(zip(post(0), post(1))):
        for x in ins:
            a.i(x)
        if ix % 10 == 4:
            bulk()
    a.i(f's_add_u32 s60, s{sOo}, {O_UNIT // 2}')
    for n in range(19):
        if n < 16:
            o = OX + 4 * n
            for x in (0, 2):
                a.i(f'v_pk_mul_f32 {R(o + x, 2)}, {R(o + x, 2)}, {R(al + 2 * (n >> 3), 2)}')
        if 1 <= n <= 16:
            o = OX + 4 * (n - 1)
            a.mfma(o, VM + 2 * ((n - 1) & 7), PM + 2 * ((n - 1) >> 3), o, k=16)
        if n % 4 == 1:
            bulk()
        if n >= 4 and n % 2 == 0:
            f = (n - 4) // 2
            o = OX + 8 * f
            for x in range(4):
                a.i(f'v_cvt_pk_bf16_f32 v{o + x}, v{o + 2 * x}, v{o + 2 * x + 1}')
            a.i(f'buffer_store_dwordx4 {R(o, 4)}, v{vLn}, {WS}, s{sOo if f < 4 else 60} offen offset:{(f & 3) * 1024} sc1', tag='o')
    stamp(a, stamps, 4)
    a.i(f's_add_u32 s{sOo}, s{sOo}, {O_UNIT}')
    a.i('s_cbranch_vccz L_atn_slow', nohaz=True)
    print('atn: loads left after stores', len(order))
    while order:
        ld(order.pop(0))
    a.wait_tag('o')
    a.i('s_mov_b64 exec, 1')
    a.i(f'buffer_store_dword v{vFa}, off, {WS}, s{sFp} sc1')
    a.i('s_mov_b64 exec, -1')
    a.i(f's_add_u32 s{sIn}, s{sIn}, {QKV_UNIT}')
    a.i('s_branch L_atn_adv')
    a.label('L_atn_slow')
    a.waitcnt(vm=0)
    a.i('s_mov_b64 exec, 1')
    a.i(f'buffer_store_dword v{vFa}, off, {WS}, s{sFp} sc1')
    a.i('s_mov_b64 exec, -1')
    a.i(f's_cmp_eq_u32 s{sS}, 63')
    a.i('s_cbranch_scc1 L_atn_done')
    l = spin_head(a, 15)
    poll(a)
    a.i(f'v_cmp_eq_u32 vcc, 0, v{vFl}')
    a.i('s_cmp_lg_u32 vcc_lo, 0')
    a.i(f's_cbranch_scc1 {l}', nohaz=True)
    qkv_loads()
    a.label('L_atn_adv')
    stamp(a, stamps, 5)
    stamp_flush(a, stamps, 6, sS, KM)
    a.i(f's_add_u32 s{sFp}, s{sFp}, 4')
    a.i(f's_add_u32 s{sFn}, s{sFn}, 4')
    a.i(f's_add_u32 s{sS}, s{sS}, 1')
    a.i('s_branch L_atn_loop')
    a.label('L_atn_done')
    rt_stamp(a, stamps, 2, 40)
    a.i('s_endpgm')
```

```python
MB = 1 << 20
UNIT = 32 * 576 * 2
F_NA = 0
F_NB = 32 * 1024
F_CR = 320 * 1024
F_KVM = 64 * 1024
F_Q = 128 * 1024
F_KV = 192 * 1024
F_H = 256 * 1024
F_O = 96 * 1024
F_HOLD = 112 * 1024
FLAG_BYTES = 512 * 1024
NA = 1 * MB
NB = 6 * MB
YB = 11 * MB
X2 = 16 * MB
CRS = 19 * MB
CAG = 20 * MB
PRS = 232 * MB
STAMP = 27 * MB
KVM = 32 * MB
HB = 50 * MB
OB = 90 * MB
QKV = 128 * MB
WS_BYTES = 268435456
CRS_L = 72 * 4096
CAG_SLOT = 9216
CAG_L = 32768
PRS_SLOT = 16 * UNIT
H_UNIT = 2 * 144 * 1024
O_UNIT = 2 * 128 * 1024
QKV_UNIT = 32 * 24576
KVM_UNIT = 32 * 4096
OOB = 0x40000000
K_X, K_MEM0, K_WQ, K_WK, K_WV, K_WO, K_SEG, K_BX, K_WG, K_WU, K_WD, K_OUT, K_DBG, K_WS = [8 * i for i in range(14)]
```

```python
import math
from common import *
from chain import f2u

vLn, vXe, vXo, vFa, vFl, vT = 0, 1, 2, 3, 4, 5
vD9 = 6
sS, sPre, sSrc, sFn, sLb, sW1k, sW9k, sOut, sFp, sFq, sPq = range(30, 41)
sDx = 44
XB = UNIT


def publish(a, sflag, vnz=vXo):
    a.i('s_mov_b64 exec, 1')
    a.i(f'buffer_store_dword v{vnz}, off, {WS}, s{sflag} sc1')
    a.i('s_mov_b64 exec, -1')


def x_setup(a, nbase, fbase, t0, t1, t2):
    dma_voff_72(a, vD9, SWZ['x'], t0, t1, t2)
    a.i(f'v_and_b32 v{t0}, 15, v0')
    a.i(f'v_bfe_u32 v{t1}, v0, 1, 3')
    a.i(f'v_lshrrev_b32 v{t2}, 4, v0')
    a.i(f'v_xor_b32 v{t1}, v{t1}, v{t2}')
    a.i(f'v_mul_u32_u24 v{t0}, 1152, v{t0}')
    a.i(f'v_lshl_add_u32 v{vXe}, v{t1}, 4, v{t0}')
    a.i(f'v_xor_b32 v{t1}, 4, v{t1}')
    a.i(f'v_lshl_add_u32 v{vXo}, v{t1}, 4, v{t0}')
    a.i(f'v_and_b32 v{vFa}, 15, v0')
    a.i(f'v_lshlrev_b32 v{vFa}, 9, v{vFa}')
    a.i(f's_mul_i32 s{sSrc}, s{sL}, {64 * UNIT}')
    a.i(f's_add_u32 s{sSrc}, s{sSrc}, {nbase}')
    a.i(f's_lshl_b32 s{sFn}, s{sW}, 13')
    a.i(f's_lshl_b32 s28, s{sL}, 8')
    a.i(f's_add_u32 s{sFn}, s{sFn}, s28')
    a.i(f's_add_u32 s{sFn}, s{sFn}, {fbase}')
    a.i(f's_mov_b32 s{sLb}, s{sW9k}')
    a.i(f's_mov_b32 s{sS}, 0')
    a.i(f's_mov_b32 s{sDx}, {XB}')
    a.i(f's_mov_b64 s[{sPq}:{sPq + 1}], 0')
    a.i(f'v_lshlrev_b32 v{vLn}, 4, v0')


def x_poll(a):
    a.i(f'buffer_load_dword v{vFl}, v{vFa}, {WS}, s{sFn} offen sc1')


def x_dma(a):
    for n in range(9):
        a.i(f's_add_u32 m0, s{sLb}, {n * 1024}')
        a.i(f'buffer_load_dwordx4 v{vD9 + n}, {WS}, s{sSrc} offen sc1 lds', tag='x')
    x_adv(a)


def x_adv(a):
    a.i(f's_add_u32 s{sSrc}, s{sSrc}, {UNIT}')
    a.i(f's_add_u32 s{sFn}, s{sFn}, 4')
    a.i(f's_add_u32 s28, s{sW9k}, {XB}')
    a.i(f's_cmp_eq_u32 s{sLb}, s{sW9k}')
    a.i(f's_cselect_b32 s{sLb}, s28, s{sW9k}')


def x_spread(a, side, pfx, k_flag, k_poll, k_chk, k_dma, step):
    def flag():
        a.waitcnt(vm=0)
        a.i(f's_mov_b64 exec, s[{sPq}:{sPq + 1}]')
        a.i(f'buffer_store_dword v{vXo}, off, {WS}, s{sFq} sc1')
        a.vm.pop()
        a.i('s_mov_b64 exec, -1')
        a.i(f's_add_u32 s{sFq}, s{sFq}, 4')
    side.setdefault(k_flag, []).append(flag)
    side.setdefault(k_poll, []).append(lambda: x_poll(a))

    def chk():
        a.i(f'v_cmp_eq_u32 vcc, 0, v{vFl}')
        a.i('s_cmp_eq_u64 vcc, 0')
        a.i('s_cselect_b64 vcc, 1, 0')
        a.i(f's_cmp_eq_u32 s{sS}, 63')
        a.i('s_cselect_b64 vcc, 0, vcc')
        a.i(f's_mov_b32 s{sPre}, vcc_lo')
    side.setdefault(k_chk, []).append(chk)
    for n in range(9):
        def f(n=n):
            l = a.new('L_sk')
            vm, lg = list(a.vm), list(a.lg)
            a.i(f's_cbranch_vccz {l}', nohaz=True)
            a.i(f's_add_u32 m0, s{sLb}, {n * 1024}')
            a.i(f'buffer_load_dwordx4 v{vD9 + n}, {WS}, s{sSrc} offen sc1 lds')
            if n == 8:
                x_adv(a)
            a.out.append(l + ':')
            a.vm, a.lg = vm, lg
            if n == 8:
                a.join_vm_tag('x')
        side.setdefault(k_dma + n * step, []).append(f)


def x_block(a, code):
    l = spin_head(a, code)
    x_poll(a)
    a.i(f'v_cmp_eq_u32 vcc, 0, v{vFl}')
    a.i(f's_cbranch_vccnz {l}', nohaz=True)
    x_dma(a)


def x_next(a, pfx, code, late_publish, extra=()):
    a.i(f's_cmp_eq_u32 s{sPre}, 1')
    a.i(f's_cbranch_scc1 {pfx}_pre', nohaz=True)
    vm = list(a.vm)
    a.waitcnt(vm=0)
    late_publish()
    a.i(f's_mov_b64 s[{sPq}:{sPq + 1}], 0')
    a.i(f's_cmp_eq_u32 s{sS}, 63')
    a.i(f's_cbranch_scc1 {pfx}_done')
    x_block(a, code)
    a.waitcnt(vm=0)
    a.i(f's_branch {pfx}_go')
    a.out.append(f'{pfx}_pre:')
    a.vm = vm
    a.wait_tag('x')
    a.i(f's_mov_b64 s[{sPq}:{sPq + 1}], 1')
    a.label(f'{pfx}_go')
    a.i(f's_add_u32 s{sS}, s{sS}, 1')
    for r in (vXe, vXo) + tuple(extra):
        a.i(f'v_add_u32 v{r}, s{sDx}, v{r}')
    a.i(f's_sub_u32 s{sDx}, 0, s{sDx}')
    a.i(f's_branch {pfx}_loop')


def xread(a, dst, rt, j):
    a.i(f'ds_read_b128 {R(dst, 4)}, v{(vXe, vXo)[j & 1]} offset:{(j >> 1) * 128 + rt * 18432}')


def stage256(a, mats, gpitch, scol, W, qk_style):
    vq, a0, a1, aq, tA = 20, 21, 22, 23, 24
    sw = SWZ['p2', 'nat']
    dma_voff_pow2(a, vq, 16, gpitch, sw, 30, 31)
    a.i(f's_lshl_b32 s62, s{sW}, 2')

    def u_qk(t):
        a.i(f'v_and_b32 v{t}, 3, v0')
        a.i(f'v_add_u32 v{t}, s62, v{t}')

    def u_nat(add):
        def f(t):
            a.i(f'v_bfe_u32 v{t}, v0, 1, 1')
            a.i(f'v_add_u32 v{t}, s62, v{t}')
            if add:
                a.i(f'v_add_u32 v{t}, {add}, v{t}')
        return f

    def sub8(t):
        a.i(f'v_and_b32 v{t}, 1, v0')
        a.i(f'v_lshlrev_b32 v{t}, 3, v{t}')
    tr_addr(a, aq, 256, 'nat', sw, u_qk, None, 30, 31)
    tr_addr(a, a0, 256, 'nat', sw, u_nat(0), sub8, 30, 31)
    tr_addr(a, a1, 256, 'nat', sw, u_nat(2), sub8, 30, 31)
    ds = DsAddr(a, tA)
    chunks = [(m, h) for m in mats for h in range(2)]

    def issue(c):
        (m, karg, nb), h = chunks[c]
        srd(a, 8, karg, nb)
        for bi in range(9):
            for hh in range(2):
                dma(a, vq, WT, sW1k, (BUF0, BUF1)[c & 1] + bi * 8192 + hh * 4096, scol, (32 * (9 * h + bi) + 16 * hh) * gpitch)
    issue(0)
    issue(1)
    for c in range(len(chunks)):
        a.waitcnt(vm=18 if c + 1 < len(chunks) else 0)
        a.i('s_barrier')
        (m, _, _), h = chunks[c]
        for bi in range(9):
            for b in range(2):
                ar, o = (aq, 8 * b) if m in qk_style else ((a0, a1)[b], 0)
                tr_frag(a, ds, W[(m, b, 9 * h + bi)], ar, (BUF0, BUF1)[c & 1] + bi * 8192 + o, 256, 'nat')
        a.barrier()
        if c + 2 < len(chunks):
            issue(c + 2)


def proj(a, stamps=False):
    a.label('L_proj')
    rt_stamp(a, stamps, 0)
    arrive(a)
    W = {}
    for m in 'kvq':
        for j in range(18):
            for b in range(2):
                W[(m, b, j)] = 80 + 4 * len(W)
    a.i(f's_lshl_b32 s{sW1k}, s{sW}, 10')
    a.i(f's_mul_i32 s{sW9k}, s{sW}, 9216')
    a.i(f's_lshl_b32 s61, s{sIDX}, 8')
    nb = 576 * 4096 * 2
    stage256(a, [('k', K_WK, nb), ('v', K_WV, nb), ('q', K_WQ, nb)], 8192, 61, W, 'qk')
    x_setup(a, NA, F_NA, 30, 31, 32)
    a.i(f's_mul_i32 s{sOut}, s{sL}, {64 * QKV_UNIT}')
    a.i(f's_mul_i32 s28, s{sIDX}, 24576')
    a.i(f's_add_u32 s{sOut}, s{sOut}, s28')
    a.i(f's_lshl_b32 s28, s{sW}, 11')
    a.i(f's_add_u32 s{sOut}, s{sOut}, s28')
    a.i(f's_add_u32 s{sOut}, s{sOut}, {QKV}')
    a.i(f's_lshl_b32 s{sFp}, s{sIDX}, 11')
    a.i(f's_lshl_b32 s28, s{sW}, 9')
    a.i(f's_add_u32 s{sFp}, s{sFp}, s28')
    a.i(f's_lshl_b32 s28, s{sL}, 8')
    a.i(f's_add_u32 s{sFp}, s{sFp}, s28')
    a.i(f's_add_u32 s{sFq}, s{sFp}, {F_Q - 4}')
    a.i(f's_add_u32 s{sFp}, s{sFp}, {F_KV}')
    wait_init(a, 30)
    rt_stamp(a, stamps, 1, 30)
    x_block(a, 5)
    a.waitcnt(vm=0)
    KA, VA, QA, RG = 16, 32, 48, 64
    a.label('L_proj_loop')
    a.i('s_barrier')
    stamp(a, stamps, 0)
    r1 = [RG, RG + 4, RG + 8, RG + 12, QA, QA + 4]
    for n in range(6):
        xread(a, r1[n], n & 1, n >> 1)
    r2 = [RG, RG + 4, RG + 8, RG + 12, KA + 4, KA + 12]
    side = {}
    x_spread(a, side, 'L_proj', 40, 84, 124, 126, 2)
    k = 0
    for j in range(18):
        for rt in range(2):
            n = 2 * j + rt
            x = r1[n % 6]
            for b in range(2):
                acc = KA + 8 * rt + 4 * b
                a.mfma(acc, W[('k', b, j)], x, None if j == 0 else acc)
                acc = VA + 8 * b + 4 * rt
                a.mfma(acc, x, W[('v', b, j)], None if j == 0 else acc)
                for f in side.get(k, []):
                    f()
                k += 2
            if n + 6 < 36:
                xread(a, x, (n + 6) & 1, (n + 6) >> 1)
            elif x in r2[:4]:
                m = r2.index(x)
                xread(a, x, m & 1, m >> 1)
    stamp(a, stamps, 1)
    pend = []
    a.i(f's_add_u32 s60, s{sOut}, 8192')
    a.i(f's_add_u32 s61, s{sOut}, 16384')
    for gi, (base, so) in enumerate(((KA, 60), (KA + 8, 60), (VA, 61), (VA + 8, 61))):
        for x in range(4):
            pend.append(f'v_cvt_pk_bf16_f32 v{base + x}, v{base + 2 * x}, v{base + 2 * x + 1}')
        pend.append(f'buffer_store_dwordx4 {R(base, 4)}, v{vLn}, {WS}, s{so} offen offset:{(gi & 1) * 1024} sc1')
        if gi == 1:
            pend.append(('rd', 4))
            pend.append(('rd', 5))
    for n in range(36):
        j, rt = n >> 1, n & 1
        x = r2[n % 6]
        for b in range(2):
            acc = QA + 8 * rt + 4 * b
            a.mfma(acc, W[('q', b, j)], x, None if j == 0 else acc)
            if n >= 1:
                for _ in range(2):
                    if pend:
                        p = pend.pop(0)
                        if isinstance(p, tuple):
                            xread(a, r2[p[1]], p[1] & 1, p[1] >> 1)
                        else:
                            a.i(p, tag='kv')
        if n + 6 < 36:
            xread(a, x, (n + 6) & 1, (n + 6) >> 1)
    a.wait_tag('kv')
    publish(a, sFp)
    a.i(f's_add_u32 s{sFp}, s{sFp}, 4')
    for rt in range(2):
        base = QA + 8 * rt
        for x in range(4):
            a.i(f'v_cvt_pk_bf16_f32 v{base + x}, v{base + 2 * x}, v{base + 2 * x + 1}')
        a.i(f'buffer_store_dwordx4 {R(base, 4)}, v{vLn}, {WS}, s{sOut} offen offset:{rt * 1024} sc1')
    a.i(f's_add_u32 s{sOut}, s{sOut}, {QKV_UNIT}')
    stamp(a, stamps, 2)
    stamp_flush(a, stamps, 3, sS, KA)
    x_next(a, 'L_proj', 6, lambda: publish(a, sFq))
    a.label('L_proj_done')
    rt_stamp(a, stamps, 2, 30)
    a.i('s_endpgm')


def ln_init(a, add=0):
    X, F, t = 16, 64, 140
    srd(a, 12, K_X, 2048 * 1152)
    a.i(f's_lshl_b32 s60, s{sL}, 5')
    a.i(f's_add_u32 s60, s60, s{sIDX}')
    a.i(f's_add_u32 s60, s60, {add}')
    a.i(f's_mul_i32 s61, s60, {UNIT}')
    a.i(f's_mul_i32 s28, s{sW}, 9216')
    a.i(f's_add_u32 s61, s61, s28')
    a.i(f'v_lshrrev_b32 v{t}, 3, v0')
    a.i(f'v_mul_u32_u24 v{t}, 1152, v{t}')
    a.i(f'v_and_b32 v{t + 1}, 7, v0')
    a.i(f'v_lshl_add_u32 v{t}, v{t + 1}, 4, v{t}')
    for i in range(9):
        a.i(f'buffer_load_dwordx4 {R(X + 4 * i, 4)}, v{t}, {IO}, s61 offen offset:{i * 128}')
    for d in range(36):
        a.i(f'v_lshlrev_b32 v{F + 2 * d}, 16, v{X + d}')
        a.i(f'v_and_b32 v{F + 2 * d + 1}, 0xffff0000, v{X + d}')
    s_, q_ = t + 2, t + 3

    def red(r):
        for m in ('quad_perm:[1,0,3,2]', 'quad_perm:[2,3,0,1]', 'row_half_mirror'):
            a.i(f'v_add_f32_dpp v{r}, v{r}, v{r} {m} row_mask:0xf bank_mask:0xf')
    a.i(f'v_add_f32 v{s_}, v{F}, v{F + 1}')
    for d in range(2, 72):
        a.i(f'v_add_f32 v{s_}, v{s_}, v{F + d}')
    red(s_)
    a.i(f'v_mul_f32 v{s_}, {hex(f2u(1 / 576))}, v{s_}')
    for d in range(72):
        a.i(f'v_sub_f32 v{F + d}, v{F + d}, v{s_}')
    a.i(f'v_mul_f32 v{q_}, v{F}, v{F}')
    for d in range(1, 72):
        a.i(f'v_fmac_f32 v{q_}, v{F + d}, v{F + d}')
    red(q_)
    a.i(f'v_mov_b32 v{s_}, {hex(f2u(1e-5))}')
    a.i(f'v_fmac_f32 v{s_}, {hex(f2u(1 / 576))}, v{q_}')
    a.i(f'v_rsq_f32 v{s_}, v{s_}')
    for d in range(72):
        a.i(f'v_mul_f32 v{F + d}, v{F + d}, v{s_}')
    for d in range(36):
        a.i(f'v_cvt_pk_bf16_f32 v{X + d}, v{F + 2 * d}, v{F + 2 * d + 1}')
    a.i(f's_add_u32 s61, s61, {NA}')
    for i in range(9):
        a.i(f'buffer_store_dwordx4 {R(X + 4 * i, 4)}, v{t}, {WS}, s61 offen offset:{i * 128} sc1')
    wait_init(a, t + 1)
    a.i(f'v_and_b32 v{t}, 15, v0')
    a.i(f'v_lshlrev_b32 v{t}, 9, v{t}')
    a.i(f's_lshl_b32 s61, s{sW}, 13')
    a.i('s_lshl_b32 s60, s60, 2')
    a.i('s_add_u32 s61, s61, s60')
    a.i(f'v_mov_b32 v{t + 1}, 1')
    a.i('s_mov_b64 exec, 0xffff')
    a.i(f'buffer_store_dword v{t + 1}, v{t}, {WS}, s61 offen offset:{F_NA} sc1')
    a.i('s_mov_b64 exec, -1')


def geglu(g, u, t, vc0, sc1):
    return [f'v_mul_f32 v{t}, v{g}, v{g}',
            f'v_fma_f32 v{t}, v{t}, s{sc1}, v{vc0}',
            f'v_mul_f32 v{t}, v{t}, v{g}',
            f'v_exp_f32 v{t}, v{t}',
            f'v_mul_f32 v{g}, v{g}, v{u}',
            f'v_add_f32 v{t}, 1.0, v{t}',
            f'v_rcp_f32 v{t}, v{t}',
            f'v_mul_f32 v{g}, v{g}, v{t}']


def up(a, stamps=False):
    a.label('L_up')
    rt_stamp(a, stamps, 0)
    arrive(a)
    a.i(f's_lshl_b32 s{sW1k}, s{sW}, 10')
    a.i(f's_mul_i32 s{sW9k}, s{sW}, 9216')
    ln_init(a)
    W = {}
    for j in range(36):
        for b in range(3):
            W[(b, j)] = 80 + 4 * len(W)
    v3, at, tA = 20, 23, 26
    sw = SWZ['p1', 'nat']
    dma_voff_72(a, v3, sw, 30, 31, 32, upr=24, gpitch=9216)
    a.i(f's_mul_i32 s62, s{sW}, 6')
    bits(a, 30, 0, [(2, 3, 0), (5, 1, 3)], 31)
    bits(a, 32, 30, sw, 31)
    a.i('v_mul_u32_u24 v30, 384, v30')
    a.i('v_bfe_u32 v31, v0, 4, 1')
    a.i('v_mul_u32_u24 v31, 36864, v31')
    a.i('v_add_u32 v30, v30, v31')
    a.i('v_and_b32 v31, 2, v0')
    a.i('v_lshl_add_u32 v30, v31, 2, v30')
    for b in range(3):
        a.i('v_and_b32 v31, 1, v0')
        a.i('v_add_u32 v31, s62, v31')
        a.i(f'v_add_u32 v31, {2 * b}, v31')
        a.i('v_xor_b32 v31, v31, v32')
        a.i(f'v_lshl_add_u32 v{at + b}, v31, 4, v30')
    ds = DsAddr(a, tA)
    a.i(f's_mul_i32 s60, s{sW}, 3072')
    a.i(f's_mul_i32 s61, s{sIDX}, 384')

    def issue(c):
        for mi, karg in enumerate((K_WG, K_WU)):
            srd(a, 8, karg, 576 * 4608 * 2)
            for bi in range(3):
                for k in range(3):
                    dma(a, v3 + k, WT, 60, (BUF0, BUF1)[c & 1] + mi * 36864 + bi * 12288 + k * 1024, 61, 32 * (3 * c + bi) * 9216)
    issue(0)
    issue(1)
    for c in range(6):
        a.waitcnt(vm=18 if c < 5 else 0)
        a.i('s_barrier')
        for b in range(3):
            for jj in range(6):
                tr_frag(a, ds, W[(b, 6 * c + jj)], at + b, (BUF0, BUF1)[c & 1] + jj * 6144, 384, 'nat')
        a.barrier()
        if c + 2 < 6:
            issue(c + 2)
    vC0, vX2, vX3, vH, sC1 = 15, 16, 17, vT, 42
    bits(a, vH, 0, [(0, 15, 4), (5, 1, 8)], 30)
    a.i('v_bfe_u32 v30, v0, 4, 1')
    a.i(f'v_mul_u32_u24 v30, {144 * 1024}, v30')
    a.i(f'v_add_u32 v{vH}, v{vH}, v30')
    a.i('v_and_b32 v33, 31, v0')
    a.i('v_mul_u32_u24 v33, 1152, v33')
    a.i('v_bfe_u32 v34, v0, 1, 3')
    a.i('v_lshrrev_b32 v35, 5, v0')
    a.i('v_xor_b32 v34, v34, v35')
    x_setup(a, NB, F_NB, 30, 31, 32)
    xa = [vXe, vXo, vX2, vX3]
    for q in range(4):
        a.i(f'v_xor_b32 v35, {2 * q}, v34')
        a.i(f'v_lshl_add_u32 v{xa[q]}, v35, 4, v33')
    c0 = -2 * math.sqrt(2 / math.pi) * math.log2(math.e)
    a.i(f'v_mov_b32 v{vC0}, {hex(f2u(c0))}')
    a.i(f's_mov_b32 s{sC1}, {hex(f2u(c0 * 0.044715))}')
    a.i(f's_mul_i32 s{sOut}, s{sL}, {64 * H_UNIT}')
    a.i(f's_add_u32 s{sOut}, s{sOut}, {HB}')
    a.i(f's_mul_i32 s28, s{sIDX}, 6144')
    a.i(f's_add_u32 s{sOut}, s{sOut}, s28')
    a.i(f's_mul_i32 s28, s{sW}, 1536')
    a.i(f's_add_u32 s{sOut}, s{sOut}, s28')
    a.i(f's_lshl_b32 s{sFq}, s{sIDX}, 11')
    a.i(f's_lshl_b32 s28, s{sW}, 9')
    a.i(f's_add_u32 s{sFq}, s{sFq}, s28')
    a.i(f's_lshl_b32 s28, s{sL}, 8')
    a.i(f's_add_u32 s{sFq}, s{sFq}, s28')
    a.i(f's_add_u32 s{sFq}, s{sFq}, {F_H - 4}')
    rt_stamp(a, stamps, 1, 30)
    x_block(a, 7)
    a.waitcnt(vm=0)
    ACC, RG, TM = 20, 52, 72
    a.label('L_up_loop')
    a.i('s_barrier')
    stamp(a, stamps, 0)

    def epi(b):
        base = ACC + 16 * (b & 1)
        ls = [geglu(base + k, base + 8 + k, TM + k, vC0, sC1) for k in range(8)]
        out = [l[st] for st in range(8) for l in ls]
        out += [f'v_cvt_pk_bf16_f32 v{base + k}, v{base + 2 * k}, v{base + 2 * k + 1}' for k in range(4)]
        return out + [f'buffer_store_dwordx4 {R(base, 4)}, v{vH}, {WS}, s{sOut} offen offset:{b * 512} sc1']

    def rd(n):
        j = n % 36
        a.i(f'ds_read_b128 {R(RG + 4 * (n % 5), 4)}, v{xa[j & 3]} offset:{(j >> 2) * 128}')
    for n in range(5):
        rd(n)
    side = {}
    x_spread(a, side, 'L_up', 20, 58, 78, 79, 1)
    pend = []
    for n in range(108):
        b, j = divmod(n, 36)
        acc = ACC + 16 * (b & 1)
        a.mfma(acc, W[(b, j)], RG + 4 * (n % 5), None if j == 0 else acc, k='big')
        if n + 5 < 108:
            rd(n + 5)
        cost = 0
        while pend and cost < 3:
            p = pend.pop(0)
            a.i(p)
            cost += 2 if p.startswith(('v_exp', 'v_rcp')) else 1
        for f in side.get(n, []):
            f()
        if b and j == 3:
            pend = epi(b - 1)
        if j == 35:
            assert not pend
    stamp(a, stamps, 1)
    for p in epi(2):
        a.i(p)
    a.i(f's_add_u32 s{sOut}, s{sOut}, {H_UNIT}')
    stamp(a, stamps, 2)
    stamp_flush(a, stamps, 3, sS, ACC + 16)
    x_next(a, 'L_up', 8, lambda: publish(a, sFq), extra=(vX2, vX3))
    a.label('L_up_done')
    rt_stamp(a, stamps, 2, 30)
    a.i('s_endpgm')
```

```python
import sys
from common import *
from chain import chain

ROLES = ('chain', 'proj', 'atn', 'oproj', 'up', 'down')
NAME = 'interleave_layers__memory_aug_recurrent_mem_tr__glu_gated_geglu__prompt'


def build(enabled=ROLES, stamps=False, noflagzero=False):
    a = Asm()
    hdr = open(f'cdna_kernels/{NAME}.s.ref').read().split('; Override launch')[0]
    a.raw(hdr.rstrip())
    a.raw('; @launch grid=(256,1,1) block=(256,1,1) lds=163840')
    a.raw('.amdgcn_target "amdgcn-amd-amdhsa--gfx950"')
    a.raw('.text')
    a.raw(f'.globl {NAME}_kernel')
    a.raw('.p2align 8')
    a.raw(f'.type {NAME}_kernel,@function')
    a.raw(f'{NAME}_kernel:')
    roles = {r: (f'L_{r}' if r in enabled else 'L_spare') for r in ROLES}
    prologue(a, roles)
    if noflagzero:
        a.out = [l for l in a.out if 'buffer_store_dwordx2 v[6:7], v4' not in l]
    if 'chain' in enabled:
        chain(a, stamps)
    try:
        import workers
        for r in ROLES[1:]:
            if r in enabled:
                getattr(workers, r)(a, stamps)
    except ImportError:
        pass
    a.raw('L_code_end:')
    a.raw('    s_endpgm')
    a.raw('.section .rodata,"a"')
    a.raw('.p2align 6')
    a.raw(f'.amdhsa_kernel {NAME}_kernel')
    for l in ('next_free_vgpr 512', 'next_free_sgpr 102', 'accum_offset 256', 'group_segment_fixed_size 0',
              'kernarg_size 112', 'user_sgpr_count 2', 'user_sgpr_kernarg_segment_ptr 1',
              'system_sgpr_workgroup_id_x 1', 'float_denorm_mode_32 3'):
        a.raw('  .amdhsa_' + l)
    a.raw('.end_amdhsa_kernel')
    return a


if __name__ == '__main__':
    out = sys.argv[1]
    en = sys.argv[2].split(',') if len(sys.argv) > 2 and sys.argv[2] != 'all' else ROLES
    opts = sys.argv[3:]
    a = build(en, stamps='stamps' in opts, noflagzero='nozero' in opts)
    open(out, 'w').write(a.text())
    print('instructions:', a.ninst, 'bytes of text:', len(a.text()))
```

```python
import re

_REG = re.compile(r'^(-|abs\()?([vas])(?:(\d+)|\[(\d+):(\d+)\])\)?$')
TRANS = ('v_exp_f32', 'v_log_f32', 'v_rcp_f32', 'v_rsq_f32', 'v_sqrt_f32', 'v_sin_f32', 'v_cos_f32')


def regs_of(tok):
    tok = tok.strip()
    if tok == 'vcc':
        return {('s', 106), ('s', 107)}
    if tok == 'exec':
        return {('s', 126), ('s', 127)}
    if tok in ('vcc_lo', 'vcc_hi', 'exec_lo', 'exec_hi', 'm0'):
        return {('s', {'vcc_lo': 106, 'vcc_hi': 107, 'exec_lo': 126, 'exec_hi': 127, 'm0': 124}[tok])}
    m = _REG.match(tok)
    if not m:
        return set()
    k = m.group(2)
    lo = int(m.group(3) if m.group(3) is not None else m.group(4))
    hi = int(m.group(3) if m.group(3) is not None else m.group(5))
    if k == 'a':
        return {('v', 256 + i) for i in range(lo, hi + 1)}
    return {(k, i) for i in range(lo, hi + 1)}


def R(n, cnt=1):
    k, b = ('v', n) if n < 256 else ('a', n - 256)
    assert b + cnt <= 256, (n, cnt)
    return f'{k}{b}' if cnt == 1 else f'{k}[{b}:{b + cnt - 1}]'


def S(n, cnt=1):
    return f's{n}' if cnt == 1 else f's[{n}:{n + cnt - 1}]'


class Ins:
    def __init__(self, text):
        self.text = text
        t = text.split(';')[0].strip()
        p = t.split(None, 1)
        self.op = p[0]
        rest = p[1] if len(p) > 1 else ''
        ops = [o.strip() for o in rest.split(',')] if rest else []
        self.mods = []
        if ops:
            last = ops[-1].split()
            ops[-1] = last[0]
            self.mods = last[1:]
        clean = []
        for o in ops:
            if ' ' in o:
                w = o.split()
                clean.append(w[0])
                self.mods += w[1:]
                break
            clean.append(o)
        self.ops = clean
        op = self.op
        rs = [regs_of(o) for o in self.ops]
        U = lambda l: set().union(*l) if l else set()
        self.kind = 'other'
        self.w, self.r = set(), set()
        self.srcC = set()
        self.srcAB = set()
        if op.startswith('v_mfma'):
            self.kind = 'mfma'
            self.w = rs[0]
            self.srcAB = rs[1] | rs[2]
            self.srcC = rs[3]
            self.r = self.srcAB | self.srcC
        elif op.startswith('v_'):
            self.kind = 'valu'
            if 'permlane' in op and 'swap' in op:
                self.w = rs[0] | rs[1]
                self.r = rs[0] | rs[1]
            else:
                self.w = rs[0]
                self.r = U(rs[1:])
                if op.startswith(('v_fmac', 'v_dot2c', 'v_pk_fmac')) or '_dpp' in op:
                    self.r |= rs[0]
        elif op.startswith('ds_'):
            self.kind = 'ds'
            if op.startswith(('ds_read', 'ds_bpermute', 'ds_swizzle')):
                self.w = rs[0]
                self.r = U(rs[1:])
            else:
                self.r = U(rs)
        elif op.startswith('buffer_'):
            self.kind = 'vmem'
            if op.startswith('buffer_load') and 'lds' not in self.mods:
                self.w = rs[0]
                self.r = U(rs[1:])
            else:
                self.r = U(rs)
                if op.startswith('buffer_atomic') and 'sc0' in self.mods:
                    self.w = rs[0]
                if 'lds' in self.mods:
                    self.r |= {('s', 124)}
        elif op.startswith('s_'):
            self.kind = 'salu'
            if op.startswith(('s_cmp', 's_bitcmp', 's_cbranch', 's_branch', 's_waitcnt', 's_nop', 's_barrier',
                              's_sleep', 's_setprio', 's_endpgm')):
                self.r = U(rs)
            else:
                self.w = rs[0] if rs else set()
                self.r = U(rs[1:])
        self.states = 1
        if op == 's_nop':
            self.states = int(self.ops[0]) + 1


def need(p, c):
    n = 0
    pv = {x for x in p.w if x[0] == 'v'}
    ps = {x for x in p.w if x[0] == 's'}
    if p.kind == 'valu':
        if c.kind == 'mfma' and pv & c.r:
            n = max(n, 2)
        if c.kind == 'valu':
            if pv & c.r:
                if 'permlane' in c.op or '_dpp' in c.op:
                    n = max(n, 2)
                if c.op.startswith(('v_readlane', 'v_readfirstlane')):
                    n = max(n, 1)
                if p.op.startswith(TRANS):
                    n = max(n, 1)
            if ps & c.r:
                n = max(n, 4 if c.op.startswith(('v_readlane', 'v_writelane')) else 2)
        if c.kind == 'vmem' and ps & c.r:
            n = max(n, 5)
        if c.kind in ('ds', 'vmem') and p.op.startswith(TRANS) and pv & c.r:
            n = max(n, 1)
        if c.kind == 'salu' and ps & c.r:
            n = max(n, 1)
    if p.kind == 'mfma':
        x = 4 if '32x32' in p.op else 0
        if c.kind == 'mfma':
            if pv & c.srcAB:
                n = max(n, 8 + x)
            if pv & c.srcC and pv != c.srcC:
                n = max(n, 6 + x)
            if pv & c.w and pv != c.srcC:
                n = max(n, 6 + x)
        elif c.kind in ('valu', 'ds', 'vmem'):
            if pv & (c.r | c.w):
                n = max(n, 8 + x)
            if p.srcC & c.w:
                n = max(n, 3 + x)
    if p.kind == 'vmem' and p.op.startswith(('buffer_store_dwordx4', 'buffer_store_dwordx3')):
        data = regs_of(p.ops[0])
        if data & c.w:
            n = max(n, 2)
    if p.kind == 'salu' and ('s', 124) in p.w and c.kind == 'vmem' and 'lds' in c.mods:
        n = max(n, 1)
    return n


def worst(p):
    if p.kind == 'mfma':
        return 12 if '32x32' in p.op else 8
    if p.kind == 'valu':
        return 5 if any(x[0] == 's' for x in p.w) else 2
    if p.kind == 'vmem' and p.op.startswith('buffer_store'):
        return 2
    if p.kind == 'salu' and ('s', 124) in p.w:
        return 1
    return 0


class Asm:
    def __init__(self):
        self.out = []
        self.hist = []
        self.vm = []
        self.lg = []
        self.uid = 0
        self.ninst = 0
        self.tail = []
        self.gap = 0
        self.batch = 0

    def raw(self, s):
        self.out.append(s)

    def c(self, s):
        self.out.append('    ; ' + s)

    def _emit(self, ins):
        self.out.append('    ' + ins.text)
        self.hist.append(ins)
        self.ninst += 1
        if ins.kind == 'mfma':
            self.gap = 0
        elif ins.kind == 'vmem':
            self.gap += 3
        elif ins.op.startswith(TRANS):
            self.gap += 2
        else:
            self.gap += ins.states
        if len(self.hist) > 16:
            self.hist.pop(0)

    def _pad(self, fn):
        d = 0
        req = 0
        for p in reversed(self.hist):
            req = max(req, fn(p) - d)
            d += p.states
            if d >= 13:
                break
        if req > 0:
            self._emit(Ins(f's_nop {req - 1}'))

    def _cnt(self, q, pred):
        for i in range(len(q) - 1, -1, -1):
            if pred(q[i]):
                return len(q) - 1 - i
        return None

    def waitcnt(self, vm=None, lg=None):
        parts = []
        if vm is not None:
            vm = min(vm, 63)
            parts.append(f'vmcnt({vm})')
            self.vm = self.vm[len(self.vm) - vm:] if vm < len(self.vm) and vm > 0 else ([] if vm == 0 else self.vm)
        if lg is not None:
            lg = min(lg, 15)
            parts.append(f'lgkmcnt({lg})')
            self.lg = self.lg[len(self.lg) - lg:] if lg < len(self.lg) and lg > 0 else ([] if lg == 0 else self.lg)
        self._emit(Ins('s_waitcnt ' + ' '.join(parts)))

    def wait_tag(self, tag):
        v = self._cnt(self.vm, lambda e: tag in e[1])
        l = self._cnt(self.lg, lambda e: tag in e[1])
        if v is not None or l is not None:
            self.waitcnt(v, l)

    def prewait(self, touched):
        v = self._cnt(self.vm, lambda e: e[0] & touched)
        l = self._cnt(self.lg, lambda e: e[0] & touched)
        if l is not None and l > self.batch + 1:
            l -= self.batch
        if v is not None or l is not None:
            self.waitcnt(v, l)

    def prewait_regs(self, *bases):
        self.prewait({('v', b + x) for b in bases for x in range(4)})

    def fill(self, low, room=2):
        while low and self.gap < room:
            p = low[0]
            if callable(p):
                low.pop(0)()
                continue
            c = 2 if p.startswith(TRANS) else 1
            if self.gap and self.gap + c > room:
                break
            self.i(low.pop(0))

    def i(self, text, tag=None, nohaz=False):
        ins = Ins(text)
        assert ins.op != 's_waitcnt', 'use waitcnt()'
        self.prewait(ins.r | ins.w)
        if ins.op.startswith(('s_cbranch', 's_branch')) and not nohaz:
            self._pad(lambda p: max(worst(p) - 1, need(p, ins)))
        else:
            self._pad(lambda p: need(p, ins))
        self._emit(ins)
        tg = {tag} if tag else set()
        if ins.kind == 'vmem':
            self.vm.append((set(ins.w), tg))
        elif ins.kind == 'ds':
            self.lg.append((set(ins.w), tg))
        elif ins.op.startswith(('s_load', 's_memrealtime', 's_memtime')):
            self.lg.append((set(ins.w), tg | {'smem'}))
            vm = self.vm
            self.join()
            self.vm = vm

    def join(self):
        for name in ('vm', 'lg'):
            q = getattr(self, name)
            if q:
                regs = set().union(*[e[0] for e in q])
                tags = set().union(*[e[1] for e in q])
                setattr(self, name, [(regs, tags)])

    def join_vm_tag(self, tag):
        if self.vm:
            self.vm[-1] = (self.vm[-1][0], self.vm[-1][1] | {tag})
        else:
            self.vm = [(set(), {tag})]

    def label(self, name):
        self.join()
        self.out.append(name + ':')

    def new(self, p='L'):
        self.uid += 1
        return f'{p}_{self.uid}'

    def barrier(self, lg=0):
        if lg is not None and self.lg:
            self.waitcnt(lg=lg)
        self.i('s_barrier')

    def prof(self, marks):
        self.pm, self.pk = list(marks), 0

    def mfma(self, d, a, b, c, k=32):
        if getattr(self, 'pm', None) is not None:
            if self.pk in self.pm:
                ix = self.pm.index(self.pk)
                self._emit(Ins(f's_memtime s[{80 + 2 * ix}:{81 + 2 * ix}]'))
            self.pk += 1
        if k == 'big':
            self.i(f'v_mfma_f32_32x32x16_bf16 {R(d, 16)}, {R(a, 4)}, {R(b, 4)}, {"0" if c is None else R(c, 16)}')
            return
        n = 4 if k == 32 else 2
        cs = '0' if c is None else R(c, 4)
        self.i(f'v_mfma_f32_16x16x{k}_bf16 {R(d, 4)}, {R(a, n)}, {R(b, n)}, {cs}')

    def text(self):
        return '\n'.join(self.out) + '\n'
```

```python
import math
from common import *
from chain import f2u

vLn, vPs, vP1, vR1, vR2, vT1, vT2, vTr, vL2, vFa, vFl, vT, vKm, vVm, vXb, vXq = range(16)
SEL = 16
sS, sTag, sPst, sRd, sRes, sYo, sFp, sFn, sIn, sSl, sW1k, sSp, sPre, sLb, sDx = range(30, 45)
TBO = 16384
INB = 32768


def kstage(a, W, nkb, karg, nbytes, sbase, ko):
    v9, at, tA = 24, 33, 37
    sw = SWZ['p1', ko]
    dma_voff_72(a, v9, sw, 40, 41, 42)
    a.i(f's_mul_i32 s62, s{sW}, 18')
    for i in range(4):
        def un(t, i=i):
            a.i(f'v_bfe_u32 v{t}, v0, 1, 1')
            a.i(f'v_add_u32 v{t}, s62, v{t}')
            if i:
                a.i(f'v_add_u32 v{t}, {2 * i}, v{t}')

        def sub(t):
            a.i(f'v_and_b32 v{t}, 1, v0')
            a.i(f'v_lshlrev_b32 v{t}, 3, v{t}')
        tr_addr(a, at + i, 1152, ko, sw, un, sub, 40, 41)
    ds = DsAddr(a, tA)
    a.i(f's_mul_i32 s60, s{sW}, 9216')
    srd(a, 8, karg, nbytes)
    chunks = [list(range(k, min(k + 2, nkb))) for k in range(0, nkb, 2)]

    def issue(c):
        for bi, kb in enumerate(chunks[c]):
            for n in range(9):
                dma(a, v9 + n, WT, 60, (BUF0, BUF1)[c & 1] + bi * 36864 + n * 1024, sbase, kb * 36864)
    issue(0)
    issue(1)
    for c in range(len(chunks)):
        a.waitcnt(vm=9 * len(chunks[c + 1]) if c + 1 < len(chunks) else 0)
        a.i('s_barrier')
        for bi, kb in enumerate(chunks[c]):
            for i in range(9):
                tr_frag(a, ds, W[(i, kb)], at + (i & 3), (BUF0, BUF1)[c & 1] + bi * 36864 + 128 * (i >> 2), 1152, ko)
        a.barrier()
        if c + 2 < len(chunks):
            issue(c + 2)


def kinit(a, grp):
    a.i(f's_lshl_b32 s{sW1k}, s{sW}, 10')
    a.i(f's_add_u32 s28, s{sL}, {grp}')
    a.i(f's_mul_i32 s{sSl}, s28, {2 * PRS_SLOT}')
    a.i(f's_add_u32 s{sSl}, s{sSl}, {PRS}')
    a.i(f's_mul_i32 s{sRd}, s{sIDX}, {UNIT}')
    a.i(f's_add_u32 s{sRd}, s{sRd}, s{sSl}')
    a.i('v_lshlrev_b32 v10, 4, v0')
    for k in range(4):
        a.i(f'v_mov_b32 v{16 + k}, 1')
    a.i(f's_mul_i32 s60, s{sW}, 9216')
    a.i(f's_add_u32 s60, s60, s{sRd}')
    for sl in range(2):
        for n in range(9):
            a.i(f's_add_u32 s28, s60, {sl * PRS_SLOT + n * 1024}')
            a.i(f'buffer_store_dwordx4 v[16:19], v10, {WS}, s28 offen')
    arrive(a)


def ksetup(a, bufbytes):
    t0, t1, t2 = 40, 41, 42
    sel_frag(a, SEL, t0, t1)
    a.i(f'v_lshrrev_b32 v{t0}, 4, v0')
    a.i(f'v_and_b32 v{t1}, 15, v0')
    a.i(f'v_mul_u32_u24 v{t2}, {2 * UNIT}, v{t0}')
    a.i(f'v_lshl_add_u32 v{vPs}, v{t1}, 3, v{t2}')
    a.i(f'v_lshl_add_u32 v{vP1}, v{t1}, 2, v{t2}')
    a.i(f's_mul_i32 s60, s{sW}, 576')
    a.i(f's_add_u32 s61, s60, {TBO}')
    bits(a, vT1, 0, [(0, 7, 3), (3, 1, 7), (4, 1, 2)], t2)
    a.i(f'v_add_u32 v{vT1}, s61, v{vT1}')
    bits(a, vT2, 0, [(0, 3, 4), (4, 1, 3)], t2)
    a.i(f'v_add_u32 v{vT2}, s61, v{vT2}')
    a.i(f'v_mul_u32_u24 v{t2}, 2304, v{t0}')
    a.i(f'v_lshl_add_u32 v{vR1}, v{t1}, 4, v{t2}')
    bits(a, t1, 0, [(2, 3, 2), (4, 3, 0)], t2)
    a.i(f'v_mul_u32_u24 v{vR2}, 2304, v{t1}')
    a.i(f'v_and_b32 v{t1}, 3, v0')
    a.i(f'v_lshl_add_u32 v{vR2}, v{t1}, 4, v{vR2}')
    a.i(f's_lshr_b32 s61, s{sW}, 1')
    a.i(f's_mul_i32 s62, s61, 2304')
    a.i(f's_add_u32 s62, s62, {TBO}')
    a.i(f'v_lshlrev_b32 v{vTr}, 5, v0')
    a.i(f'v_add_u32 v{vTr}, s62, v{vTr}')
    a.i(f'v_lshlrev_b32 v{vL2}, 1, v0')
    a.i(f's_mul_i32 s{sPst}, s{sIDX}, 2304')
    a.i(f's_mul_i32 s61, s61, 1152')
    a.i(f's_add_u32 s{sRes}, s{sPst}, s61')
    a.i(f's_add_u32 s{sPst}, s{sPst}, s60')
    a.i(f's_add_u32 s{sPst}, s{sPst}, s{sSl}')
    a.i(f's_add_u32 s{sRd}, s{sRd}, s60')
    a.i(f's_lshl_b32 s{sFp}, s{sIDX}, 11')
    a.i(f's_lshl_b32 s28, s{sW}, 9')
    a.i(f's_add_u32 s{sFp}, s{sFp}, s28')
    a.i(f's_add_u32 s28, s{sRd}, {PRS_SLOT}')
    a.i(f's_xor_b32 s{sSp}, s28, s{sRd}')
    a.i(f's_add_u32 s28, s{sPst}, {PRS_SLOT}')
    a.i(f's_xor_b32 s53, s28, s{sPst}')
    a.i(f's_bitcmp0_b32 s{sW}, 0')
    a.i(f's_cselect_b32 s{sEv}, -1, 0')
    a.i(f's_cselect_b32 s{sEv + 1}, 1.0, 0')
    a.i('s_mov_b64 s[56:57], 1')
    a.i(f's_add_u32 s28, s62, 2048')
    a.i(f'v_lshl_add_u32 v{vT}, v{vL2}, 1, s28')
    a.i(f's_lshl_b32 s28, s{sW}, 2')
    a.i(f's_add_u32 s28, s28, {VOTE}')
    a.i(f'v_mov_b32 v{vKm}, s28')
    a.i(f'v_mov_b32 v{vVm}, {VOTE}')
    a.i(f's_mov_b32 s{sDx}, {bufbytes}')
    a.i(f's_mov_b32 s{sS}, 0')
    a.i(f's_mov_b32 s{sPre}, 0')
    a.i('s_mov_b64 s[54:55], 0')
    a.i(f'v_lshlrev_b32 v{vLn}, 4, v0')


X, ACC, PK, L, F3, T, RS = 20, 92, 108, 128, 164, 176, 180
sTr, sEv = 51, 58
VOTE = TBO + 6144
KST = os.environ.get('KST')


def kst(a, k):
    if KST:
        a._emit(Ins(f's_memtime s[{80 + 2 * k}:{81 + 2 * k}]'))


vF2 = 185


def rs_ld(n):
    if n == 8:
        return f'buffer_load_dwordx4 {R(L + 32, 4)}, v{vR2}, {WS}, s{sRd} offen offset:512 sc1'
    x, G = n & 3, n >> 2
    return f'buffer_load_dwordx4 {R(L + 4 * n, 4)}, v{vR1}, {WS}, s{63 + x if x else sRd} offen offset:{256 * G} sc1'


def rs_load(a, n):
    a.i(rs_ld(n))


RD_ADV = [f's_xor_b32 s{sRd}, s{sRd}, s{sSp}'] + [f's_add_u32 s{63 + x}, s{sRd}, {x * 9216}' for x in (1, 2, 3)]


def rs_group(a, code, ns, reload):
    lr, lc = a.new('L_rsr'), a.new('L_rsc')
    a.tail += [lr + ':', f'    s_mov_b32 s29, {code}', f'    s_sub_u32 s{sTO}, s{sTO}, 1', '    s_cbranch_scc1 L_abort', '    s_nop 7']
    a.tail += ['    ' + rs_ld(n) for n in reload] + ['    s_waitcnt vmcnt(0)', f'    s_branch {lc}']
    pm, a.pm = getattr(a, 'pm', None), None
    a.out.append(lc + ':')
    words = []
    for n in ns:
        words += [L + 4 * n, L + 4 * n + 2] if n < 8 else [L + 32 + x for x in range(4)]
    chk = [f'v_bitop3_b32 v{T + x}, v{words[2 * x]}, v{words[2 * x + 1]}, s{sTr} bitop3:0x7e' for x in range(len(words) // 2)]
    if len(chk) == 6:
        chk = chk[:4] + [f'v_or3_b32 v{T + 1}, v{T + 1}, v{T + 2}, v{T + 3}'] + \
              [c.replace(f'v{T + 4},', f'v{T + 2},').replace(f'v{T + 5},', f'v{T + 3},') for c in chk[4:]]
    if len(chk) >= 4:
        chk.append(f'v_or3_b32 v{T + 1}, v{T + 1}, v{T + 2}, v{T + 3}')
    chk += [f'v_bitop3_b32 v{T}, v{T}, v{T + 1}, 1 bitop3:0xa8', f'v_cmp_ne_u32 vcc, 0, v{T}']
    a.prewait_regs(L + 4 * ns[-1])
    for n in ns:
        acc = F3 + 4 * (n >> 2)
        a.mfma(acc, SEL, L + 4 * n, None if n % 4 == 0 else acc)
        a.fill(chk)
    for p in chk:
        a.i(p)
    a.i(f's_cbranch_vccnz {lr}', nohaz=True)
    a.pm = pm


def t_wr(G):
    if G < 2:
        return [f'ds_write_b32 v{vT1}, v{F3 + 4 * G + r} offset:{256 * G + (r & 1) * 2304 + (r >> 1) * 64}' for r in range(4)]
    return [f'v_add_f32_dpp v{F3 + 8 + k}, v{F3 + 8 + k}, v{F3 + 8 + k} row_ror:{d} row_mask:0xf bank_mask:0xf'
            for d in (4, 8) for k in range(4)] + \
           [f'ds_write_b32 v{vT2}, v{F3 + 8 + r} offset:{512 + (r & 1) * 2304 + (r >> 1) * 4}' for r in range(4)]


def reduce_phase(a, code, fetch):
    kst(a, 5)
    rs_group(a, code, [0, 1, 2, 3], [0, 1, 2, 3])
    kst(a, 6)
    a.waitcnt(vm=4)
    for n in range(4, 8):
        rs_load(a, n)
    for p in t_wr(0):
        a.i(p)
    a.waitcnt(vm=4)
    kst(a, 7)
    rs_load(a, 8)
    fetch()
    kst(a, 8)
    rs_group(a, code, [4, 5, 6, 7], [4, 5, 6, 7, 8])
    kst(a, 9)
    rs_group(a, code, [8], [8])
    for p in t_wr(1) + t_wr(2):
        a.i(p)


def ln_stream(out_srd, pk=False):
    F, PKD = globals()['L'] + 26, globals()['L'] + 16
    s1, q1, s2, q2 = T, T + 1, T + 2, T + 3
    P = lambda r: R(r, 2)
    L = globals()['L'] + 16
    o = [f'ds_read_b128 {R(F, 4)}, v{vTr}', f'ds_read_b128 {R(F + 4, 4)}, v{vTr} offset:16', f'ds_read_b32 v{F + 8}, v{vT}']
    for k in range(4):
        o += [f'v_lshlrev_b32 v{L + 2 * k}, 16, v{RS + k}', f'v_and_b32 v{L + 2 * k + 1}, 0xffff0000, v{RS + k}']
    o += [f'v_lshlrev_b32 v{L + 8}, 16, v{RS + 4}']
    if pk:
        o += [f'v_pk_add_f32 {P(F + k)}, {P(F + k)}, {P(L + k)}' for k in (0, 2, 4, 6)] + [f'v_add_f32 v{F + 8}, v{F + 8}, v{L + 8}']
        o += [f'v_pk_add_f32 {P(L)}, {P(F)}, {P(F + 2)}', f'v_pk_add_f32 {P(L + 2)}, {P(F + 4)}, {P(F + 6)}',
              f'v_pk_mul_f32 {P(L + 4)}, {P(F)}, {P(F)}', f'v_pk_add_f32 {P(L)}, {P(L)}, {P(L + 2)}']
        o += [f'v_pk_fma_f32 {P(L + 4)}, {P(F + k)}, {P(F + k)}, {P(L + 4)}' for k in (2, 4, 6)]
        o += [f'v_add_f32 v{s1}, v{L}, v{L + 1}', f'v_fma_f32 v{q1}, v{F + 8}, v{F + 8}, v{L + 4}',
              f'v_add_f32 v{s1}, v{s1}, v{F + 8}', f'v_add_f32 v{q1}, v{q1}, v{L + 5}']
    else:
        o += [f'v_add_f32 v{F + k}, v{F + k}, v{L + k}' for k in range(9)]
        o += [f'v_add_f32 v{s1}, v{F}, v{F + 1}', f'v_mul_f32 v{q1}, v{F}, v{F}', f'v_fmac_f32 v{q1}, v{F + 1}, v{F + 1}']
        for k in range(2, 9):
            o += [f'v_add_f32 v{s1}, v{s1}, v{F + k}', f'v_fmac_f32 v{q1}, v{F + k}, v{F + k}']
    for m in ('quad_perm:[1,0,3,2]', 'quad_perm:[2,3,0,1]', 'row_half_mirror', 'row_mirror'):
        o += [f'v_add_f32_dpp v{r}, v{r}, v{r} {m} row_mask:0xf bank_mask:0xf' for r in (s1, q1)]
    o += [f'v_mov_b32 v{q2}, {hex(f2u(1e-5))}', f'v_permlane16_swap_b32 v{s1}, v{q1}', f'v_add_f32 v{s1}, v{s1}, v{q1}',
          f'v_mov_b32 v{s2}, v{s1}', f's_add_u32 s{sRes}, s{sRes}, {UNIT}', f'v_permlane32_swap_b32 v{s1}, v{s2}',
          f'v_add_f32 v{s1}, v{s1}, v{s2}', f'v_mul_f32 v{s1}, {hex(f2u(1 / 576))}, v{s1}',
          f'v_readlane_b32 s60, v{s1}, 0', f'v_readlane_b32 s28, v{s1}, 16', 's_mov_b64 s[54:55], s[56:57]',
          f'v_add_f32 v{q2}, s28, v{q2}', f'v_fma_f32 v{q2}, -v{s1}, s60, v{q2}']
    o += [f'v_rsq_f32 v{q2}, v{q2}', f's_andn2_b32 s60, s60, s{sEv}', f'v_readlane_b32 s28, v{q2}, 0',
          f's_andn2_b32 s28, s28, s{sEv}', f's_or_b32 s28, s28, s{sEv + 1}', f'v_mov_b32 v{s2}, s28', f'v_mul_f32 v{q2}, s60, v{s2}']
    if pk:
        o += [f'v_pk_fma_f32 {P(F + k)}, {P(F + k)}, {P(s2)}, {P(s2)} op_sel:[0,0,1] op_sel_hi:[1,0,1] neg_lo:[0,0,1] neg_hi:[0,0,1]'
              for k in (0, 2, 4, 6)] + [f'v_fma_f32 v{F + 8}, v{F + 8}, v{s2}, -v{q2}']
    else:
        o += [f'v_fma_f32 v{F + k}, v{F + k}, v{s2}, -v{q2}' for k in range(9)]
    o += [f'v_cvt_pk_bf16_f32 v{PKD + k}, v{F + 2 * k}, v{F + 2 * k + 1}' for k in range(4)] + [f'v_cvt_pk_bf16_f32 v{PKD + 4}, v{F + 8}, 0']
    o += [f'buffer_store_dwordx4 {R(PKD, 4)}, v{vLn}, {out_srd}, s{sYo} offen sc1',
          f'buffer_store_short v{PKD + 4}, v{vL2}, {out_srd}, s{sYo} offen offset:1024 sc1',
          f's_add_u32 s{sYo}, s{sYo}, {UNIT}']
    return o


def klate(a):
    a.i('s_mov_b64 exec, s[54:55]')
    a.i(f'buffer_store_dword v{vTr}, off, {WS}, s{sFp} sc1')
    a.vm.pop()
    a.i('s_mov_b64 exec, -1')
    a.i('s_lshl_b32 s28, s54, 2')
    a.i(f's_add_u32 s{sFp}, s{sFp}, s28')
    a.i('s_mov_b64 s[54:55], 0')


def kgemm(a, W, nkb, side, stream):
    def xreg(n):
        return X + 4 * ((n & 1) * nkb + (n >> 1))

    def xr(n):
        a.i(f'ds_read_b128 {R(xreg(n), 4)}, v{vXb} offset:{((n & 1) * nkb + (n >> 1)) * 1024}')
    a.batch = 1
    for n in range(8):
        xr(n)
    so = [sPst, 61, 62, 63]
    pend = []
    low = [f's_lshr_b32 s{sTag}, s{sS}, 1'] + [f's_add_u32 s{60 + q}, s{sPst}, {(8 * (q >> 1) + (q & 1)) * UNIT}' for q in range(1, 4)]
    k = 0
    for i in range(10):
        acc = ACC + 8 * (i & 1)
        if i < 9:
            for kb in range(nkb):
                for rt in range(2):
                    a.mfma(acc + 4 * rt, X + 4 * (rt * nkb + kb), W[(i, kb)], None if kb == 0 else acc + 4 * rt)
                    if k + 8 < 2 * nkb:
                        xr(k + 8)
                    if k + 1 < 2 * nkb:
                        a.prewait_regs(xreg(k + 1))
                    elif k + 1 == 2 * nkb:
                        a.batch = 0
                    for f in side.get(k, []):
                        if f == 'flush':
                            while low:
                                a.fill(low, 99)
                        else:
                            f()
                    while kb >= 2 and pend and a.gap < (2 if i == 8 else 1):
                        p = pend.pop(0)
                        if p:
                            a.i(p)
                        elif i < 8:
                            break
                    low += stream.get(k, [])
                    a.fill(low)
                    k += 1
        if i == 9:
            a.fill(low, 999)
        for p in pend:
            if p:
                a.i(p)
        pend = []
        if i == 9:
            break
        if i == 8:
            for q in range(4):
                r = PK + 16 + q
                pend += [f'v_cvt_pk_bf16_f32 v{r}, v{acc + 2 * q}, v{acc + 2 * q + 1}', f'v_bfi_b32 v{r}, 1, s{sTag}, v{r}',
                         f'buffer_store_dword v{r}, v{vP1}, {WS}, s{so[q]} offen offset:512']
        else:
            d = i & 1
            for q in range(4):
                r = PK + 8 * ((i >> 1) & 1) + 2 * q
                pend.append(f'v_cvt_pk_bf16_f32 v{r + d}, v{acc + 2 * q}, v{acc + 2 * q + 1}')
                if d == 0:
                    pend.append(f'v_bfi_b32 v{r}, 1, s{sTag}, v{r}')
                else:
                    pend.append(f'buffer_store_dwordx2 {R(r, 2)}, v{vPs}, {WS}, s{so[q]} offen offset:{128 * (i >> 1)}')
                    pend.append(None)
    a.i(f's_mov_b32 s{sTr}, s{sTag}')
    a.i(f's_xor_b32 s{sPst}, s{sPst}, s53')


def res_load(a, srdn):
    a.i(f'buffer_load_dwordx4 {R(RS, 4)}, v{vLn}, {srdn}, s{sRes} offen sc1')
    a.i(f'buffer_load_ushort v{RS + 4}, v{vL2}, {srdn}, s{sRes} offen offset:1024 sc1')


def poll(a, off=0, dst=vFl):
    a.i(f'buffer_load_dword v{dst}, v{vFa}, {WS}, s{sFn} offen offset:{off} sc1')


def in_dma(n, srdn, sLb=sLb):
    o = [f's_mov_b32 m0, s{sLb}']
    o += [f'buffer_load_dwordx4 v{vLn}, {srdn}, s{sIn} offen offset:{k * 1024} sc1 lds' for k in range(4)]
    if n == 5:
        o += [f's_add_u32 m0, s{sLb}, 4096', f'buffer_load_dwordx4 v{vXq}, {srdn}, s{sIn} offen sc1 lds']
    return o


def krole(a, nm, stamps):
    dn = nm == 'down'
    nkb = 9 if dn else 8
    P = f'L_{nm}'
    a.label(P)
    rt_stamp(a, stamps, 0)
    kinit(a, 2 if dn else 0)
    W = {}
    for i in range(9):
        for kb in range(nkb):
            W[(i, kb)] = 512 - 36 * nkb + 4 * len(W)
    a.i(f's_mul_i32 s61, s{sIDX}, {32 * nkb * 1152}')
    kstage(a, W, nkb, K_WD if dn else K_WO, 16 * 32 * nkb * 1152, 61, 'nat' if dn else 'pair')
    nfl = 6 if dn else 2
    a.i(f'v_min_u32 v{vFa}, {nfl - 1}, v0')
    a.i(f'v_lshlrev_b32 v{vFa}, 9, v{vFa}')
    BB = 2 * nkb * 1024
    IU, IB, FI = (H_UNIT, HB, F_H) if dn else (O_UNIT, OB, F_O)
    ksetup(a, BB)
    a.i(f'v_add_u32 v{vXq}, 4096, v{vLn}')
    srd(a, 8, K_WS, 0)
    for p in RD_ADV[1:]:
        a.i(p)
    a.i(f'v_add_u32 v{vXb}, {INB}, v{vLn}')
    a.i(f's_mul_i32 s60, s{sL}, {64 * UNIT}')
    a.i(f's_lshl_b32 s61, s{sL}, 8')
    if dn:
        srd(a, 12, K_OUT, 2048 * 1152)
        a.i(f's_bitcmp1_b32 s{sW}, 0')
        a.i(f's_cselect_b32 s{sYo}, {OOB}, s{sRes}')
        a.i('s_mov_b64 s[56:57], 0')
        a.i(f's_cmp_eq_u32 s{sL}, 1')
        a.i(f's_cbranch_scc1 {P}_o')
        srd(a, 12, K_WS, WS_BYTES)
        a.i('s_mov_b64 s[56:57], 1')
        a.i(f's_mov_b32 s{sYo}, s{sRes}')
        a.i(f's_bitcmp1_b32 s{sW}, 0')
        a.i(f's_mov_b32 s28, {X2}')
        a.i(f's_cselect_b32 s28, {NA + 64 * UNIT}, s28')
        a.i(f's_add_u32 s{sYo}, s{sYo}, s28')
        a.label(f'{P}_o')
        a.i(f's_add_u32 s{sRes}, s{sRes}, s60')
        a.i(f's_add_u32 s{sRes}, s{sRes}, {YB}')
        a.i(f's_add_u32 s{sFp}, s{sFp}, {F_NA + 256}')
        res_srd, out_srd = WS, IO
    else:
        a.i(f's_add_u32 s{sYo}, s60, s{sRes}')
        a.i(f's_bitcmp1_b32 s{sW}, 0')
        a.i(f's_mov_b32 s28, {YB}')
        a.i(f's_cselect_b32 s28, {NB}, s28')
        a.i(f's_add_u32 s{sYo}, s{sYo}, s28')
        a.i(f's_add_u32 s{sFp}, s{sFp}, s61')
        a.i(f's_add_u32 s{sFp}, s{sFp}, {F_NB}')
        srd(a, 12, K_X, 2048 * 1152)
        a.i(f's_cmp_eq_u32 s{sL}, 0')
        a.i(f's_cbranch_scc1 {P}_o')
        srd(a, 12, K_WS, WS_BYTES)
        a.i(f's_add_u32 s{sRes}, s{sRes}, {X2}')
        a.label(f'{P}_o')
        res_srd, out_srd = IO, WS
    a.i(f's_mul_i32 s{sFn}, s{sIDX}, {nfl * 512}')
    a.i(f's_add_u32 s{sFn}, s{sFn}, s61')
    a.i(f's_add_u32 s{sFn}, s{sFn}, {FI}')
    a.i(f's_mul_i32 s{sIn}, s{sL}, {64 * IU}')
    a.i(f's_mul_i32 s28, s{sIDX}, {nkb * 1024}')
    a.i(f's_add_u32 s{sIn}, s{sIn}, s28')
    a.i(f's_add_u32 s{sIn}, s{sIn}, {IB}')
    nd = nkb - 4
    a.i(f's_lshr_b32 s28, s{sW}, 1')
    a.i(f's_mul_i32 s{sLb}, s28, {nkb * 1024}')
    a.i(f's_mul_i32 s28, s28, {IU // 2}')
    a.i(f's_add_u32 s{sIn}, s{sIn}, s28')
    a.i(f's_and_b32 s28, s{sW}, 1')
    a.i('s_lshl_b32 s28, s28, 12')
    a.i(f's_add_u32 s{sLb}, s{sLb}, s28')
    a.i(f's_add_u32 s{sLb}, s{sLb}, {INB}')
    a.i(f's_add_u32 s{sIn}, s{sIn}, s28')
    wait_init(a, 40)
    rt_stamp(a, stamps, 1, 40)
    code = 10 if dn else 12

    def decide():
        a.i(f'v_cmp_eq_u32 vcc, 0, v{vF2}')
        a.i('s_cmp_eq_u64 vcc, 0')
        a.i(f's_cselect_b32 s{sPre}, s47, 0')
        a.i(f's_mov_b32 s10, s{sPre}')

    def fetch():
        l = a.new('L_nf')
        a.i(f's_cmp_lg_u32 s{sPre}, 0')
        a.i(f's_cbranch_scc1 {l}', nohaz=True)
        a.i(f'v_cmp_eq_u32 vcc, 0, v{vFl}')
        a.i(f's_cbranch_vccnz {l}', nohaz=True)
        a.i(f's_mov_b32 s{sPre}, s47')
        a.i('s_mov_b32 s10, s47')
        for p in in_dma(nd, WT):
            a.i(p)
        a.waitcnt(vm=nd)
        a.i(f's_branch {l}x', nohaz=True)
        a.out.append(l + ':')
        a.waitcnt(vm=0)
        a.out.append(l + 'x:')
        poll(a, 4, vF2)

    def body(carry):
        n1, n8 = 2 * nkb, 2 * nkb * 8
        kD = n1 + 1
        side = {n8 - 36: [lambda: poll(a)], n8 - 33: [lambda: poll(a, 4, vF2)]}
        stream = {1: [f's_add_u32 s{sIn}, s{sIn}, {IU}', f's_add_u32 s{sLb}, s{sLb}, s{sDx}', f's_add_u32 s{sFn}, s{sFn}, 4',
                      f's_mov_b32 s{sTO}, {TIMEOUT}',
                      lambda: (a.i(f's_cmp_eq_u32 s{sS}, 63'), a.i(f's_cselect_b32 s47, 0, s6'))]}
        if carry:
            side[n1 - 6] = ['flush', lambda: rs_group(a, code, [0, 1, 2, 3], [0, 1, 2, 3])]
            stream[n1 - 1] = t_wr(0)
            for n in range(4, 9):
                side[n1 + 2 * n - 8] = [lambda n=n: rs_load(a, n)]
            kD = n1 + 10
            side[2 * n1 + 2] = [lambda: rs_group(a, code, [4, 5, 6, 7, 8], [4, 5, 6, 7, 8])]
            stream[2 * n1 + 5] = t_wr(1) + t_wr(2) + RD_ADV
            side[3 * n1 + 1] = ['flush', lambda: a.barrier()]
            stream[3 * n1 + 2] = ln_stream(out_srd)
            side[n8 - 38] = ['flush']
            side[n8 - 30] = [lambda: res_load(a, res_srd)]
        else:
            side[0] = [lambda: a.join_vm_tag('n')]
            side[kD - 1] = ['flush']
            side[kD - 3] = [lambda: res_load(a, res_srd)]
            side[44] = [lambda: (a.wait_tag('n'), klate(a))]
        side[kD] = [decide]
        for n in range(4):
            side.setdefault(n8 - 13 + 3 * n, []).append(lambda n=n: rs_load(a, n))
        k = kD + 2
        for p in in_dma(nd, WT, sLb):
            side.setdefault(k - (1 if p.startswith('s_') else 0), []).append(lambda p=p: a.i(p))
            k += 0 if p.startswith('s_') else (3 if not carry else 1)
        side.setdefault(n8 - 16, []).append(lambda: (a.i(f'v_mov_b32 v{T}, s{sPre}'), a.i(f'ds_write_b32 v{vKm}, v{T}')))
        side.setdefault(n8 + 1, []).append(lambda: (a.prewait({('v', vF2)}), a.barrier(), a.i(f'ds_read_b128 {R(F3, 4)}, v{vVm}')))
        kgemm(a, W, nkb, side, stream)

    a.label(f'{P}_loop')
    l = spin_head(a, 9 if dn else 11)
    poll(a)
    a.i(f'v_cmp_eq_u32 vcc, 0, v{vFl}')
    klate(a)
    a.i(f's_cbranch_vccnz {l}', nohaz=True)
    for p in in_dma(nd, WS):
        a.i(p)
    poll(a, 4, vF2)
    a.waitcnt(vm=0)
    a.label(f'{P}_plain')
    a.i('s_barrier')
    if not PROF:
        stamp(a, stamps, 0)
    body(False)
    a.i(f's_branch {P}_end')
    vm = list(a.vm)
    a.label(f'{P}_carry')
    a.vm = vm[-12:]
    stamp(a, stamps, 0)
    body(True)
    a.out.append(f'{P}_end:')
    stamp(a, stamps, 1)
    a.i(f'v_bitop3_b32 v{F3}, v{F3}, v{F3 + 1}, v{F3 + 2} bitop3:0x80')
    a.i(f'v_and_b32 v{F3}, v{F3}, v{F3 + 3}')
    a.i(f'v_cmp_eq_u32 vcc, 0, v{F3}')
    a.i(f'v_add_u32 v{vXb}, s{sDx}, v{vXb}')
    a.i(f's_sub_u32 s{sDx}, 0, s{sDx}')
    klate(a)
    if stamps:
        a.i(f's_cbranch_vccnz {P}_drain', nohaz=True)
        for k in (2, 3):
            if not PROF:
                a.i(f's_mov_b32 s{80 + 2 * k}, 0')
        vm = list(a.vm)
        stamp_flush(a, stamps, 4, sS, ACC)
        a.vm = vm
        a.out.append(f'{P}_drain:')
    a.i(f's_add_u32 s{sS}, s{sS}, 1')
    a.i(f's_cbranch_vccz {P}_carry', nohaz=True)
    reduce_phase(a, code, fetch)
    stamp(a, stamps, 2)
    a.barrier()
    for p in ln_stream(out_srd, pk=True) + RD_ADV:
        a.i(p)
    stamp(a, stamps, 3)
    a.waitcnt(vm=2)
    if stamps:
        a.i(f's_sub_u32 s45, s{sS}, 1')
    stamp_flush(a, stamps, 4, 45, ACC)
    a.i(f's_cmp_lg_u32 s{sPre}, 0')
    a.i(f's_cbranch_scc1 {P}_plain')
    a.i(f's_cmp_lt_u32 s{sS}, 64')
    a.i(f's_cbranch_scc1 {P}_loop')
    a.waitcnt(vm=0)
    klate(a)
    rt_stamp(a, stamps, 2, 40)
    a.i('s_endpgm')
    a.out += a.tail
    a.tail = []


def down(a, stamps=False):
    krole(a, 'down', stamps)


def oproj(a, stamps=False):
    krole(a, 'oproj', stamps)


def atn(a, stamps=False):
    from nsplit import ln_init
    a.label('L_atn')
    rt_stamp(a, stamps, 0)
    arrive(a)
    ln_init(a, 24)
    MC, MM = 16, 20
    sH, sC, sKm, sOo = 45, 47, 48, 51
    a.i(f's_lshl_b32 s{sH}, s{sIDX}, 2')
    a.i(f's_add_u32 s{sH}, s{sH}, s{sW}')
    a.i(f's_mov_b32 s{sC}, {hex(f2u(128 ** -0.5 * math.log2(math.e)))}')
    a.i('v_and_b32 v40, 15, v0')
    a.i('v_lshrrev_b32 v41, 4, v0')
    a.i('v_lshlrev_b32 v41, 2, v41')
    a.i('v_mov_b32 v42, 0xff800000')
    for r in range(4):
        a.i(f'v_add_u32 v43, {r}, v41')
        a.i('v_cmp_gt_u32 vcc, v43, v40')
        a.i(f'v_cndmask_b32 v{MC + r}, 0, v42, vcc')
    a.i('v_cmp_lt_u32 vcc, 31, v0')
    for r in range(4):
        a.i(f'v_cndmask_b32 v{MM + r}, 0, v42, vcc')
    bits(a, vFa, 0, [(0, 3, 9), (2, 1, 16)], 40)
    a.i(f's_lshl_b32 s28, s{sH}, 11')
    a.i(f's_add_u32 s28, s28, {F_Q + 4}')
    a.i(f'v_add_u32 v{vFa}, s28, v{vFa}')
    a.i(f's_lshl_b32 s{sFp}, s{sH}, 9')
    a.i(f's_add_u32 s28, s{sFp}, {F_KVM}')
    a.i('v_mov_b32 v40, s28')
    a.i(f'v_cndmask_b32 v{vFa}, v{vFa}, v40, vcc')
    bits(a, vKm, 0, [(0, 7, 4), (4, 3, 7)], 40)
    bits(a, vVm, 0, [(0, 31, 4)], 40)
    a.i(f'v_lshlrev_b32 v{vLn}, 4, v0')
    a.i(f's_lshl_b32 s{sFn}, s{sL}, 8')
    a.i(f's_add_u32 s{sFp}, s{sFp}, s{sFn}')
    a.i(f's_add_u32 s{sFp}, s{sFp}, {F_O}')
    a.i(f'v_subrev_u32 v{vT}, 4, v{vFa}')
    a.i(f's_mul_i32 s{sIn}, s{sL}, {64 * QKV_UNIT}')
    a.i(f's_mul_i32 s28, s{sH}, 24576')
    a.i(f's_add_u32 s{sIn}, s{sIn}, s28')
    a.i(f's_add_u32 s{sIn}, s{sIn}, {QKV}')
    a.i(f's_mul_i32 s{sKm}, s{sL}, {64 * KVM_UNIT}')
    a.i(f's_lshl_b32 s28, s{sH}, 12')
    a.i(f's_add_u32 s{sKm}, s{sKm}, s28')
    a.i(f's_add_u32 s{sKm}, s{sKm}, {KVM}')
    a.i(f's_mul_i32 s{sOo}, s{sL}, {64 * O_UNIT}')
    a.i(f's_add_u32 s{sOo}, s{sOo}, s28')
    a.i(f's_add_u32 s{sOo}, s{sOo}, {OB}')
    a.i(f's_mov_b32 s{sS}, 0')
    Q, K, V, OX, KM, VM, S, P, M = 24, 56, 88, 120, 184, 200, 216, 228, 240
    mx, lx, t0, t1, al = M, M + 2, M + 4, M + 6, M + 8
    a.i(f'v_mov_b32 v{P + 2}, 0')
    a.i(f'v_mov_b32 v{P + 3}, 0')
    rt_stamp(a, stamps, 1, 40)

    def qkv_loads():
        for n in range(24):
            if n % 4 == 0:
                a.i(f's_add_u32 s28, s{sIn}, {n * 1024}')
            a.i(f'buffer_load_dwordx4 {R(Q + 4 * n, 4)}, v{vLn}, {WS}, s28 offen offset:{(n & 3) * 1024} sc1')
        a.i(f's_add_u32 s{sIn}, s{sIn}, {QKV_UNIT}')

    def both(fn):
        for ins in zip(fn(0), fn(1)):
            for x in ins:
                if x:
                    a.i(x)

    def xl(op, r, t):
        out = []
        for sw in (16, 32):
            out += [f'v_mov_b32 v{t}, v{r}', f'v_permlane{sw}_swap_b32 v{r}, v{t}', f'{op} v{r}, v{r}, v{t}']
        return out
    l = spin_head(a, 13)
    a.i(f'buffer_load_dword v{vFl}, v{vT}, {WS}, s{sFn} offen sc1')
    a.i(f'v_cmp_eq_u32 vcc, 0, v{vFl}')
    a.i('s_cmp_lg_u32 vcc_lo, 0')
    a.i(f's_cbranch_scc1 {l}', nohaz=True)
    qkv_loads()
    vm0 = list(a.vm)
    a.out.append('L_atn_loop:')
    stamp(a, stamps, 0)
    for kb in range(4):
        a.mfma(S, K + 8 * kb, Q + 8 * kb, MC if kb == 0 else S)
        a.mfma(S + 4, K + 8 * kb, Q + 8 * kb + 4, None if kb == 0 else S + 4)
        a.mfma(S + 8, K + 8 * kb + 4, Q + 8 * kb + 4, MC if kb == 0 else S + 8)
    a.i(f'v_max3_f32 v{mx}, v{S}, v{S + 1}, v{S + 2}')
    a.i(f'v_max3_f32 v{mx + 1}, v{S + 4}, v{S + 5}, v{S + 6}')
    a.i(f'v_max_f32 v{mx}, v{S + 3}, v{mx}')
    a.i(f'v_max3_f32 v{mx + 1}, v{S + 7}, v{S + 8}, v{mx + 1}')
    a.i(f'v_max3_f32 v{mx + 1}, v{S + 9}, v{S + 10}, v{mx + 1}')
    a.i(f'v_max_f32 v{mx + 1}, v{S + 11}, v{mx + 1}')
    both(lambda q: xl('v_max_f32', mx + q, t1 + q) + [f'v_mul_f32 v{mx + q}, s{sC}, v{mx + q}'])
    for x in range(12):
        a.i(f'v_fma_f32 v{S + x}, v{S + x}, s{sC}, -v{mx + (x >= 4)}')
    for x in range(12):
        a.i(f'v_exp_f32 v{S + x}, v{S + x}')
    for x in range(6):
        a.i(f'v_cvt_pk_bf16_f32 v{P + x + (2 if x >= 2 else 0)}, v{S + 2 * x}, v{S + 2 * x + 1}')
    adds = [f'v_add_f32 v{lx}, v{S}, v{S + 1}', f'v_add_f32 v{lx + 1}, v{S + 4}, v{S + 5}']
    adds += [f'v_add_f32 v{lx}, v{lx}, v{S + x}' for x in (2, 3)] + [f'v_add_f32 v{lx + 1}, v{lx + 1}, v{S + x}' for x in range(6, 12)]
    for d in range(8):
        for q in range(2):
            a.mfma(OX + 32 * q + 4 * d, V + 4 * d, P + 4 * q, None)
            if adds:
                a.i(adds.pop(0))
    stamp(a, stamps, 1)
    l = spin_head(a, 14)
    poll(a)
    a.i(f'v_cmp_eq_u32 vcc, 0, v{vFl}')
    a.i('s_cmp_lg_u32 vcc_hi, 0')
    a.i(f's_cbranch_scc1 {l}', nohaz=True)
    for kb in range(4):
        a.i(f'buffer_load_dwordx4 {R(KM + 4 * kb, 4)}, v{vKm}, {WS}, s{sKm} offen offset:{kb * 512} sc1')
    for kb in range(4):
        a.i(f'buffer_load_dwordx4 {R(VM + 4 * kb, 4)}, v{vVm}, {WS}, s{sKm} offen offset:{2048 + kb * 512} sc1')
    a.i('s_cmp_eq_u32 vcc_lo, 0')
    a.i('s_cselect_b64 vcc, 1, 0')
    a.i(f's_cmp_eq_u32 s{sS}, 63')
    a.i('s_cselect_b64 vcc, 0, vcc')
    a.i(f's_add_u32 s{sKm}, s{sKm}, {KVM_UNIT}')
    order = list(range(8, 16)) + list(range(0, 8)) + list(range(16, 24))

    def ld(n):
        a.i(f's_add_u32 s28, s{sIn}, {n * 1024}')
        a.i(f'buffer_load_dwordx4 {R(Q + 4 * n, 4)}, v{vLn}, {WS}, s28 offen sc1')

    def bulk(cnt=1):
        l = a.new('L_sk')
        vm, lg = list(a.vm), list(a.lg)
        a.i(f's_cbranch_vccz {l}', nohaz=True)
        for _ in range(cnt):
            ld(order.pop(0))
        a.out.append(l + ':')
        a.vm, a.lg = vm, lg
    a.i('s_cbranch_vccz L_atn_w0', nohaz=True)
    for _ in range(6):
        ld(order.pop(0))
    a.waitcnt(vm=6)
    a.i('s_branch L_atn_w1', nohaz=True)
    a.out.append('L_atn_w0:')
    a.waitcnt(vm=0)
    a.out.append('L_atn_w1:')
    stamp(a, stamps, 2)
    for kb in range(4):
        for q in range(2):
            a.mfma(S + 4 * q, KM + 4 * kb, Q + 8 * kb + 4 * q, MM if kb == 0 else S + 4 * q)
    bulk(2)
    stamp(a, stamps, 3)
    PM = S + 8

    def post(q):
        s, m, t, A = S + 4 * q, t0 + q, t1 + q, al + 2 * q
        return ([f'v_max3_f32 v{m}, v{s}, v{s + 1}, v{s + 2}', f'v_max_f32 v{m}, v{s + 3}, v{m}'] + xl('v_max_f32', m, t)
                + [f'v_mul_f32 v{m}, s{sC}, v{m}', f'v_max_f32 v{m}, v{m}, v{mx + q}', f'v_sub_f32 v{A}, v{mx + q}, v{m}']
                + [f'v_fma_f32 v{s + x}, v{s + x}, s{sC}, -v{m}' for x in range(4)]
                + [f'v_exp_f32 v{A}, v{A}'] + [f'v_exp_f32 v{s + x}, v{s + x}' for x in range(4)]
                + [f'v_fma_f32 v{m}, v{lx + q}, v{A}, v{s}', f'v_add_f32 v{t}, v{s + 1}, v{s + 2}',
                   f'v_add_f32 v{m}, v{m}, v{s + 3}', f'v_add_f32 v{m}, v{m}, v{t}'] + xl('v_add_f32', m, t)
                + [f'v_rcp_f32 v{m}, v{m}', f'v_mul_f32 v{A}, v{m}, v{A}']
                + [f'v_mul_f32 v{s + x}, v{m}, v{s + x}' for x in range(4)]
                + [f'v_mov_b32 v{A + 1}, v{A}', f'v_cvt_pk_bf16_f32 v{PM + 2 * q}, v{s}, v{s + 1}',
                   f'v_cvt_pk_bf16_f32 v{PM + 2 * q + 1}, v{s + 2}, v{s + 3}'])
    for ix, ins in enumerate(zip(post(0), post(1))):
        for x in ins:
            a.i(x)
        if ix % 10 == 4:
            bulk()
    a.i(f's_add_u32 s60, s{sOo}, {O_UNIT // 2}')
    for n in range(32):
        a.i(f'v_pk_mul_f32 {R(OX + 2 * n, 2)}, {R(OX + 2 * n, 2)}, {R(al + 2 * (n >> 4), 2)}')
        if n % 12 == 5:
            bulk()
    low = []
    for n in range(16):
        o = OX + 4 * n
        a.mfma(o, VM + 2 * (n & 7), PM + 2 * (n >> 3), o, k=16)
        a.fill(low, 3)
        if n >= 3 and n % 2 == 1 or n == 15:
            for f in ([(n - 3) // 2] if n < 15 else [6, 7]):
                o = OX + 8 * f
                low += [f'v_cvt_pk_bf16_f32 v{o + x}, v{o + 2 * x}, v{o + 2 * x + 1}' for x in range(4)]
                low.append(lambda o=o, f=f: a.i(
                    f'buffer_store_dwordx4 {R(o, 4)}, v{vLn}, {WS}, s{sOo if f < 4 else 60} offen offset:{(f & 3) * 1024} sc1', tag='o'))
    a.fill(low, 999)
    stamp(a, stamps, 4)
    a.i(f's_add_u32 s{sOo}, s{sOo}, {O_UNIT}')
    a.i('s_cbranch_vccz L_atn_slow', nohaz=True)
    print('atn: loads left after stores', len(order))
    while order:
        ld(order.pop(0))
    a.wait_tag('o')
    a.i('s_mov_b64 exec, 1')
    a.i(f'buffer_store_dword v{vFa}, off, {WS}, s{sFp} sc1')
    a.i('s_mov_b64 exec, -1')
    a.i(f's_add_u32 s{sIn}, s{sIn}, {QKV_UNIT}')
    a.i('s_branch L_atn_adv')
    a.label('L_atn_slow')
    a.waitcnt(vm=0)
    a.i('s_mov_b64 exec, 1')
    a.i(f'buffer_store_dword v{vFa}, off, {WS}, s{sFp} sc1')
    a.i('s_mov_b64 exec, -1')
    a.i(f's_cmp_eq_u32 s{sS}, 63')
    a.i('s_cbranch_scc1 L_atn_done')
    l = spin_head(a, 15)
    poll(a)
    a.i(f'v_cmp_eq_u32 vcc, 0, v{vFl}')
    a.i('s_cmp_lg_u32 vcc_lo, 0')
    a.i(f's_cbranch_scc1 {l}', nohaz=True)
    qkv_loads()
    a.label('L_atn_adv')
    stamp(a, stamps, 5)
    stamp_flush(a, stamps, 6, sS, KM)
    a.i(f's_add_u32 s{sFp}, s{sFp}, 4')
    a.i(f's_add_u32 s{sFn}, s{sFn}, 4')
    a.i(f's_add_u32 s{sS}, s{sS}, 1')
    a.i('s_branch L_atn_loop')
    a.label('L_atn_done')
    rt_stamp(a, stamps, 2, 40)
    a.i('s_endpgm')
```

```python
import math
from common import *
from chain import f2u

vLn, vXe, vXo, vFa, vFl, vT = 0, 1, 2, 3, 4, 5
vD9 = 6
sS, sPre, sSrc, sFn, sLb, sW1k, sW9k, sOut, sFp, sFq, sPq = range(30, 41)
sDx = 44
XB = UNIT


def publish(a, sflag, vnz=vXo):
    a.i('s_mov_b64 exec, 1')
    a.i(f'buffer_store_dword v{vnz}, off, {WS}, s{sflag} sc1')
    a.i('s_mov_b64 exec, -1')


def x_setup(a, nbase, fbase, t0, t1, t2):
    dma_voff_72(a, vD9, SWZ['x'], t0, t1, t2)
    for n in range(9):
        a.i(f'v_add_u32 v{vD9 + n}, {4096 - (n & 3) * 1024}, v{vD9 + n}')
    a.i(f'v_and_b32 v{t0}, 15, v0')
    a.i(f'v_bfe_u32 v{t1}, v0, 1, 3')
    a.i(f'v_lshrrev_b32 v{t2}, 4, v0')
    a.i(f'v_xor_b32 v{t1}, v{t1}, v{t2}')
    a.i(f'v_mul_u32_u24 v{t0}, 1152, v{t0}')
    a.i(f'v_lshl_add_u32 v{vXe}, v{t1}, 4, v{t0}')
    a.i(f'v_xor_b32 v{t1}, 4, v{t1}')
    a.i(f'v_lshl_add_u32 v{vXo}, v{t1}, 4, v{t0}')
    a.i(f'v_and_b32 v{vFa}, 15, v0')
    a.i(f'v_lshlrev_b32 v{vFa}, 9, v{vFa}')
    a.i(f's_mul_i32 s{sSrc}, s{sL}, {64 * UNIT}')
    a.i(f's_add_u32 s{sSrc}, s{sSrc}, {nbase - 4096}')
    a.i(f's_lshl_b32 s{sFn}, s{sW}, 13')
    a.i(f's_lshl_b32 s28, s{sL}, 8')
    a.i(f's_add_u32 s{sFn}, s{sFn}, s28')
    a.i(f's_add_u32 s{sFn}, s{sFn}, {fbase}')
    a.i(f's_mov_b32 s{sLb}, s{sW9k}')
    a.i(f's_mov_b32 s{sS}, 0')
    a.i(f's_mov_b32 s{sDx}, {XB}')
    a.i(f's_mov_b64 s[{sPq}:{sPq + 1}], 0')
    srd(a, 8, K_WS, 0)
    a.i(f'v_lshlrev_b32 v{vLn}, 4, v0')


def x_poll(a):
    a.i(f'buffer_load_dword v{vFl}, v{vFa}, {WS}, s{sFn} offen sc1')


def x_dma_list(srdn):
    o = []
    for n in range(9):
        if n % 4 == 0:
            o.append(f's_add_u32 m0, s{sLb}, {n * 1024}')
        o.append(f'buffer_load_dwordx4 v{vD9 + n}, {srdn}, s{sSrc} offen offset:{(n & 3) * 1024} sc1 lds')
    return o


def x_adv(a):
    a.i(f's_add_u32 s{sSrc}, s{sSrc}, {UNIT}')
    a.i(f's_add_u32 s{sFn}, s{sFn}, 4')
    a.i(f's_add_u32 s{sLb}, s{sLb}, s{sDx}')


def x_flag(a):
    a.waitcnt(vm=0)
    a.i(f's_mov_b64 exec, s[{sPq}:{sPq + 1}]')
    a.i(f'buffer_store_dword v{vXo}, off, {WS}, s{sFq} sc1')
    a.vm.pop()
    a.i('s_mov_b64 exec, -1')


def x_chk(a):
    a.i(f'v_cmp_eq_u32 vcc, 0, v{vFl}')
    a.i('s_cmp_eq_u64 vcc, 0')
    a.i(f's_cselect_b32 s10, {WS_BYTES}, 0')


def x_block(a, code):
    l = spin_head(a, code)
    x_poll(a)
    a.i(f'v_cmp_eq_u32 vcc, 0, v{vFl}')
    a.i(f's_cbranch_vccnz {l}', nohaz=True)
    for p in x_dma_list(WS):
        a.i(p)
    a.waitcnt(vm=0)


def x_next(a, pfx, code, regs):
    a.i(f's_add_u32 s{sFq}, s{sFq}, 4')
    a.i(f's_add_u32 s{sS}, s{sS}, 1')
    a.i(f's_cmp_eq_u32 s{sS}, 64')
    a.i(f's_cselect_b32 s10, 0, s10')
    a.i(f's_mov_b64 s[{sPq}:{sPq + 1}], 1')
    for r in regs:
        a.i(f'v_add_u32 v{r}, s{sDx}, v{r}')
    a.i(f's_sub_u32 s{sDx}, 0, s{sDx}')
    a.i('s_cmp_lg_u32 s10, 0')
    a.wait_tag('x')
    a.i(f's_cbranch_scc1 {pfx}_loop')
    x_flag(a)
    a.i(f's_mov_b64 s[{sPq}:{sPq + 1}], 0')
    a.i(f's_cmp_eq_u32 s{sS}, 64')
    a.i(f's_cbranch_scc1 {pfx}_done')
    x_block(a, code)
    a.i(f's_branch {pfx}_loop')


def xread(a, dst, rt, j):
    a.i(f'ds_read_b128 {R(dst, 4)}, v{(vXe, vXo)[j & 1]} offset:{(j >> 1) * 128 + rt * 18432}')


def stage256(a, mats, gpitch, scol, W, qk_style):
    vq, a0, a1, aq, tA = 20, 21, 22, 23, 24
    sw = SWZ['p2', 'nat']
    dma_voff_pow2(a, vq, 16, gpitch, sw, 30, 31)
    a.i(f's_lshl_b32 s62, s{sW}, 2')

    def u_qk(t):
        a.i(f'v_and_b32 v{t}, 3, v0')
        a.i(f'v_add_u32 v{t}, s62, v{t}')

    def u_nat(add):
        def f(t):
            a.i(f'v_bfe_u32 v{t}, v0, 1, 1')
            a.i(f'v_add_u32 v{t}, s62, v{t}')
            if add:
                a.i(f'v_add_u32 v{t}, {add}, v{t}')
        return f

    def sub8(t):
        a.i(f'v_and_b32 v{t}, 1, v0')
        a.i(f'v_lshlrev_b32 v{t}, 3, v{t}')
    tr_addr(a, aq, 256, 'nat', sw, u_qk, None, 30, 31)
    tr_addr(a, a0, 256, 'nat', sw, u_nat(0), sub8, 30, 31)
    tr_addr(a, a1, 256, 'nat', sw, u_nat(2), sub8, 30, 31)
    ds = DsAddr(a, tA)
    chunks = [(m, h) for m in mats for h in range(2)]

    def issue(c):
        (m, karg, nb), h = chunks[c]
        srd(a, 8, karg, nb)
        for bi in range(9):
            for hh in range(2):
                dma(a, vq, WT, sW1k, (BUF0, BUF1)[c & 1] + bi * 8192 + hh * 4096, scol, (32 * (9 * h + bi) + 16 * hh) * gpitch)
    issue(0)
    issue(1)
    for c in range(len(chunks)):
        a.waitcnt(vm=18 if c + 1 < len(chunks) else 0)
        a.i('s_barrier')
        (m, _, _), h = chunks[c]
        for bi in range(9):
            for b in range(2):
                ar, o = (aq, 8 * b) if m in qk_style else ((a0, a1)[b], 0)
                tr_frag(a, ds, W[(m, b, 9 * h + bi)], ar, (BUF0, BUF1)[c & 1] + bi * 8192 + o, 256, 'nat')
        a.barrier()
        if c + 2 < len(chunks):
            issue(c + 2)


def proj(a, stamps=False):
    a.label('L_proj')
    rt_stamp(a, stamps, 0)
    arrive(a)
    W = {}
    for m in 'kvq':
        for j in range(18):
            for b in range(2):
                W[(m, b, j)] = 80 + 4 * len(W)
    a.i(f's_lshl_b32 s{sW1k}, s{sW}, 10')
    a.i(f's_mul_i32 s{sW9k}, s{sW}, 9216')
    a.i(f's_lshl_b32 s61, s{sIDX}, 8')
    nb = 576 * 4096 * 2
    stage256(a, [('k', K_WK, nb), ('v', K_WV, nb), ('q', K_WQ, nb)], 8192, 61, W, 'qk')
    x_setup(a, NA, F_NA, 30, 31, 32)
    a.i(f's_mul_i32 s{sOut}, s{sL}, {64 * QKV_UNIT}')
    a.i(f's_mul_i32 s28, s{sIDX}, 24576')
    a.i(f's_add_u32 s{sOut}, s{sOut}, s28')
    a.i(f's_lshl_b32 s28, s{sW}, 11')
    a.i(f's_add_u32 s{sOut}, s{sOut}, s28')
    a.i(f's_add_u32 s{sOut}, s{sOut}, {QKV}')
    a.i(f's_lshl_b32 s{sFp}, s{sIDX}, 11')
    a.i(f's_lshl_b32 s28, s{sW}, 9')
    a.i(f's_add_u32 s{sFp}, s{sFp}, s28')
    a.i(f's_lshl_b32 s28, s{sL}, 8')
    a.i(f's_add_u32 s{sFp}, s{sFp}, s28')
    a.i(f's_add_u32 s{sFq}, s{sFp}, {F_Q - 4}')
    a.i(f's_add_u32 s{sFp}, s{sFp}, {F_KV}')
    wait_init(a, 30)
    rt_stamp(a, stamps, 1, 30)
    x_block(a, 5)
    KA, VA, QA, RG = 16, 32, 48, 64
    a.label('L_proj_loop')
    a.i('s_barrier')
    stamp(a, stamps, 0)
    a.batch = 1
    r1 = [RG, RG + 4, RG + 8, RG + 12, QA, QA + 4]
    for n in range(6):
        xread(a, r1[n], n & 1, n >> 1)
    x_adv(a)
    r2 = [RG, RG + 4, RG + 8, RG + 12, KA + 4, KA + 12]
    low = []
    at = {10: [lambda: x_flag(a)], 19: [lambda: x_poll(a)], 28: [lambda: x_chk(a)]}
    dl = x_dma_list(WT)
    for n in range(36):
        j, rt = n >> 1, n & 1
        x = r1[n % 6]
        low += at.get(n, [])
        if n >= 29:
            low += [dl.pop(0) for _ in range(2) if dl]
        for q in range(4):
            b = q >> 1
            if q & 1:
                acc = VA + 8 * b + 4 * rt
                a.mfma(acc, x, W[('v', b, j)], None if j == 0 else acc)
            else:
                acc = KA + 8 * rt + 4 * b
                a.mfma(acc, W[('k', b, j)], x, None if j == 0 else acc)
            if q == 3:
                if n + 6 < 36:
                    xread(a, x, (n + 6) & 1, (n + 6) >> 1)
                elif x in r2[:4]:
                    m = r2.index(x)
                    xread(a, x, m & 1, m >> 1)
                a.prewait_regs(r1[(n + 1) % 6] if n < 35 else r2[0])
            elif q != 1:
                a.fill(low)
    assert not low and not dl
    a.join_vm_tag('x')
    stamp(a, stamps, 1)
    low = [f's_add_u32 s60, s{sOut}, 8192', f's_add_u32 s61, s{sOut}, 16384']
    st = []
    for gi, (base, so) in enumerate(((KA, 60), (KA + 8, 60), (VA, 61), (VA + 8, 61))):
        low += [f'v_cvt_pk_bf16_f32 v{base + x}, v{base + 2 * x}, v{base + 2 * x + 1}' for x in range(4)]
        if gi < 2:
            low.append(lambda gi=gi: xread(a, r2[4 + gi], gi, 2))
        st.append(lambda base=base, so=so, gi=gi: a.i(
            f'buffer_store_dwordx4 {R(base, 4)}, v{vLn}, {WS}, s{so} offen offset:{(gi & 1) * 1024} sc1', tag='kv'))
        if gi:
            low.append(st[gi - 1])
    low.append(st[3])
    for n in range(36):
        j, rt = n >> 1, n & 1
        x = r2[n % 6]
        for b in range(2):
            acc = QA + 8 * rt + 4 * b
            a.mfma(acc, W[('q', b, j)], x, None if j == 0 else acc)
            if b == 1:
                if n + 6 < 36:
                    xread(a, x, (n + 6) & 1, (n + 6) >> 1)
                if n < 35:
                    if n < 5:
                        a.fill(low, 4)
                    a.prewait_regs(r2[(n + 1) % 6])
            a.fill(low, 3 if n < 5 else 2)
    a.batch = 0
    a.wait_tag('kv')
    publish(a, sFp)
    a.i(f's_add_u32 s{sFp}, s{sFp}, 4')
    for rt in range(2):
        base = QA + 8 * rt
        for x in range(4):
            a.i(f'v_cvt_pk_bf16_f32 v{base + x}, v{base + 2 * x}, v{base + 2 * x + 1}')
        a.i(f'buffer_store_dwordx4 {R(base, 4)}, v{vLn}, {WS}, s{sOut} offen offset:{rt * 1024} sc1')
    a.i(f's_add_u32 s{sOut}, s{sOut}, {QKV_UNIT}')
    stamp(a, stamps, 2)
    stamp_flush(a, stamps, 3, sS, KA)
    x_next(a, 'L_proj', 6, (vXe, vXo))
    a.label('L_proj_done')
    rt_stamp(a, stamps, 2, 30)
    a.i('s_endpgm')


def ln_init(a, add=0):
    X, F, t = 16, 64, 140
    srd(a, 12, K_X, 2048 * 1152)
    a.i(f's_lshl_b32 s60, s{sL}, 5')
    a.i(f's_add_u32 s60, s60, s{sIDX}')
    a.i(f's_add_u32 s60, s60, {add}')
    a.i(f's_mul_i32 s61, s60, {UNIT}')
    a.i(f's_mul_i32 s28, s{sW}, 9216')
    a.i(f's_add_u32 s61, s61, s28')
    a.i(f'v_lshrrev_b32 v{t}, 3, v0')
    a.i(f'v_mul_u32_u24 v{t}, 1152, v{t}')
    a.i(f'v_and_b32 v{t + 1}, 7, v0')
    a.i(f'v_lshl_add_u32 v{t}, v{t + 1}, 4, v{t}')
    for i in range(9):
        a.i(f'buffer_load_dwordx4 {R(X + 4 * i, 4)}, v{t}, {IO}, s61 offen offset:{i * 128}')
    for d in range(36):
        a.i(f'v_lshlrev_b32 v{F + 2 * d}, 16, v{X + d}')
        a.i(f'v_and_b32 v{F + 2 * d + 1}, 0xffff0000, v{X + d}')
    s_, q_ = t + 2, t + 3

    def red(r):
        for m in ('quad_perm:[1,0,3,2]', 'quad_perm:[2,3,0,1]', 'row_half_mirror'):
            a.i(f'v_add_f32_dpp v{r}, v{r}, v{r} {m} row_mask:0xf bank_mask:0xf')
    a.i(f'v_add_f32 v{s_}, v{F}, v{F + 1}')
    for d in range(2, 72):
        a.i(f'v_add_f32 v{s_}, v{s_}, v{F + d}')
    red(s_)
    a.i(f'v_mul_f32 v{s_}, {hex(f2u(1 / 576))}, v{s_}')
    for d in range(72):
        a.i(f'v_sub_f32 v{F + d}, v{F + d}, v{s_}')
    a.i(f'v_mul_f32 v{q_}, v{F}, v{F}')
    for d in range(1, 72):
        a.i(f'v_fmac_f32 v{q_}, v{F + d}, v{F + d}')
    red(q_)
    a.i(f'v_mov_b32 v{s_}, {hex(f2u(1e-5))}')
    a.i(f'v_fmac_f32 v{s_}, {hex(f2u(1 / 576))}, v{q_}')
    a.i(f'v_rsq_f32 v{s_}, v{s_}')
    for d in range(72):
        a.i(f'v_mul_f32 v{F + d}, v{F + d}, v{s_}')
    for d in range(36):
        a.i(f'v_cvt_pk_bf16_f32 v{X + d}, v{F + 2 * d}, v{F + 2 * d + 1}')
    a.i(f's_add_u32 s61, s61, {NA}')
    for i in range(9):
        a.i(f'buffer_store_dwordx4 {R(X + 4 * i, 4)}, v{t}, {WS}, s61 offen offset:{i * 128} sc1')
    wait_init(a, t + 1)
    a.i(f'v_and_b32 v{t}, 15, v0')
    a.i(f'v_lshlrev_b32 v{t}, 9, v{t}')
    a.i(f's_lshl_b32 s61, s{sW}, 13')
    a.i('s_lshl_b32 s60, s60, 2')
    a.i('s_add_u32 s61, s61, s60')
    a.i(f'v_mov_b32 v{t + 1}, 1')
    a.i('s_mov_b64 exec, 0xffff')
    a.i(f'buffer_store_dword v{t + 1}, v{t}, {WS}, s61 offen offset:{F_NA} sc1')
    a.i('s_mov_b64 exec, -1')


def geglu(g, u, t, vc0, sc1):
    return [f'v_mul_f32 v{t}, v{g}, v{g}',
            f'v_fma_f32 v{t}, v{t}, s{sc1}, v{vc0}',
            f'v_mul_f32 v{t}, v{t}, v{g}',
            f'v_exp_f32 v{t}, v{t}',
            f'v_mul_f32 v{g}, v{g}, v{u}',
            f'v_add_f32 v{t}, 1.0, v{t}',
            f'v_rcp_f32 v{t}, v{t}',
            f'v_mul_f32 v{g}, v{g}, v{t}']


def up(a, stamps=False):
    a.label('L_up')
    rt_stamp(a, stamps, 0)
    arrive(a)
    a.i(f's_lshl_b32 s{sW1k}, s{sW}, 10')
    a.i(f's_mul_i32 s{sW9k}, s{sW}, 9216')
    ln_init(a)
    W = {}
    for j in range(36):
        for b in range(3):
            W[(b, j)] = 80 + 4 * len(W)
    v3, at, tA = 20, 23, 26
    sw = SWZ['p1', 'nat']
    dma_voff_72(a, v3, sw, 30, 31, 32, upr=24, gpitch=9216)
    a.i(f's_mul_i32 s62, s{sW}, 6')
    bits(a, 30, 0, [(2, 3, 0), (5, 1, 3)], 31)
    bits(a, 32, 30, sw, 31)
    a.i('v_mul_u32_u24 v30, 384, v30')
    a.i('v_bfe_u32 v31, v0, 4, 1')
    a.i('v_mul_u32_u24 v31, 36864, v31')
    a.i('v_add_u32 v30, v30, v31')
    a.i('v_and_b32 v31, 2, v0')
    a.i('v_lshl_add_u32 v30, v31, 2, v30')
    for b in range(3):
        a.i('v_and_b32 v31, 1, v0')
        a.i('v_add_u32 v31, s62, v31')
        a.i(f'v_add_u32 v31, {2 * b}, v31')
        a.i('v_xor_b32 v31, v31, v32')
        a.i(f'v_lshl_add_u32 v{at + b}, v31, 4, v30')
    ds = DsAddr(a, tA)
    a.i(f's_mul_i32 s60, s{sW}, 3072')
    a.i(f's_mul_i32 s61, s{sIDX}, 384')

    def issue(c):
        for mi, karg in enumerate((K_WG, K_WU)):
            srd(a, 8, karg, 576 * 4608 * 2)
            for bi in range(3):
                for k in range(3):
                    dma(a, v3 + k, WT, 60, (BUF0, BUF1)[c & 1] + mi * 36864 + bi * 12288 + k * 1024, 61, 32 * (3 * c + bi) * 9216)
    issue(0)
    issue(1)
    for c in range(6):
        a.waitcnt(vm=18 if c < 5 else 0)
        a.i('s_barrier')
        for b in range(3):
            for jj in range(6):
                tr_frag(a, ds, W[(b, 6 * c + jj)], at + b, (BUF0, BUF1)[c & 1] + jj * 6144, 384, 'nat')
        a.barrier()
        if c + 2 < 6:
            issue(c + 2)
    vC0, vX2, vX3, vH, sC1 = 15, 16, 17, vT, 42
    bits(a, vH, 0, [(0, 15, 4), (5, 1, 8)], 30)
    a.i('v_bfe_u32 v30, v0, 4, 1')
    a.i(f'v_mul_u32_u24 v30, {144 * 1024}, v30')
    a.i(f'v_add_u32 v{vH}, v{vH}, v30')
    a.i('v_and_b32 v33, 31, v0')
    a.i('v_mul_u32_u24 v33, 1152, v33')
    a.i('v_bfe_u32 v34, v0, 1, 3')
    a.i('v_lshrrev_b32 v35, 5, v0')
    a.i('v_xor_b32 v34, v34, v35')
    x_setup(a, NB, F_NB, 30, 31, 32)
    xa = [vXe, vXo, vX2, vX3]
    for q in range(4):
        a.i(f'v_xor_b32 v35, {2 * q}, v34')
        a.i(f'v_lshl_add_u32 v{xa[q]}, v35, 4, v33')
    c0 = -2 * math.sqrt(2 / math.pi) * math.log2(math.e)
    a.i(f'v_mov_b32 v{vC0}, {hex(f2u(c0))}')
    a.i(f's_mov_b32 s{sC1}, {hex(f2u(c0 * 0.044715))}')
    a.i(f's_mul_i32 s{sOut}, s{sL}, {64 * H_UNIT}')
    a.i(f's_add_u32 s{sOut}, s{sOut}, {HB}')
    a.i(f's_mul_i32 s28, s{sIDX}, 6144')
    a.i(f's_add_u32 s{sOut}, s{sOut}, s28')
    a.i(f's_mul_i32 s28, s{sW}, 1536')
    a.i(f's_add_u32 s{sOut}, s{sOut}, s28')
    a.i(f's_lshl_b32 s{sFq}, s{sIDX}, 11')
    a.i(f's_lshl_b32 s28, s{sW}, 9')
    a.i(f's_add_u32 s{sFq}, s{sFq}, s28')
    a.i(f's_lshl_b32 s28, s{sL}, 8')
    a.i(f's_add_u32 s{sFq}, s{sFq}, s28')
    a.i(f's_add_u32 s{sFq}, s{sFq}, {F_H - 4}')
    rt_stamp(a, stamps, 1, 30)
    x_block(a, 7)
    ACC, RG, TM = 20, 52, 72
    a.i(f'v_mov_b32 v18, s{sC1}')
    a.i(f'v_mov_b32 v19, v{vC0}')
    a.label('L_up_loop')
    a.i('s_barrier')
    stamp(a, stamps, 0)
    a.batch = 1

    def fin(b):
        base = ACC + 16 * (b & 1)
        return [f'v_cvt_pk_bf16_f32 v{base + k}, v{base + 2 * k}, v{base + 2 * k + 1}' for k in range(4)] + \
               [f'buffer_store_dwordx4 {R(base, 4)}, v{vH}, {WS}, s{sOut} offen offset:{b * 512} sc1']

    def epi(b):
        base = ACC + 16 * (b & 1)
        ls = [geglu(base + k, base + 8 + k, TM + k, vC0, sC1) for k in range(8)]
        return [l[st] for st in range(8) for l in ls] + fin(b)

    def epi_pk(b):
        g = ACC + 16 * (b & 1)
        P = lambda r: R(r, 2)
        o = [f'v_pk_mul_f32 {P(TM + k)}, {P(g + k)}, {P(g + k)}' for k in (0, 2, 4, 6)]
        o += [f'v_pk_fma_f32 {P(TM + k)}, {P(TM + k)}, v[18:19], v[18:19] op_sel:[0,0,1] op_sel_hi:[1,0,1]' for k in (0, 2, 4, 6)]
        o += [f'v_pk_mul_f32 {P(TM + k)}, {P(TM + k)}, {P(g + k)}' for k in (0, 2, 4, 6)]
        o += [f'v_exp_f32 v{TM + k}, v{TM + k}' for k in range(8)]
        o += [f'v_pk_mul_f32 {P(g + k)}, {P(g + k)}, {P(g + 8 + k)}' for k in (0, 2, 4, 6)]
        o += [f'v_pk_add_f32 {P(TM + k)}, {P(TM + k)}, 1.0 op_sel_hi:[1,0]' for k in (0, 2, 4, 6)]
        o += [f'v_rcp_f32 v{TM + k}, v{TM + k}' for k in range(8)]
        o += [f'v_pk_mul_f32 {P(g + k)}, {P(g + k)}, {P(TM + k)}' for k in (0, 2, 4, 6)]
        return o + fin(b)

    def rd(n):
        j = n % 36
        a.i(f'ds_read_b128 {R(RG + 4 * (n % 5), 4)}, v{xa[j & 3]} offset:{(j >> 2) * 128}')
    for n in range(5):
        rd(n)
    x_adv(a)
    low = []
    at = {28: [lambda: x_flag(a)], 39: epi(0), 75: epi(1)}
    dl = x_dma_list(WT)
    for n in range(108):
        b, j = divmod(n, 36)
        acc = ACC + 16 * (b & 1)
        if j == 0:
            assert not low
        a.mfma(acc, W[(b, j)], RG + 4 * (n % 5), None if j == 0 else acc, k='big')
        if n + 5 < 108:
            rd(n + 5)
        if n < 107:
            a.prewait_regs(RG + 4 * ((n + 1) % 5))
        if n == 50:
            x_poll(a)
        if n == 72:
            x_chk(a)
        if n >= 74 and n % 2 == 0 and dl:
            a.i(dl.pop(0))
            if dl and not dl[0].startswith('s_') and a.hist[-1].kind == 'salu':
                a.i(dl.pop(0))
            if not dl:
                a.join_vm_tag('x')
        low += at.get(n, [])
        a.fill(low, 6)
    assert not low and not dl
    a.batch = 0
    stamp(a, stamps, 1)
    for p in epi_pk(2):
        a.i(p)
    a.i(f's_add_u32 s{sOut}, s{sOut}, {H_UNIT}')
    stamp(a, stamps, 2)
    stamp_flush(a, stamps, 3, sS, ACC + 16)
    x_next(a, 'L_up', 8, xa)
    a.label('L_up_done')
    rt_stamp(a, stamps, 2, 30)
    a.i('s_endpgm')
```

```python
import math
import struct
from common import *

WORK = 147456
MEMO, SAO, S1O, OO = 0, 9216, 9216 + 4096, 9216 + 5120
vLn, vMd, vWc, vPs, vAg, vSa, vFl, vT, vKs, vSh, vS1, vOw = range(12)
SEL, KV, A, Dr, C, E = 12, 16, 32, 48, 64, 72
sT, sTask, sRS, sAG0, sAG1, sAG2, sPst, sPs8, sU, sC, sKV, sAGb, sXb, sYb, sFo, sFk = range(30, 46)
sM1, sHi, sPx = 46, 48, 50
sH256, sW1k, sW256 = 52, 53, 54


def f2u(x):
    return struct.unpack('<I', struct.pack('<f', x))[0]


def frag_map():
    m = {}
    nxt = [80]

    def al(key):
        m[key] = nxt[0]
        nxt[0] += 4
    for j in range(18):
        for b in range(2):
            al(('k', b, j))
            al(('v', b, j))
            if j & 1:
                al(('q', b, j))
    for i in range(9):
        al(('o', i, 0))
        al(('o', i, 1))
    assert nxt[0] == 512, nxt
    return m


def task_id(a):
    a.i(f's_lshl_b32 s{sTask}, s{sW}, 5')
    a.i(f's_add_u32 s{sTask}, s{sTask}, s{sIDX}')


def chain(a, stamps=False):
    W = frag_map()
    a.label('L_chain')
    rt_stamp(a, stamps, 0)
    a.i(f's_lshl_b32 s{sH256}, s{sIDX}, 8')
    a.i(f's_lshl_b32 s{sW1k}, s{sW}, 10')
    a.i(f's_lshl_b32 s{sW256}, s{sW}, 8')
    task_id(a)
    a.i(f's_mov_b32 s{sM1}, 0x00ff00ff')
    a.i(f's_mov_b32 s{sM1 + 1}, 0x00ff00ff')
    a.i(f's_mov_b32 s{sHi}, 0')
    a.i(f's_mov_b32 s{sHi + 1}, -1')
    a.i(f's_mov_b32 s{sC}, {hex(f2u(128 ** -0.5 * math.log2(math.e)))}')
    a.i(f's_mul_i32 s{sRS}, s{sL}, {CRS_L}')
    a.i(f's_add_u32 s{sPst}, s{sRS}, {CRS}')
    a.i(f's_lshl_b32 s28, s{sTask}, 12')
    a.i(f's_add_u32 s{sRS}, s{sPst}, s28')
    a.i(f's_cmp_ge_u32 s{sTask}, 72')
    a.i(f's_cselect_b32 s{sRS}, {OOB}, s{sRS}')
    a.i(f's_mul_i32 s{sAG0}, s{sL}, {CAG_L}')
    a.i(f's_add_u32 s{sAG0}, s{sAG0}, {CAG}')
    a.i(f's_add_u32 s{sAG1}, s{sAG0}, {CAG_SLOT}')
    a.i(f's_add_u32 s{sAG2}, s{sAG0}, {2 * CAG_SLOT}')
    a.i('v_lshlrev_b32 v10, 4, v0')
    bits(a, vAg, 0, [(0, 7, 4), (4, 1, 3)], 12)
    srd(a, 12, K_MEM0, 9216)
    a.i(f's_cmp_ge_u32 s{sTask}, 72')
    a.i('s_cbranch_scc1 L_ch_noinit')
    for k in range(4):
        a.i(f'v_mov_b32 v{16 + k}, 1')
    a.i('v_mov_b32 v20, -1')
    a.i('v_mov_b32 v21, -1')
    for i in range(4):
        a.i(f'buffer_store_dwordx4 v[16:19], v10, {WS}, s{sRS} offen offset:{i * 1024}')
    a.i(f's_lshl_b32 s60, s{sTask}, 7')
    for sl in (sAG1, sAG2):
        a.i(f's_add_u32 s28, s60, s{sl}')
        a.i(f'buffer_store_dwordx2 v[20:21], v{vAg}, {WS}, s28 offen')
    a.i('v_and_b32 v12, 7, v0')
    a.i('v_mul_u32_u24 v12, 1152, v12')
    a.i('v_bfe_u32 v13, v0, 4, 1')
    a.i('v_lshl_add_u32 v12, v13, 5, v12')
    a.i(f's_lshr_b32 s28, s{sTask}, 2')
    a.i('s_lshl_b32 s28, s28, 6')
    a.i(f's_and_b32 s61, s{sTask}, 3')
    a.i('s_lshl_b32 s61, s61, 3')
    a.i('s_add_u32 s28, s28, s61')
    a.i(f'buffer_load_dwordx2 v[22:23], v12, {IO}, s28 offen')
    a.i('v_min_u32 v22, -2, v22')
    a.i('v_min_u32 v23, -2, v23')
    a.i(f's_add_u32 s28, s60, s{sAG0}')
    a.i(f'buffer_store_dwordx2 v[22:23], v{vAg}, {WS}, s28 offen')
    a.label('L_ch_noinit')
    arrive(a)
    vq, v9 = 16, 17
    aQK, aV0, aV1, aO0, aO1, aO8, tA = 26, 27, 28, 29, 30, 31, 32
    dma_voff_pow2(a, vq, 16, 8192, SWZ['p2', 'pair'], 40, 41)
    dma_voff_72(a, v9, SWZ['p1', 'pair'], 40, 41, 42)
    a.i(f's_lshl_b32 s62, s{sW}, 2')
    a.i(f's_lshl_b32 s63, s{sW}, 1')

    def u_qk(t):
        a.i(f'v_and_b32 v{t}, 3, v0')
        a.i(f'v_add_u32 v{t}, s62, v{t}')

    def u_nat(sreg, add):
        def f(t):
            a.i(f'v_bfe_u32 v{t}, v0, 1, 1')
            a.i(f'v_add_u32 v{t}, s{sreg}, v{t}')
            if add:
                a.i(f'v_add_u32 v{t}, {add}, v{t}')
        return f

    def sub8(t):
        a.i(f'v_and_b32 v{t}, 1, v0')
        a.i(f'v_lshlrev_b32 v{t}, 3, v{t}')
    tr_addr(a, aQK, 256, 'pair', SWZ['p2', 'pair'], u_qk, None, 40, 41)
    tr_addr(a, aV0, 256, 'pair', SWZ['p2', 'pair'], u_nat(62, 0), sub8, 40, 41)
    tr_addr(a, aV1, 256, 'pair', SWZ['p2', 'pair'], u_nat(62, 2), sub8, 40, 41)
    tr_addr(a, aO0, 1152, 'pair', SWZ['p1', 'pair'], u_nat(62, 0), sub8, 40, 41)
    tr_addr(a, aO1, 1152, 'pair', SWZ['p1', 'pair'], u_nat(62, 2), sub8, 40, 41)
    tr_addr(a, aO8, 1152, 'pair', SWZ['p1', 'pair'], u_nat(63, 64), sub8, 40, 41)
    ds = DsAddr(a, tA)
    a.i(f's_mul_i32 s60, s{sW}, 9216')
    a.i(f's_mul_i32 s61, s{sIDX}, {128 * 1152}')
    chunks = [('k', list(range(0, 9))), ('k', list(range(9, 18))), ('v', list(range(0, 9))), ('v', list(range(9, 18))),
              ('q', list(range(1, 18, 2))), ('o', [0, 1]), ('q', list(range(0, 18, 2))), ('o', [2, 3])]
    karg = {'q': K_WQ, 'k': K_WK, 'v': K_WV, 'o': K_WO}

    def issue(c):
        m, blks = chunks[c]
        buf = (BUF0, BUF1)[c & 1]
        srd(a, 8, karg[m], 576 * 4096 * 2)
        for bi, j in enumerate(blks):
            if m != 'o':
                for hh in range(2):
                    dma(a, vq, WT, sW1k, buf + bi * 8192 + hh * 4096, sH256, (32 * j + 16 * hh) * 8192)
            else:
                for n in range(9):
                    dma(a, v9 + n, WT, 60, buf + bi * 36864 + n * 1024, 61, j * 36864)

    def reads(c, sel=None, dst=None):
        m, blks = chunks[c]
        buf = (BUF0, BUF1)[c & 1]
        for bi, j in enumerate(blks):
            if sel is not None and bi not in sel:
                continue
            if m == 'o':
                for i in range(9):
                    ar, o = (aO8, 0) if i == 8 else ((aO0, aO1)[i & 1], 256 * (i >> 1))
                    tr_frag(a, ds, dst(('o', i, j)), ar, buf + bi * 36864 + o, 1152, 'pair')
            else:
                for b in range(2):
                    ar, o = (aQK, 8 * b) if m != 'v' else ((aV0, aV1)[b], 0)
                    tr_frag(a, ds, dst((m, b, j)), ar, buf + bi * 8192 + o, 256, 'pair')
    issue(0)
    issue(1)
    for c in range(6):
        a.waitcnt(vm=18)
        a.i('s_barrier')
        reads(c, dst=lambda k: W[k])
        a.barrier()
        issue(c + 2)
    a.i('v_lshlrev_b32 v33, 4, v0')
    a.i(f's_lshl_b32 s{sXb}, s{sW}, 11')
    a.i(f's_add_u32 s{sYb}, s60, {BUF1}')
    a.waitcnt(vm=18)
    a.i('s_barrier')
    for sel in ([0, 1, 2, 3, 4], [5, 6, 7, 8]):
        tmp = {}
        reads(6, sel, dst=lambda k: tmp.setdefault(k, 40 + 4 * len(tmp)))
        a.barrier()
        a.i(f'v_add_u32 v34, s{sXb}, v33')
        a.i(f'v_add_u32 v34, {sel[0] * 8192}, v34')
        for (m, b, j), r in tmp.items():
            a.i(f'ds_write_b128 v34, {R(r, 4)} offset:{(j // 2 - sel[0]) * 8192 + b * 1024}')
    a.waitcnt(vm=0)
    a.barrier()
    a.i(f'v_add_u32 v34, s{sYb}, v33')
    for bi in range(2):
        tmp = {}
        reads(7, [bi], dst=lambda k: tmp.setdefault(k, 40 + 4 * len(tmp)))
        a.barrier()
        for (m, i, j), r in tmp.items():
            a.i(f'ds_write_b128 v34, {R(r, 4)} offset:{bi * 36864 + i * 1024}')
    sel_frag(a, SEL, 16, 17)
    bits(a, vMd, 0, [(0, 7, 4), (4, 3, 7)], 16)
    bits(a, vPs, 0, [(0, 7, 4), (4, 3, 12), (3, 1, 30)], 16)
    bits(a, vKs, 0, [(0, 7, 4), (4, 3, 7), (3, 1, 30)], 16)
    bits(a, vSh, 0, [(5, 1, 4)], 16)
    a.i(f'v_add_u32 v{vMd}, {WORK}, v{vMd}')
    a.i(f's_lshl_b32 s28, s{sW}, 9')
    a.i(f'v_add_u32 v{vOw}, s28, v{vMd}')
    a.i(f'v_lshlrev_b32 v{vS1}, 2, v0')
    a.i(f'v_add_u32 v{vS1}, {WORK + S1O}, v{vS1}')
    a.i(f'v_lshlrev_b32 v{vLn}, 4, v0')
    a.i(f'v_add_u32 v{vSa}, {WORK}, v{vLn}')
    a.i(f's_lshl_b32 s28, s{sIDX}, 7')
    a.i(f's_add_u32 s{sPst}, s{sPst}, s28')
    a.i(f's_lshr_b32 s28, s{sW}, 1')
    a.i('s_add_u32 s28, s28, 16')
    a.i('s_lshl_b32 s28, s28, 14')
    a.i(f's_add_u32 s{sPs8}, s{sPst}, s28')
    a.i(f's_and_b32 s28, s{sW}, 1')
    a.i('s_lshl_b32 s28, s28, 3')
    a.i(f's_add_u32 s{sPs8}, s{sPs8}, s28')
    a.i(f's_lshl_b32 s28, s{sW}, 14')
    a.i(f's_add_u32 s{sPst}, s{sPst}, s28')
    a.i(f's_mul_i32 s{sAGb}, s{sW}, 3072')
    a.i(f's_lshl_b32 s55, s{sTask}, 7')
    a.i(f's_mul_i32 s{sU}, s{sIDX}, 24576')
    a.i(f's_add_u32 s{sU}, s{sU}, s{sXb}')
    a.i(f's_mul_i32 s28, s{sL}, {64 * QKV_UNIT}')
    a.i(f's_add_u32 s{sU}, s{sU}, s28')
    a.i(f's_add_u32 s{sU}, s{sU}, {QKV + 8192}')
    a.i(f's_lshl_b32 s{sFo}, s{sIDX}, 11')
    a.i(f's_lshl_b32 s28, s{sW}, 9')
    a.i(f's_add_u32 s{sFo}, s{sFo}, s28')
    a.i(f's_lshl_b32 s{sKV}, s{sIDX}, 12')
    a.i(f's_add_u32 s{sKV}, s{sKV}, s28')
    a.i(f's_lshl_b32 s28, s{sL}, 8')
    a.i(f's_add_u32 s{sFo}, s{sFo}, s28')
    a.i(f's_add_u32 s{sFo}, s{sFo}, {F_KV}')
    a.i(f's_lshl_b32 s{sFk}, s{sIDX}, 9')
    a.i(f's_add_u32 s{sFk}, s{sFk}, s28')
    a.i(f's_add_u32 s{sFk}, s{sFk}, {F_KVM - 4}')
    a.i(f's_mul_i32 s28, s{sL}, {64 * KVM_UNIT}')
    a.i(f's_add_u32 s{sKV}, s{sKV}, s28')
    a.i(f's_add_u32 s{sKV}, s{sKV}, {KVM}')
    a.i(f's_mov_b64 s[{sPx}:{sPx + 1}], 0')
    a.i(f's_add_u32 s56, s{sW256}, {(MEMO + 8192 - S1O) & 0xffffffff}')
    a.i(f's_mov_b32 s{sT}, 0')
    wait_init(a, 32)
    a.barrier()
    rt_stamp(a, stamps, 1, 32)

    def I(text, **kw):
        return lambda: a.i(text, **kw)

    def k_loads():
        return [f'buffer_load_dwordx4 {R(KV + 4 * x, 4)}, v{vLn}, {WS}, s{sU} offen offset:{x * 1024} sc1' for x in range(2)]

    def kv_block(code):
        l = spin_head(a, code)
        a.i(f'buffer_load_dword v{vFl}, off, {WS}, s{sFo} sc1')
        a.i(f'v_cmp_eq_u32 vcc, 0, v{vFl}')
        a.i(f's_cbranch_vccnz {l}', nohaz=True)
        for p in k_loads():
            a.i(p)
        a.waitcnt(vm=0)
    kv_block(3)
    a.label('L_ch_loop')
    Lslots = [C, C + 4, E, E + 4]
    NV = 0
    a.i(f'v_add_u32 v{vWc}, s{sXb}, v{vLn}')

    def lread(n):
        off = (n // 2) * 8192 + (n & 1) * 1024
        if n == 16:
            a.i(f'v_add_u32 v{vWc}, 0x10000, v{vWc}')
        if n >= 16:
            off -= 0x10000
        a.i(f'ds_read_b128 {R(Lslots[n % 4], 4)}, v{vWc} offset:{off}')
    for n in range(4):
        lread(n)
    stamp(a, stamps, 0)
    a.i(f's_add_u32 s60, s{sAG0}, s{sAGb}')
    a.i(f'v_add_u32 v{vT}, s{sAGb}, v{vSa}')
    a.i(f's_mov_b32 s{sTO}, {TIMEOUT}')
    a.i('s_mov_b32 s29, 2')
    a.i(f's_cmp_lg_u32 s{sW}, 3')
    a.i('s_cbranch_scc1 L_ch_ag', nohaz=True)
    a.waitcnt(vm=0)
    a.i('s_branch L_ch_agok')
    a.label('L_ch_ag')
    for i in range(3):
        a.i(f'buffer_load_dwordx4 {R(A + 4 * i, 4)}, v{vLn}, {WS}, s60 offen offset:{i * 1024} sc1')
    a.i(f's_sub_u32 s{sTO}, s{sTO}, 1')
    a.i('s_cbranch_scc1 L_abort', nohaz=True)
    m0 = A + 12
    for i in range(3):
        r = A + 4 * i
        a.i(f'ds_write_b128 v{vT}, {R(r, 4)} offset:{MEMO + i * 1024}')
        if i == 0:
            a.i(f'v_max_u32 v{m0}, v{r}, v{r + 1}')
        else:
            a.i(f'v_max3_u32 v{m0}, v{r}, v{r + 1}, v{m0}')
        a.i(f'v_max3_u32 v{m0}, v{r + 2}, v{r + 3}, v{m0}')
    a.i(f'v_cmp_eq_u32 vcc, -1, v{m0}')
    a.i('s_cbranch_vccnz L_ch_ag', nohaz=True)
    a.label('L_ch_agok')
    stamp(a, stamps, 1)
    a.barrier()
    ring = [Dr + 4 * x for x in range(4)]

    def mread(j, blk=None):
        a.i(f'ds_read_b128 {R(ring[j % 4], 4)}, v{vMd} offset:{MEMO + (j if blk is None else blk) * 512}')
    for j in range(4):
        mread(j)
    a.batch = int(os.environ.get('CB', 1))
    stamp(a, stamps, 2)

    def pub():
        a.i(f's_mov_b64 exec, s[{sPx}:{sPx + 1}]')
        a.i(f'buffer_store_dword v{vMd}, off, {WS}, s{sFk} sc1')
        a.vm.pop()
        a.i('s_mov_b64 exec, -1')
    VA, QA, KA = E, A, A + 8
    B = KV
    qf, kf, sm = A, A + 8, A + 12
    X, xm, t0, t1 = A + 4, C, C + 1, C + 2
    ON, LS = C + 4, Dr + 12
    G = None

    def bar(k):
        def f():
            a.wait_tag('sw')
            stamp(a, stamps, k)
            a.i('s_barrier')
        return f

    def knext():
        a.prewait_regs(KV + 12)
        a.i(f'v_cmp_eq_u32 vcc, 0, v{vFl}')
        a.i('s_mov_b64 s[58:59], vcc')
        a.i('s_cbranch_vccnz L_ch_nokv', nohaz=True)
        vm = list(a.vm)
        for p in k_loads():
            a.i(p)
        a.out.append('L_ch_nokv:')
        a.vm = vm
    sq = [f's_add_u32 s60, s{sU}, 8192', f's_add_u32 s{sFo}, s{sFo}, 4', pub,
          f'buffer_load_dwordx4 {R(KV + 8, 4)}, v{vLn}, {WS}, s60 offen sc1', f's_add_u32 s{sU}, s{sU}, {QKV_UNIT}',
          lambda: (a.i(f's_cmp_eq_u32 s{sW}, 3'), a.i(f's_cselect_b32 s{sPx}, 1, 0')), f's_add_u32 s{sFk}, s{sFk}, 4',
          f'buffer_load_dwordx4 {R(KV + 12, 4)}, v{vLn}, {WS}, s60 offen offset:1024 sc1', f'v_add_u32 v{vT}, s{sW1k}, v{vSa}']
    RB = [C, C + 4, E, E + 4]
    sk = [G, G, G] + [f'v_cvt_pk_bf16_f32 v{qf + x}, v{QA + 2 * x}, v{QA + 1 + 2 * x}' for x in range(4)]
    sk += [G, lambda: a.mfma(B, B, qf, None), lambda: a.mfma(B + 4, B + 4, qf, None),
           f'buffer_load_dword v{vFl}, off, {WS}, s{sFo} sc1', G, G]
    sk += [f'v_cndmask_b32 v{B + x}, v{B + 4 + x}, v{B + x}, s[{sM1}:{sM1 + 1}]' for x in range(4)]
    sk += [I(f'ds_write_b128 v{vT}, {R(B, 4)} offset:{SAO}', tag='sw'), G, G, G, bar(4)]
    sk += [f'ds_read_b128 {R(RB[w], 4)}, v{vSa} offset:{SAO + w * 1024}' for w in range(4)]
    sk += [f'v_add_u32 v{vWc}, s{sW256}, v{vS1}', G, G, G, lambda: a.prewait_regs(E + 4)]
    sk += [f'v_add_f32 v{C + x}, v{C + x}, v{C + 4 + x}' for x in range(4)]
    sk += [f'v_add_f32 v{E + x}, v{E + x}, v{E + 4 + x}' for x in range(4)]
    sk += [f'v_add_f32 v{X + x}, v{C + x}, v{E + x}' for x in range(4)]
    sv = [f'v_max3_f32 v{B}, v{X}, v{X + 1}, v{X + 2}', G, G, G]
    sv += [f'v_cvt_pk_bf16_f32 v{kf + x}, v{KA + 2 * x}, v{KA + 1 + 2 * x}' for x in range(4)]
    sv += [G, lambda: a.mfma(sm, kf, qf, None), f'buffer_store_dwordx4 {R(kf, 4)}, v{vKs}, {WS}, s{sKV} offen sc1']
    sv += [f'v_mov_b32 v{ON + x}, 0x3f803f80' for x in range(4)] + [f'v_max_f32 v{A}, v{X + 3}, v{B}']
    sv += [f'v_cndmask_b32 v{sm}, v{sm}, v{sm + 1}, s[{sHi}:{sHi + 1}]',
           f'v_cndmask_b32 v{sm + 2}, v{sm + 2}, v{sm + 3}, s[{sHi}:{sHi + 1}]',
           f'v_cndmask_b32 v{sm}, v{sm + 2}, v{sm}, s[{sM1}:{sM1 + 1}]',
           I(f'ds_write_b32 v{vWc}, v{sm}', tag='sw'), G, G, G, bar(5),
           f'ds_read2st64_b32 {R(C, 2)}, v{vS1} offset0:0 offset1:1', f'ds_read2st64_b32 {R(C + 2, 2)}, v{vS1} offset0:2 offset1:3',
           knext, G, G,
           f'v_add_f32 v{C}, v{C}, v{C + 1}', f'v_add_f32 v{C + 2}, v{C + 2}, v{C + 3}', f'v_add_f32 v{xm}, v{C}, v{C + 2}',
           f'v_max_f32 v{t0}, v{xm}, v{A}', G,
           f'v_max_f32_dpp v{t0}, v{t0}, v{t0} row_ror:8 row_mask:0xf bank_mask:0xf']
    for sw in (16, 32):
        sv += [f'v_mov_b32 v{t1}, v{t0}', G, f'v_permlane{sw}_swap_b32 v{t0}, v{t1}', f'v_max_f32 v{t0}, v{t0}, v{t1}']
    sv += [f'v_mul_f32 v{t0}, s{sC}, v{t0}']
    sv += [f'v_fma_f32 v{r}, v{r}, s{sC}, -v{t0}' for r in (X, X + 1, X + 2, X + 3, xm)]
    sv += [f'v_exp_f32 v{r}, v{r}' for r in (X, X + 1, X + 2, X + 3, xm)]
    wring = [Dr, Dr + 4, Dr + 8, KV + 8, KV + 12]
    groups = [(0, 1), (2, 3), (4, 5), (6, 7, 8)]
    lorder = [(i, kb) for g in groups for kb in (2, 3) for i in g]

    def wread(n):
        i, kb = lorder[n]
        a.i(f'ds_read_b128 {R(wring[n % 5], 4)}, v{vWc} offset:{(kb - 2) * 36864 + i * 1024}')

    def fillg(q, room):
        while q and a.gap < room:
            p = q.pop(0)
            if p is None:
                return
            p() if callable(p) else a.i(p)
    for ph, (m, q, room) in enumerate((('q', sq, 2), ('k', sk, 2), ('v', sv, int(os.environ.get('CR', 3))))):
        for j in range(18):
            n = 18 * ph + j
            mf = ring[n % 4]
            for b in range(2):
                acc = (QA, KA, VA)[ph] + 4 * b
                wr = W[(m, b, j)] if (m, b, j) in W else Lslots[(j + b) % 4]
                if m == 'v':
                    a.mfma(acc, mf, wr, None if j == 0 else acc)
                else:
                    a.mfma(acc, wr, mf, None if j == 0 else acc)
                if (m, b, j) not in W and j + b + 4 < 18:
                    lread(j + b + 4)
                if b == 1:
                    if n + 4 < 54:
                        mread(n + 4, (n + 4) % 18)
                    if n < 53:
                        a.prewait_regs(ring[(n + 1) % 4])
                fillg(q, room)
        print('chain: side ops left after phase', m, len([x for x in q if x is not None]))
        while q:
            fillg(q, 999)
        if ph == 0:
            stamp(a, stamps, 3)
    a.batch = 0
    a.i(f'v_add_u32 v{vWc}, s{sYb}, v{vLn}')
    P, Pm = A, C + 2
    OA, OB = A + 8, A + 12
    a.i(f'v_cvt_pk_bf16_f32 v{P}, v{X}, v{X + 1}')
    a.i(f'v_cvt_pk_bf16_f32 v{P + 1}, v{X + 2}, v{X + 3}')
    a.i(f'v_cvt_pk_bf16_f32 v{Pm}, v{xm}, 0')
    a.i(f'v_mov_b32_dpp v{P + 2}, v{P} row_ror:8 row_mask:0xf bank_mask:0xf')
    a.i(f'v_mov_b32_dpp v{P + 3}, v{P + 1} row_ror:8 row_mask:0xf bank_mask:0xf')
    a.i(f'v_lshlrev_b32 v{Pm}, v{vSh}, v{Pm}')
    a.i(f'v_cvt_pk_bf16_f32 v{VA}, v{VA}, v{VA + 1}')
    a.mfma(LS, ON, P, None)
    a.i(f'v_mov_b32_dpp v{Pm + 1}, v{Pm} row_ror:8 row_mask:0xf bank_mask:0xf')
    a.i(f'v_cvt_pk_bf16_f32 v{VA + 1}, v{VA + 2}, v{VA + 3}')
    a.mfma(OA, B + 8, P, None)
    a.i(f'v_cvt_pk_bf16_f32 v{VA + 2}, v{VA + 4}, v{VA + 5}')
    a.mfma(LS, ON, Pm, LS, k=16)
    a.i(f'v_cvt_pk_bf16_f32 v{VA + 3}, v{VA + 6}, v{VA + 7}')
    a.mfma(OB, B + 12, P, None)
    wread(0)
    a.mfma(OA, VA, Pm, OA, k=16)
    wread(1)
    a.mfma(OB, VA + 2, Pm, OB, k=16)
    a.i(f's_not_b64 exec, s[{sHi}:{sHi + 1}]')
    a.i(f'buffer_store_dwordx4 {R(VA, 4)}, v{vLn}, {WS}, s{sKV} offen offset:2048 sc1')
    a.i(f's_mov_b64 exec, s[{sM1}:{sM1 + 1}]')
    a.i(f'v_rcp_f32 v{LS}, v{LS}')
    a.i(f's_cmp_eq_u32 s{sT}, 63')
    for x in range(0, 8, 2):
        a.i(f'v_pk_mul_f32 {R(OA + x, 2)}, {R(OA + x, 2)}, {R(LS, 2)} op_sel_hi:[1,0]')
    for x in range(4):
        a.i(f'v_cvt_pk_bf16_f32 v{P + x}, v{OA + 2 * x}, v{OA + 2 * x + 1}')
    a.i(f'ds_write_b128 v{vOw}, {R(P, 4)} offset:{OO}')
    a.i('s_mov_b64 exec, -1')
    a.i('s_cbranch_scc1 L_ch_end', nohaz=True)
    a.barrier()
    for kb in (2, 0, 3, 1):
        a.i(f'ds_read_b128 {R(A + 4 * kb, 4)}, v{vMd} offset:{OO + kb * 512}')
    wread(2)
    wread(3)
    wread(4)
    stamp(a, stamps, 6)
    low = [f's_mov_b32 s60, s{sPst}', f's_add_u32 s{sKV}, s{sKV}, {KVM_UNIT}', f's_add_u32 s63, s55, s{sAG0}',
           f's_add_u32 s62, s55, s{sAG1}']
    RL = [A, A + 4, A + 8, A + 12]
    rs = [f'buffer_load_dwordx4 {R(RL[i], 4)}, v{vLn}, {WS}, s{sRS} offen offset:{i * 1024} sc1' for i in range(4)]
    ln = 0
    for gi, g in enumerate(groups):
        n = 0
        for kb in (2, 0, 3, 1):
            for i in g:
                acc = (C, E)[gi & 1] + 4 * (i & 1) if i < 8 else Dr + 12
                if kb < 2:
                    a.mfma(acc, W[('o', i, kb)], A + 4 * kb, acc)
                else:
                    a.mfma(acc, wring[ln % 5], A + 4 * kb, None if kb == 2 else acc)
                    if ln + 5 < 18:
                        wread(ln + 5)
                    ln += 1
                n += 1
                if n >= 3 or gi == 0:
                    a.fill(low, 3)
        a.fill(low, 99)
        pk = (C, E)[gi & 1]
        low = [f'v_cvt_pk_bf16_f32 v{pk + x}, v{pk + 2 * x}, v{pk + 2 * x + 1}' for x in range(4)]
        low.insert(1, f'v_bfi_b32 v{pk}, 1, s{sT}, v{pk}')
        low += [f'v_bfi_b32 v{pk + 2}, 1, s{sT}, v{pk + 2}', f'buffer_store_dwordx4 {R(pk, 4)}, v{vPs}, {WS}, s60 offen']
        if gi < 3:
            low.append('s_add_u32 s60, s60, 65536')
    a.i(f's_cmp_ge_u32 s{sTask}, 72')
    a.i(f's_mov_b32 s{sTO}, {TIMEOUT}')
    a.i('s_mov_b32 s29, 4')
    a.fill(low, 99)
    t8 = Dr + 12
    a.i(f'v_cvt_pk_bf16_f32 v{t8}, v{t8}, v{t8 + 1}')
    a.i(f'v_cvt_pk_bf16_f32 v{t8 + 1}, v{t8 + 2}, v{t8 + 3}')
    a.i(f'v_bfi_b32 v{t8}, 1, s{sT}, v{t8}')
    a.i(f'buffer_store_dwordx2 {R(t8, 2)}, v{vPs}, {WS}, s{sPs8} offen')
    stamp(a, stamps, 7)
    a.i('s_cbranch_scc1 L_ch_next', nohaz=True)
    a.i(f's_cmp_eq_u32 s{sW}, 0')
    a.i('s_cbranch_scc1 L_ch_rs', nohaz=True)
    a.waitcnt(vm=0)
    a.label('L_ch_rs')
    for p in rs:
        a.i(p)
    a.i(f's_sub_u32 s{sTO}, s{sTO}, 1')
    a.i('s_cbranch_scc1 L_abort', nohaz=True)
    a.i(f'v_mov_b32 v{Dr + 2}, -1')
    a.i(f'v_mov_b32 v{Dr + 3}, -1')
    R4, T4 = Dr + 4, Dr + 8
    for i in range(4):
        a.mfma(R4, SEL, RL[i], None if i == 0 else R4)
        a.i(f'v_bitop3_b32 v{T4 + i}, v{RL[i]}, v{RL[i] + 2}, s{sT} bitop3:0x7e')
    a.i(f'v_or3_b32 v{T4}, v{T4}, v{T4 + 1}, v{T4 + 2}')
    a.i(f'v_bitop3_b32 v{T4}, v{T4}, v{T4 + 3}, 1 bitop3:0xa8')
    a.i(f'v_cmp_ne_u32 vcc, 0, v{T4}')
    a.i('s_cbranch_vccnz L_ch_rs', nohaz=True)
    for x in range(4):
        a.i(f'v_add_f32_dpp v{R4 + x}, v{R4 + x}, v{R4 + x} row_ror:8 row_mask:0xf bank_mask:0xf')
    a.i(f'v_cvt_pk_bf16_f32 v{Dr}, v{R4}, v{R4 + 1}')
    a.i(f'v_cvt_pk_bf16_f32 v{Dr + 1}, v{R4 + 2}, v{R4 + 3}')
    a.i(f'v_min_u32 v{Dr}, -2, v{Dr}')
    a.i(f'v_min_u32 v{Dr + 1}, -2, v{Dr + 1}')
    a.i(f'buffer_store_dwordx2 {R(Dr, 2)}, v{vAg}, {WS}, s62 offen')
    a.i(f'buffer_store_dwordx2 {R(Dr + 2, 2)}, v{vAg}, {WS}, s63 offen')
    a.label('L_ch_next')
    stamp(a, stamps, 8)
    stamp_flush(a, stamps, 9, sT, A)
    a.i(f's_mov_b32 s60, s{sAG0}')
    a.i(f's_mov_b32 s{sAG0}, s{sAG1}')
    a.i(f's_mov_b32 s{sAG1}, s{sAG2}')
    a.i(f's_mov_b32 s{sAG2}, s60')
    a.i(f's_add_u32 s{sT}, s{sT}, 1')
    a.i('s_cmp_eq_u64 s[58:59], 0')
    a.i('s_cbranch_scc1 L_ch_loop')
    kv_block(6)
    a.i('s_branch L_ch_loop')
    a.label('L_ch_end')
    a.waitcnt(vm=0, lg=0)
    a.i('s_barrier')
    rt_stamp(a, stamps, 2, 32)
    a.i(f's_cmp_lg_u32 s{sW}, 3')
    a.i('s_cbranch_scc1 L_exit')
    a.i('s_mov_b64 exec, 1')
    a.i(f'buffer_store_dword v{vMd}, off, {WS}, s{sFk} sc1')
    a.i('s_endpgm')
    a.out += a.tail
    a.tail = []
```

```python
from asmlib import *
from layout import *

WS = 's[4:7]'
WT = 's[8:11]'
IO = 's[12:15]'
DBG = 's[16:19]'
sW, sIDX, sGID, sTO = 20, 21, 22, 23
sL = 24
TIMEOUT = 1 << 15
BUF0, BUF1 = 0, 73728


def srd(a, base, karg, nbytes):
    a.i(f's_load_dwordx2 s[{base}:{base + 1}], s[0:1], {karg}')
    a.i(f's_mov_b32 s{base + 2}, {nbytes}')
    a.i(f's_mov_b32 s{base + 3}, 0x20000')
    a.waitcnt(lg=0)


def prologue(a, roles):
    a.i(f's_load_dwordx2 s[4:5], s[0:1], {K_WS}')
    a.i(f's_load_dwordx2 s[16:17], s[0:1], {K_DBG}')
    a.i(f's_load_dwordx2 s[8:9], s[0:1], {K_WQ}')
    a.i(f's_load_dwordx2 s[12:13], s[0:1], {K_X}')
    a.i('s_getreg_b32 s25, hwreg(HW_REG_XCC_ID)')
    a.i('s_and_b32 s25, s25, 7')
    a.i('v_lshrrev_b32 v1, 6, v0')
    a.i(f'v_readfirstlane_b32 s{sW}, v1')
    a.i(f's_mov_b32 s6, {WS_BYTES}')
    a.i('s_mov_b32 s7, 0x20000')
    a.i('s_mov_b32 s10, 0')
    a.i('s_mov_b32 s11, 0x20000')
    a.i('s_mov_b32 s14, 0')
    a.i('s_mov_b32 s15, 0x20000')
    a.i('s_mov_b32 s18, 256')
    a.i('s_mov_b32 s19, 0x20000')
    a.i('v_lshlrev_b32 v4, 3, v0')
    a.i('v_and_b32 v0, 63, v0')
    a.i('v_mov_b32 v2, 1')
    a.i('s_lshl_b32 s26, s25, 5')
    a.i('v_mov_b32 v3, s26')
    a.i('v_mov_b32 v5, 0')
    a.waitcnt(lg=0)
    a.i(f's_cmp_lg_u32 s{sW}, 0')
    a.i('s_cbranch_scc1 L_tick_done')
    a.i('s_mov_b64 exec, 1')
    a.i(f'buffer_atomic_add v2, v3, {DBG}, 0 offen sc0 sc1')
    a.i('ds_write_b32 v5, v2')
    a.i('s_mov_b64 exec, -1')
    a.label('L_tick_done')
    a.waitcnt(vm=0, lg=0)
    a.i('s_barrier')
    a.i('ds_read_b32 v2, v5')
    a.i('v_readfirstlane_b32 s27, v2')
    a.i('s_cmp_ge_u32 s27, 32')
    a.i('s_cbranch_scc1 L_exit')
    a.i(f's_add_u32 s{sGID}, s26, s27')
    a.i('s_barrier')
    a.i('v_mov_b32 v6, 0')
    a.i('v_mov_b32 v7, 0')
    a.i(f's_lshl_b32 s28, s{sGID}, 11')
    a.i(f'buffer_store_dwordx2 v[6:7], v4, {WS}, s28 offen sc1')
    a.i(f's_and_b32 s{sL}, s25, 1')
    a.i('s_lshr_b32 s25, s25, 1')
    a.i(f's_mov_b32 s{sIDX}, s27')
    a.i('s_cmp_eq_u32 s25, 0')
    a.i(f's_cbranch_scc1 {roles["chain"]}')
    a.i('s_bitcmp1_b32 s27, 0')
    a.i('s_cbranch_scc1 L_disp_odd')
    a.i(f's_lshr_b32 s{sIDX}, s27, 1')
    a.i('s_cmp_eq_u32 s25, 1')
    a.i(f's_cbranch_scc1 {roles["oproj"]}')
    a.i('s_cmp_eq_u32 s25, 2')
    a.i(f's_cbranch_scc1 {roles["down"]}')
    a.i(f's_lshr_b32 s{sIDX}, s27, 2')
    a.i('s_bitcmp0_b32 s27, 1')
    a.i(f's_cbranch_scc1 {roles["atn"]}')
    a.i(f's_add_u32 s{sIDX}, s{sIDX}, 24')
    a.i(f's_branch {roles["proj"]}')
    a.label('L_disp_odd')
    a.i('s_lshl_b32 s28, s25, 3')
    a.i(f's_lshr_b32 s{sIDX}, s27, 2')
    a.i(f's_add_u32 s{sIDX}, s{sIDX}, s28')
    a.i(f's_sub_u32 s{sIDX}, s{sIDX}, 8')
    a.i('s_bitcmp1_b32 s27, 1')
    a.i(f's_cbranch_scc1 {roles["proj"]}')
    a.i(f's_branch {roles["up"]}')
    a.label('L_spare')
    arrive(a)
    a.label('L_exit')
    a.i('s_endpgm')
    a.label('L_abort')
    a.i('s_mov_b64 exec, 1')
    a.i(f's_lshl_b32 s28, s{sGID}, 8')
    a.i('s_or_b32 s29, s29, s28')
    a.i(f's_lshl_b32 s28, s{sW}, 16')
    a.i('s_or_b32 s29, s29, s28')
    a.i('s_or_b32 s29, s29, 0x40000000')
    a.i('v_mov_b32 v2, s29')
    a.i(f'buffer_store_dword v2, off, {DBG}, 0 offset:20 sc1')
    a.i('s_endpgm')


def arrive(a, v=2):
    l = a.new('L_arr')
    a.waitcnt(vm=0)
    a.i('s_barrier')
    a.i(f's_cmp_lg_u32 s{sW}, 0')
    a.i(f's_cbranch_scc1 {l}')
    a.i('s_mov_b64 exec, 1')
    a.i(f'v_mov_b32 v{v}, 1')
    a.i(f'buffer_atomic_add v{v}, off, {DBG}, 0 offset:16 sc1')
    a.i('s_mov_b64 exec, -1')
    a.label(l)


def spin_head(a, code):
    a.i(f's_mov_b32 s{sTO}, {TIMEOUT}')
    a.i(f's_mov_b32 s29, {code}')
    l = a.new('L_spin')
    a.label(l)
    a.i(f's_sub_u32 s{sTO}, s{sTO}, 1')
    a.i('s_cbranch_scc1 L_abort')
    return l


def wait_init(a, v=2):
    l = spin_head(a, 1)
    a.i('s_sleep 4')
    a.i(f'buffer_load_dword v{v}, off, {DBG}, 0 offset:16 sc1')
    a.i(f'v_cmp_gt_u32 vcc, 256, v{v}')
    a.i(f's_cbranch_vccnz {l}')


class DsAddr:
    def __init__(self, a, tmp):
        self.a, self.tmp, self.cur = a, tmp, None

    def __call__(self, reg, off):
        if off < 65536:
            return f'v{reg}', off
        hi = off & ~0x7fff
        if self.cur != (reg, hi):
            if self.cur and self.cur[0] == reg and 0 <= off - self.cur[1] < 65536:
                return f'v{self.tmp}', off - self.cur[1]
            self.a.i(f'v_add_u32 v{self.tmp}, {hi}, v{reg}')
            self.cur = (reg, hi)
        return f'v{self.tmp}', off - hi


def bits(a, dst, src, spec, tmp):
    first = True
    for s, m, d in spec:
        t = dst if first else tmp
        a.i(f'v_lshrrev_b32 v{t}, {s}, v{src}')
        a.i(f'v_and_b32 v{t}, {m}, v{t}')
        if first:
            if d:
                a.i(f'v_lshlrev_b32 v{t}, {d}, v{t}')
        else:
            a.i(f'v_lshl_or_b32 v{dst}, v{t}, {d}, v{dst}')
        first = False


SWZ = {
    ('p2', 'pair'): [(0, 7, 1)],
    ('p1', 'pair'): [(1, 3, 1)],
    ('p1', 'nat'): [(1, 1, 1), (3, 1, 2)],
    ('p2', 'nat'): [(0, 3, 1), (3, 1, 3)],
    'x': [(1, 7, 0)],
}


def dma_voff_pow2(a, dst, upr, gpitch, swz, t0, t1):
    lg = {8: 3, 16: 4}[upr]
    rpi = 64 // upr
    a.i(f'v_lshrrev_b32 v{t0}, {lg}, v0')
    a.i(f's_mul_i32 s28, s{sW}, {rpi}')
    a.i(f'v_add_u32 v{t0}, s28, v{t0}')
    bits(a, dst, t0, swz, t1)
    a.i(f'v_and_b32 v{t1}, {upr - 1}, v0')
    a.i(f'v_xor_b32 v{dst}, v{dst}, v{t1}')
    a.i(f'v_lshlrev_b32 v{dst}, 4, v{dst}')
    a.i(f'v_mul_u32_u24 v{t0}, {gpitch}, v{t0}')
    a.i(f'v_add_u32 v{dst}, v{dst}, v{t0}')


def dma_voff_72(a, dst9, swz, t0, t1, t2, upr=72, gpitch=1152):
    magic = {72: 911, 24: 2731}[upr]
    assert all((u * magic) >> 16 == u // upr for u in range(8 * upr))
    a.i(f's_lshl_b32 s28, s{sW}, 3')
    for n in range(upr // 8):
        d = dst9 + n
        a.i(f'v_add_u32 v{t2}, {64 * n}, v0')
        a.i(f'v_mul_u32_u24 v{t0}, {magic}, v{t2}')
        a.i(f'v_lshrrev_b32 v{t0}, 16, v{t0}')
        a.i(f'v_mul_u32_u24 v{t1}, {upr}, v{t0}')
        a.i(f'v_sub_u32 v{t2}, v{t2}, v{t1}')
        a.i(f'v_add_u32 v{t0}, s28, v{t0}')
        bits(a, d, t0, swz, t1)
        a.i(f'v_xor_b32 v{d}, v{d}, v{t2}')
        a.i(f'v_lshlrev_b32 v{d}, 4, v{d}')
        a.i(f'v_mul_u32_u24 v{t0}, {gpitch}, v{t0}')
        a.i(f'v_add_u32 v{d}, v{d}, v{t0}')


def dma(a, voff, srdn, s_lds, lds_off, s_src, src_off, mods='', tag=None):
    a.i(f's_add_u32 m0, s{s_lds}, {lds_off}')
    a.i(f's_add_u32 s28, s{s_src}, {src_off}')
    a.i(f'buffer_load_dwordx4 v{voff}, {srdn}, s28 offen{mods} lds', tag=tag)


def tr_addr(a, dst, pitch, korder, swz, unit_expr, sub_expr, t0, t1):
    if korder == 'pair':
        a.i(f'v_lshrrev_b32 v{t0}, 2, v0')
    else:
        bits(a, t0, 0, [(2, 3, 0), (4, 3, 3)], t1)
    bits(a, dst, t0, swz, t1)
    unit_expr(t1)
    a.i(f'v_xor_b32 v{dst}, v{dst}, v{t1}')
    a.i(f'v_lshlrev_b32 v{dst}, 4, v{dst}')
    a.i(f'v_mul_u32_u24 v{t0}, {pitch}, v{t0}')
    a.i(f'v_add_u32 v{dst}, v{dst}, v{t0}')
    if sub_expr:
        sub_expr(t1)
        a.i(f'v_add_u32 v{dst}, v{dst}, v{t1}')


def tr_frag(a, ds, dreg, areg, off, pitch, korder):
    half = (16 if korder == 'pair' else 4) * pitch
    for h in range(2):
        r, o = ds(areg, off + h * half)
        a.i(f'ds_read_b64_tr_b16 {R(dreg + 2 * h, 2)}, {r} offset:{o}')


import os
PROF = os.environ.get('PROF')


LITE = os.environ.get('LITE')


def stamp(a, on, k):
    if LITE:
        return
    if on and PROF:
        if k == 0:
            a.prof([int(x) for x in PROF.split(',')])
        return
    if on:
        a.i(f'{"s_memrealtime" if os.environ.get("RT") else "s_memtime"} s[{80 + 2 * k}:{81 + 2 * k}]')


def stamp_flush(a, on, n, sstep, v0):
    if not on or LITE:
        return
    if PROF:
        n = len(PROF.split(',')) + 1
        a.i(f's_memtime s[{80 + 2 * (n - 1)}:{81 + 2 * (n - 1)}]')
        a.pm = None
    a.waitcnt(lg=0)
    for k in range(n):
        a.i(f'v_mov_b32 v{v0 + k}, s{80 + 2 * k}')
    a.i(f's_lshl_b32 s28, s{sstep}, 8')
    a.i(f's_add_u32 s28, s28, s{sGID}')
    a.i('s_lshl_b32 s28, s28, 2')
    a.i(f's_add_u32 s28, s28, s{sW}')
    a.i('s_lshl_b32 s28, s28, 6')
    a.i(f's_add_u32 s28, s28, {STAMP + 65536}')
    a.i('s_mov_b64 exec, 1')
    for k in range(0, n, 4):
        a.i(f'buffer_store_dwordx4 {R(v0 + k, 4)}, off, {WS}, s28 offset:{4 * k}')
    a.i('s_mov_b64 exec, -1')


def rt_stamp(a, on, slot, v0=8):
    if not on:
        return
    l = a.new('L_rt')
    a.i(f's_cmp_lg_u32 s{sW}, 0')
    a.i(f's_cbranch_scc1 {l}')
    a.i('s_memrealtime s[76:77]')
    a.waitcnt(lg=0)
    a.i(f'v_mov_b32 v{v0}, s76')
    a.i(f's_lshl_b32 s28, s{sGID}, 6')
    a.i(f's_add_u32 s28, s28, {STAMP}')
    a.i('s_mov_b64 exec, 1')
    a.i(f'buffer_store_dword v{v0}, off, {WS}, s28 offset:{slot * 4}')
    a.i('s_mov_b64 exec, -1')
    a.label(l)


def sel_frag(a, dst, t0, t1, dual=False):
    a.i(f'v_and_b32 v{t0}, 1, v0')
    a.i(f'v_lshlrev_b32 v{t0}, 4, v{t0}')
    a.i(f'v_mov_b32 v{t1}, 0x3f80')
    a.i(f'v_lshlrev_b32 v{t1}, v{t0}, v{t1}')
    if dual:
        a.i(f'v_lshrrev_b32 v{t0}, 2, v0')
        a.i(f'v_xor_b32 v{t0}, v{t0}, v0')
        a.i(f'v_and_b32 v{t0}, 8, v{t0}')
        a.i(f'v_cmp_eq_u32 vcc, 0, v{t0}')
        a.i(f'v_cndmask_b32 v{t1}, 0, v{t1}, vcc')
    a.i(f'v_bfe_u32 v{t0}, v0, 1, 2')
    for k in range(4):
        a.i(f'v_cmp_eq_u32 vcc, {k}, v{t0}')
        a.i(f'v_cndmask_b32 v{dst + k}, 0, v{t1}, vcc')
```

```python
import math
from common import *
from chain import f2u

vLn, vPs, vP1, vR1, vR2, vT1, vT2, vTr, vL2, vFa, vFl, vT, vKm, vVm, vXb, vXq = range(16)
SEL = 16
sS, sTag, sPst, sRd, sRes, sYo, sFp, sFn, sIn, sSl, sW1k, sSp, sPre, sLb, sDx = range(30, 45)
TBO = 16384
INB = 32768


def kstage(a, W, nkb, karg, nbytes, sbase, ko):
    v9, at, tA = 24, 33, 37
    sw = SWZ['p1', ko]
    dma_voff_72(a, v9, sw, 40, 41, 42)
    a.i(f's_mul_i32 s62, s{sW}, 18')
    for i in range(4):
        def un(t, i=i):
            a.i(f'v_bfe_u32 v{t}, v0, 1, 1')
            a.i(f'v_add_u32 v{t}, s62, v{t}')
            if i:
                a.i(f'v_add_u32 v{t}, {2 * i}, v{t}')

        def sub(t):
            a.i(f'v_and_b32 v{t}, 1, v0')
            a.i(f'v_lshlrev_b32 v{t}, 3, v{t}')
        tr_addr(a, at + i, 1152, ko, sw, un, sub, 40, 41)
    ds = DsAddr(a, tA)
    a.i(f's_mul_i32 s60, s{sW}, 9216')
    srd(a, 8, karg, nbytes)
    chunks = [list(range(k, min(k + 2, nkb))) for k in range(0, nkb, 2)]

    def issue(c):
        for bi, kb in enumerate(chunks[c]):
            for n in range(9):
                dma(a, v9 + n, WT, 60, (BUF0, BUF1)[c & 1] + bi * 36864 + n * 1024, sbase, kb * 36864)
    issue(0)
    issue(1)
    for c in range(len(chunks)):
        a.waitcnt(vm=9 * len(chunks[c + 1]) if c + 1 < len(chunks) else 0)
        a.i('s_barrier')
        for bi, kb in enumerate(chunks[c]):
            for i in range(9):
                tr_frag(a, ds, W[(i, kb)], at + (i & 3), (BUF0, BUF1)[c & 1] + bi * 36864 + 128 * (i >> 2), 1152, ko)
        a.barrier()
        if c + 2 < len(chunks):
            issue(c + 2)


def kinit(a, grp):
    a.i(f's_lshl_b32 s{sW1k}, s{sW}, 10')
    a.i(f's_add_u32 s28, s{sL}, {grp}')
    a.i(f's_mul_i32 s{sSl}, s28, {2 * PRS_SLOT}')
    a.i(f's_add_u32 s{sSl}, s{sSl}, {PRS}')
    a.i(f's_mul_i32 s{sRd}, s{sIDX}, {UNIT}')
    a.i(f's_add_u32 s{sRd}, s{sRd}, s{sSl}')
    a.i('v_lshlrev_b32 v10, 4, v0')
    for k in range(4):
        a.i(f'v_mov_b32 v{16 + k}, 1')
    a.i(f's_mul_i32 s60, s{sW}, 9216')
    a.i(f's_add_u32 s60, s60, s{sRd}')
    for sl in range(2):
        for n in range(9):
            a.i(f's_add_u32 s28, s60, {sl * PRS_SLOT + n * 1024}')
            a.i(f'buffer_store_dwordx4 v[16:19], v10, {WS}, s28 offen')
    arrive(a)


def ksetup(a, bufbytes):
    t0, t1, t2 = 40, 41, 42
    sel_frag(a, SEL, t0, t1)
    a.i(f'v_lshrrev_b32 v{t0}, 4, v0')
    a.i(f'v_and_b32 v{t1}, 15, v0')
    a.i(f'v_mul_u32_u24 v{t2}, {2 * UNIT}, v{t0}')
    a.i(f'v_lshl_add_u32 v{vPs}, v{t1}, 3, v{t2}')
    a.i(f'v_lshl_add_u32 v{vP1}, v{t1}, 2, v{t2}')
    a.i(f's_mul_i32 s60, s{sW}, 576')
    a.i(f's_add_u32 s61, s60, {TBO}')
    bits(a, vT1, 0, [(0, 7, 3), (3, 1, 7), (4, 1, 2)], t2)
    a.i(f'v_add_u32 v{vT1}, s61, v{vT1}')
    bits(a, vT2, 0, [(0, 3, 4), (4, 1, 3)], t2)
    a.i(f'v_add_u32 v{vT2}, s61, v{vT2}')
    a.i(f'v_mul_u32_u24 v{t2}, 2304, v{t0}')
    a.i(f'v_lshl_add_u32 v{vR1}, v{t1}, 4, v{t2}')
    bits(a, t1, 0, [(2, 3, 2), (4, 3, 0)], t2)
    a.i(f'v_mul_u32_u24 v{vR2}, 2304, v{t1}')
    a.i(f'v_and_b32 v{t1}, 3, v0')
    a.i(f'v_lshl_add_u32 v{vR2}, v{t1}, 4, v{vR2}')
    a.i(f's_lshr_b32 s61, s{sW}, 1')
    a.i(f's_mul_i32 s62, s61, 2304')
    a.i(f's_add_u32 s62, s62, {TBO}')
    a.i(f'v_lshlrev_b32 v{vTr}, 5, v0')
    a.i(f'v_add_u32 v{vTr}, s62, v{vTr}')
    a.i(f'v_lshlrev_b32 v{vL2}, 1, v0')
    a.i(f's_mul_i32 s{sPst}, s{sIDX}, 2304')
    a.i(f's_mul_i32 s61, s61, 1152')
    a.i(f's_add_u32 s{sRes}, s{sPst}, s61')
    a.i(f's_add_u32 s{sPst}, s{sPst}, s60')
    a.i(f's_add_u32 s{sPst}, s{sPst}, s{sSl}')
    a.i(f's_add_u32 s{sRd}, s{sRd}, s60')
    a.i(f's_lshl_b32 s{sFp}, s{sIDX}, 11')
    a.i(f's_lshl_b32 s28, s{sW}, 9')
    a.i(f's_add_u32 s{sFp}, s{sFp}, s28')
    a.i(f's_add_u32 s28, s{sRd}, {PRS_SLOT}')
    a.i(f's_xor_b32 s{sSp}, s28, s{sRd}')
    a.i(f's_add_u32 s28, s{sPst}, {PRS_SLOT}')
    a.i(f's_xor_b32 s53, s28, s{sPst}')
    a.i(f's_bitcmp0_b32 s{sW}, 0')
    a.i(f's_cselect_b32 s{sEv}, -1, 0')
    a.i(f's_cselect_b32 s{sEv + 1}, 1.0, 0')
    a.i('s_mov_b64 s[56:57], 1')
    a.i(f's_add_u32 s28, s62, 2048')
    a.i(f'v_lshl_add_u32 v{vT}, v{vL2}, 1, s28')
    a.i(f's_lshl_b32 s28, s{sW}, 2')
    a.i(f's_add_u32 s28, s28, {VOTE}')
    a.i(f'v_mov_b32 v{vKm}, s28')
    a.i(f'v_mov_b32 v{vVm}, {VOTE}')
    a.i(f's_mov_b32 s{sDx}, {bufbytes}')
    a.i(f's_mov_b32 s{sS}, 0')
    a.i(f's_mov_b32 s{sPre}, 0')
    a.i('s_mov_b64 s[54:55], 0')
    a.i(f'v_lshlrev_b32 v{vLn}, 4, v0')


X, ACC, PK, L, F3, T, RS = 20, 92, 108, 128, 164, 176, 180
sTr, sEv = 51, 58
KFL = int(os.environ.get('KFL', 6))
KRM = int(os.environ.get('KRM', 3))
VOTE = TBO + 6144
KST = os.environ.get('KST')


def kst(a, k):
    if KST:
        a._emit(Ins(f's_memtime s[{80 + 2 * k}:{81 + 2 * k}]'))


vF2 = 185


def rs_ld(n):
    if n == 8:
        return f'buffer_load_dwordx4 {R(L + 32, 4)}, v{vR2}, {WS}, s{sRd} offen offset:512 sc1'
    x, G = n & 3, n >> 2
    return f'buffer_load_dwordx4 {R(L + 4 * n, 4)}, v{vR1}, {WS}, s{63 + x if x else sRd} offen offset:{256 * G} sc1'


def rs_load(a, n):
    a.i(rs_ld(n))


RD_ADV = [f's_xor_b32 s{sRd}, s{sRd}, s{sSp}'] + [f's_add_u32 s{63 + x}, s{sRd}, {x * 9216}' for x in (1, 2, 3)]


def rs_group(a, code, ns, reload):
    lr, lc = a.new('L_rsr'), a.new('L_rsc')
    a.tail += [lr + ':', f'    s_mov_b32 s29, {code}', f'    s_sub_u32 s{sTO}, s{sTO}, 1', '    s_cbranch_scc1 L_abort', '    s_nop 7']
    a.tail += ['    ' + rs_ld(n) for n in reload] + ['    s_waitcnt vmcnt(0)', f'    s_branch {lc}']
    pm, a.pm = getattr(a, 'pm', None), None
    a.out.append(lc + ':')
    words = []
    for n in ns:
        words += [L + 4 * n, L + 4 * n + 2] if n < 8 else [L + 32 + x for x in range(4)]
    chk = [f'v_bitop3_b32 v{T + x}, v{words[2 * x]}, v{words[2 * x + 1]}, s{sTr} bitop3:0x7e' for x in range(len(words) // 2)]
    if len(chk) == 6:
        chk = chk[:4] + [f'v_or3_b32 v{T + 1}, v{T + 1}, v{T + 2}, v{T + 3}'] + \
              [c.replace(f'v{T + 4},', f'v{T + 2},').replace(f'v{T + 5},', f'v{T + 3},') for c in chk[4:]]
    if len(chk) >= 4:
        chk.append(f'v_or3_b32 v{T + 1}, v{T + 1}, v{T + 2}, v{T + 3}')
    chk += [f'v_bitop3_b32 v{T}, v{T}, v{T + 1}, 1 bitop3:0xa8', f'v_cmp_ne_u32 vcc, 0, v{T}']
    a.prewait_regs(L + 4 * ns[-1])
    for n in ns:
        acc = F3 + 4 * (n >> 2)
        a.mfma(acc, SEL, L + 4 * n, None if n % 4 == 0 else acc)
        a.fill(chk)
    for p in chk:
        a.i(p)
    a.i(f's_cbranch_vccnz {lr}', nohaz=True)
    a.pm = pm


def t_wr(G):
    if G < 2:
        return [f'ds_write_b32 v{vT1}, v{F3 + 4 * G + r} offset:{256 * G + (r & 1) * 2304 + (r >> 1) * 64}' for r in range(4)]
    return [f'v_add_f32_dpp v{F3 + 8 + k}, v{F3 + 8 + k}, v{F3 + 8 + k} row_ror:{d} row_mask:0xf bank_mask:0xf'
            for d in (4, 8) for k in range(4)] + \
           [f'ds_write_b32 v{vT2}, v{F3 + 8 + r} offset:{512 + (r & 1) * 2304 + (r >> 1) * 4}' for r in range(4)]


def reduce_phase(a, code, fetch):
    kst(a, 5)
    rs_group(a, code, [0, 1, 2, 3], [0, 1, 2, 3])
    kst(a, 6)
    a.waitcnt(vm=4)
    for n in range(4, 8):
        rs_load(a, n)
    for p in t_wr(0):
        a.i(p)
    a.waitcnt(vm=4)
    kst(a, 7)
    rs_load(a, 8)
    fetch()
    kst(a, 8)
    rs_group(a, code, [4, 5, 6, 7], [4, 5, 6, 7, 8])
    kst(a, 9)
    rs_group(a, code, [8], [8])
    for p in t_wr(1) + t_wr(2):
        a.i(p)


def ln_stream(out_srd, pk=False):
    F, PKD = globals()['L'] + 26, globals()['L'] + 16
    s1, q1, s2, q2 = T, T + 1, T + 2, T + 3
    P = lambda r: R(r, 2)
    L = globals()['L'] + 16
    o = [f'ds_read_b128 {R(F, 4)}, v{vTr}', f'ds_read_b128 {R(F + 4, 4)}, v{vTr} offset:16', f'ds_read_b32 v{F + 8}, v{vT}']
    for k in range(4):
        o += [f'v_lshlrev_b32 v{L + 2 * k}, 16, v{RS + k}', f'v_and_b32 v{L + 2 * k + 1}, 0xffff0000, v{RS + k}']
    o += [f'v_lshlrev_b32 v{L + 8}, 16, v{RS + 4}']
    if pk:
        o += [f'v_pk_add_f32 {P(F + k)}, {P(F + k)}, {P(L + k)}' for k in (0, 2, 4, 6)] + [f'v_add_f32 v{F + 8}, v{F + 8}, v{L + 8}']
        o += [f'v_pk_add_f32 {P(L)}, {P(F)}, {P(F + 2)}', f'v_pk_add_f32 {P(L + 2)}, {P(F + 4)}, {P(F + 6)}',
              f'v_pk_mul_f32 {P(L + 4)}, {P(F)}, {P(F)}', f'v_pk_add_f32 {P(L)}, {P(L)}, {P(L + 2)}']
        o += [f'v_pk_fma_f32 {P(L + 4)}, {P(F + k)}, {P(F + k)}, {P(L + 4)}' for k in (2, 4, 6)]
        o += [f'v_add_f32 v{s1}, v{L}, v{L + 1}', f'v_fma_f32 v{q1}, v{F + 8}, v{F + 8}, v{L + 4}',
              f'v_add_f32 v{s1}, v{s1}, v{F + 8}', f'v_add_f32 v{q1}, v{q1}, v{L + 5}']
    else:
        o += [f'v_add_f32 v{F + k}, v{F + k}, v{L + k}' for k in range(9)]
        o += [f'v_add_f32 v{s1}, v{F}, v{F + 1}', f'v_mul_f32 v{q1}, v{F}, v{F}', f'v_fmac_f32 v{q1}, v{F + 1}, v{F + 1}']
        for k in range(2, 9):
            o += [f'v_add_f32 v{s1}, v{s1}, v{F + k}', f'v_fmac_f32 v{q1}, v{F + k}, v{F + k}']
    for m in ('quad_perm:[1,0,3,2]', 'quad_perm:[2,3,0,1]', 'row_half_mirror', 'row_mirror'):
        o += [f'v_add_f32_dpp v{r}, v{r}, v{r} {m} row_mask:0xf bank_mask:0xf' for r in (s1, q1)]
    o += [f'v_mov_b32 v{q2}, {hex(f2u(1e-5))}', f'v_permlane16_swap_b32 v{s1}, v{q1}', f'v_add_f32 v{s1}, v{s1}, v{q1}',
          f'v_mov_b32 v{s2}, v{s1}', f's_add_u32 s{sRes}, s{sRes}, {UNIT}', f'v_permlane32_swap_b32 v{s1}, v{s2}',
          f'v_add_f32 v{s1}, v{s1}, v{s2}', f'v_mul_f32 v{s1}, {hex(f2u(1 / 576))}, v{s1}',
          f'v_readlane_b32 s60, v{s1}, 0', f'v_readlane_b32 s28, v{s1}, 16', 's_mov_b64 s[54:55], s[56:57]',
          f'v_add_f32 v{q2}, s28, v{q2}', f'v_fma_f32 v{q2}, -v{s1}, s60, v{q2}']
    o += [f'v_rsq_f32 v{q2}, v{q2}', f's_andn2_b32 s60, s60, s{sEv}', f'v_readlane_b32 s28, v{q2}, 0',
          f's_andn2_b32 s28, s28, s{sEv}', f's_or_b32 s28, s28, s{sEv + 1}', f'v_mov_b32 v{s2}, s28', f'v_mul_f32 v{q2}, s60, v{s2}']
    if pk:
        o += [f'v_pk_fma_f32 {P(F + k)}, {P(F + k)}, {P(s2)}, {P(s2)} op_sel:[0,0,1] op_sel_hi:[1,0,1] neg_lo:[0,0,1] neg_hi:[0,0,1]'
              for k in (0, 2, 4, 6)] + [f'v_fma_f32 v{F + 8}, v{F + 8}, v{s2}, -v{q2}']
    else:
        o += [f'v_fma_f32 v{F + k}, v{F + k}, v{s2}, -v{q2}' for k in range(9)]
    o += [f'v_cvt_pk_bf16_f32 v{PKD + k}, v{F + 2 * k}, v{F + 2 * k + 1}' for k in range(4)] + [f'v_cvt_pk_bf16_f32 v{PKD + 4}, v{F + 8}, 0']
    o += [f'buffer_store_dwordx4 {R(PKD, 4)}, v{vLn}, {out_srd}, s{sYo} offen sc1',
          f'buffer_store_short v{PKD + 4}, v{vL2}, {out_srd}, s{sYo} offen offset:1024 sc1',
          f's_add_u32 s{sYo}, s{sYo}, {UNIT}']
    return o


def klate(a):
    a.i('s_mov_b64 exec, s[54:55]')
    a.i(f'buffer_store_dword v{vTr}, off, {WS}, s{sFp} sc1')
    a.vm.pop()
    a.i('s_mov_b64 exec, -1')
    a.i('s_lshl_b32 s28, s54, 2')
    a.i(f's_add_u32 s{sFp}, s{sFp}, s28')
    a.i('s_mov_b64 s[54:55], 0')


def kgemm(a, W, nkb, side, stream):
    def xreg(n):
        return X + 4 * ((n & 1) * nkb + (n >> 1))

    def xr(n):
        a.i(f'ds_read_b128 {R(xreg(n), 4)}, v{vXb} offset:{((n & 1) * nkb + (n >> 1)) * 1024}')
    a.batch = 1
    for n in range(8):
        xr(n)
    so = [sPst, 61, 62, 63]
    pend = []
    low = [f's_lshr_b32 s{sTag}, s{sS}, 1'] + [f's_add_u32 s{60 + q}, s{sPst}, {(8 * (q >> 1) + (q & 1)) * UNIT}' for q in range(1, 4)]
    k = 0
    for i in range(10):
        acc = ACC + 8 * (i & 1)
        if i < 9:
            for kb in range(nkb):
                for rt in range(2):
                    a.mfma(acc + 4 * rt, X + 4 * (rt * nkb + kb), W[(i, kb)], None if kb == 0 else acc + 4 * rt)
                    if k + 8 < 2 * nkb:
                        xr(k + 8)
                    if k + 1 < 2 * nkb:
                        a.prewait_regs(xreg(k + 1))
                    elif k + 1 == 2 * nkb:
                        a.batch = 0
                    for f in side.get(k, []):
                        if f == 'flush':
                            while low:
                                a.fill(low, 99)
                        else:
                            f()
                    while kb >= 2 and pend and a.gap < (2 if i == 8 else 1):
                        p = pend.pop(0)
                        if p:
                            a.i(p)
                        elif i < 8:
                            break
                    low += stream.get(k, [])
                    a.fill(low, KRM if k > 4 * nkb else 2)
                    k += 1
        if i == 9:
            a.fill(low, 999)
        for p in pend:
            if p:
                a.i(p)
        pend = []
        if i == 9:
            break
        if i == 8:
            for q in range(4):
                r = PK + 16 + q
                pend += [f'v_cvt_pk_bf16_f32 v{r}, v{acc + 2 * q}, v{acc + 2 * q + 1}', f'v_bfi_b32 v{r}, 1, s{sTag}, v{r}',
                         f'buffer_store_dword v{r}, v{vP1}, {WS}, s{so[q]} offen offset:512']
        else:
            d = i & 1
            for q in range(4):
                r = PK + 8 * ((i >> 1) & 1) + 2 * q
                pend.append(f'v_cvt_pk_bf16_f32 v{r + d}, v{acc + 2 * q}, v{acc + 2 * q + 1}')
                if d == 0:
                    pend.append(f'v_bfi_b32 v{r}, 1, s{sTag}, v{r}')
                else:
                    pend.append(f'buffer_store_dwordx2 {R(r, 2)}, v{vPs}, {WS}, s{so[q]} offen offset:{128 * (i >> 1)}')
                    pend.append(None)
    a.i(f's_mov_b32 s{sTr}, s{sTag}')
    a.i(f's_xor_b32 s{sPst}, s{sPst}, s53')


def res_load(a, srdn):
    a.i(f'buffer_load_dwordx4 {R(RS, 4)}, v{vLn}, {srdn}, s{sRes} offen sc1')
    a.i(f'buffer_load_ushort v{RS + 4}, v{vL2}, {srdn}, s{sRes} offen offset:1024 sc1')


def poll(a, off=0, dst=vFl):
    a.i(f'buffer_load_dword v{dst}, v{vFa}, {WS}, s{sFn} offen offset:{off} sc1')


def in_dma(n, srdn, sLb=sLb):
    o = [f's_mov_b32 m0, s{sLb}']
    o += [f'buffer_load_dwordx4 v{vLn}, {srdn}, s{sIn} offen offset:{k * 1024} sc1 lds' for k in range(4)]
    if n == 5:
        o += [f's_add_u32 m0, s{sLb}, 4096', f'buffer_load_dwordx4 v{vXq}, {srdn}, s{sIn} offen sc1 lds']
    return o


def krole(a, nm, stamps):
    dn = nm == 'down'
    nkb = 9 if dn else 8
    P = f'L_{nm}'
    a.label(P)
    rt_stamp(a, stamps, 0)
    kinit(a, 2 if dn else 0)
    W = {}
    for i in range(9):
        for kb in range(nkb):
            W[(i, kb)] = 512 - 36 * nkb + 4 * len(W)
    a.i(f's_mul_i32 s61, s{sIDX}, {32 * nkb * 1152}')
    kstage(a, W, nkb, K_WD if dn else K_WO, 16 * 32 * nkb * 1152, 61, 'nat' if dn else 'pair')
    nfl = 6 if dn else 2
    a.i(f'v_min_u32 v{vFa}, {nfl - 1}, v0')
    a.i(f'v_lshlrev_b32 v{vFa}, 9, v{vFa}')
    BB = 2 * nkb * 1024
    IU, IB, FI = (H_UNIT, HB, F_H) if dn else (O_UNIT, OB, F_O)
    ksetup(a, BB)
    a.i(f'v_add_u32 v{vXq}, 4096, v{vLn}')
    srd(a, 8, K_WS, 0)
    for p in RD_ADV[1:]:
        a.i(p)
    a.i(f'v_add_u32 v{vXb}, {INB}, v{vLn}')
    a.i(f's_mul_i32 s60, s{sL}, {64 * UNIT}')
    a.i(f's_lshl_b32 s61, s{sL}, 8')
    if dn:
        srd(a, 12, K_OUT, 2048 * 1152)
        a.i(f's_bitcmp1_b32 s{sW}, 0')
        a.i(f's_cselect_b32 s{sYo}, {OOB}, s{sRes}')
        a.i('s_mov_b64 s[56:57], 0')
        a.i(f's_cmp_eq_u32 s{sL}, 1')
        a.i(f's_cbranch_scc1 {P}_o')
        srd(a, 12, K_WS, WS_BYTES)
        a.i('s_mov_b64 s[56:57], 1')
        a.i(f's_mov_b32 s{sYo}, s{sRes}')
        a.i(f's_bitcmp1_b32 s{sW}, 0')
        a.i(f's_mov_b32 s28, {X2}')
        a.i(f's_cselect_b32 s28, {NA + 64 * UNIT}, s28')
        a.i(f's_add_u32 s{sYo}, s{sYo}, s28')
        a.label(f'{P}_o')
        a.i(f's_add_u32 s{sRes}, s{sRes}, s60')
        a.i(f's_add_u32 s{sRes}, s{sRes}, {YB}')
        a.i(f's_add_u32 s{sFp}, s{sFp}, {F_NA + 256}')
        res_srd, out_srd = WS, IO
    else:
        a.i(f's_add_u32 s{sYo}, s60, s{sRes}')
        a.i(f's_bitcmp1_b32 s{sW}, 0')
        a.i(f's_mov_b32 s28, {YB}')
        a.i(f's_cselect_b32 s28, {NB}, s28')
        a.i(f's_add_u32 s{sYo}, s{sYo}, s28')
        a.i(f's_add_u32 s{sFp}, s{sFp}, s61')
        a.i(f's_add_u32 s{sFp}, s{sFp}, {F_NB}')
        srd(a, 12, K_X, 2048 * 1152)
        a.i(f's_cmp_eq_u32 s{sL}, 0')
        a.i(f's_cbranch_scc1 {P}_o')
        srd(a, 12, K_WS, WS_BYTES)
        a.i(f's_add_u32 s{sRes}, s{sRes}, {X2}')
        a.label(f'{P}_o')
        res_srd, out_srd = IO, WS
    a.i(f's_mul_i32 s{sFn}, s{sIDX}, {nfl * 512}')
    a.i(f's_add_u32 s{sFn}, s{sFn}, s61')
    a.i(f's_add_u32 s{sFn}, s{sFn}, {FI}')
    a.i(f's_mul_i32 s{sIn}, s{sL}, {64 * IU}')
    a.i(f's_mul_i32 s28, s{sIDX}, {nkb * 1024}')
    a.i(f's_add_u32 s{sIn}, s{sIn}, s28')
    a.i(f's_add_u32 s{sIn}, s{sIn}, {IB}')
    nd = nkb - 4
    a.i(f's_lshr_b32 s28, s{sW}, 1')
    a.i(f's_mul_i32 s{sLb}, s28, {nkb * 1024}')
    a.i(f's_mul_i32 s28, s28, {IU // 2}')
    a.i(f's_add_u32 s{sIn}, s{sIn}, s28')
    a.i(f's_and_b32 s28, s{sW}, 1')
    a.i('s_lshl_b32 s28, s28, 12')
    a.i(f's_add_u32 s{sLb}, s{sLb}, s28')
    a.i(f's_add_u32 s{sLb}, s{sLb}, {INB}')
    a.i(f's_add_u32 s{sIn}, s{sIn}, s28')
    wait_init(a, 40)
    rt_stamp(a, stamps, 1, 40)
    code = 10 if dn else 12

    def decide():
        a.i(f'v_cmp_eq_u32 vcc, 0, v{vFl}')
        a.i('s_cmp_eq_u64 vcc, 0')
        a.i(f's_cselect_b32 s10, s47, 0')

    def body(carry):
        n1, n8 = 2 * nkb, 2 * nkb * 8
        kD = n8 - 34
        side = {kD - 34: [lambda: poll(a)], kD: [decide]}
        stream = {1: [f's_add_u32 s{sIn}, s{sIn}, {IU}', f's_add_u32 s{sLb}, s{sLb}, s{sDx}', f's_add_u32 s{sFn}, s{sFn}, 4',
                      f's_mov_b32 s{sTO}, {TIMEOUT}',
                      lambda: (a.i(f's_cmp_eq_u32 s{sS}, 63'), a.i(f's_cselect_b32 s47, 0, s6'))]}
        if carry:
            for n in range(9):
                side[2 + 3 * n] = [lambda n=n: rs_load(a, n)]
            side[24] = ['flush', lambda: rs_group(a, code, [0, 1, 2, 3], [0, 1, 2, 3])]
            stream[28] = t_wr(0)
            side[2 * n1 + 3] = [lambda: rs_group(a, code, [4, 5, 6, 7, 8], [4, 5, 6, 7, 8])]
            stream[2 * n1 + 5] = t_wr(1) + t_wr(2)
            side[2 * n1 + 13] = ['flush', lambda: a.barrier()]
            stream[2 * n1 + 14] = ln_stream(out_srd) + [lambda: a.join_vm_tag('n')] + RD_ADV
            side[kD - 1] = ['flush']
            side[n8 - KFL] = [lambda: (a.wait_tag('n'), klate(a))]
        k = kD + 2
        for p in in_dma(nd, WT, sLb):
            side.setdefault(k - (1 if p.startswith('s_') else 0), []).append(lambda p=p: a.i(p, tag='x'))
            k += 0 if p.startswith('s_') else 3
        side.setdefault(k, []).append(lambda: res_load(a, res_srd))
        kgemm(a, W, nkb, side, stream)

    def block():
        l = spin_head(a, 9 if dn else 11)
        poll(a)
        a.i(f'v_cmp_eq_u32 vcc, 0, v{vFl}')
        a.i(f's_cbranch_vccnz {l}', nohaz=True)
        for p in in_dma(nd, WS):
            a.i(p)
        a.waitcnt(vm=0)
    block()
    a.i('s_barrier')
    body(False)
    a.i(f's_branch {P}_end')
    vm = list(a.vm)
    a.label(f'{P}_carry')
    a.vm = [({('v', r) for r in range(RS, RS + 5)}, set())]
    a.i('s_barrier')
    stamp(a, stamps, 0)
    body(True)
    a.vm = vm
    a.out.append(f'{P}_end:')
    stamp(a, stamps, 1)
    a.i(f'v_add_u32 v{vXb}, s{sDx}, v{vXb}')
    a.i(f's_sub_u32 s{sDx}, 0, s{sDx}')
    a.wait_tag('x')
    for k in (2, 3):
        if stamps and not PROF:
            a.i(f's_mov_b32 s{80 + 2 * k}, 0')
    stamp_flush(a, stamps, 4, sS, ACC)
    a.i(f's_add_u32 s{sS}, s{sS}, 1')
    a.i('s_cmp_lg_u32 s10, 0')
    a.i(f's_cbranch_scc1 {P}_carry', nohaz=True)
    a.i(f's_cmp_eq_u32 s{sS}, 64')
    a.i(f's_cbranch_scc1 {P}_last', nohaz=True)
    block()
    a.i(f's_branch {P}_carry', nohaz=True)
    a.label(f'{P}_last')
    a.i('s_barrier')
    a.vm = []
    for n in range(4):
        rs_load(a, n)
    rs_group(a, code, [0, 1, 2, 3], [0, 1, 2, 3])
    for n in range(4, 9):
        rs_load(a, n)
    for p in t_wr(0):
        a.i(p)
    rs_group(a, code, [4, 5, 6, 7, 8], [4, 5, 6, 7, 8])
    for p in t_wr(1) + t_wr(2):
        a.i(p)
    a.barrier()
    for p in ln_stream(out_srd, pk=True):
        a.i(p)
    a.waitcnt(vm=0)
    klate(a)
    rt_stamp(a, stamps, 2, 40)
    a.i('s_endpgm')
    a.out += a.tail
    a.tail = []


def down(a, stamps=False):
    krole(a, 'down', stamps)


def oproj(a, stamps=False):
    krole(a, 'oproj', stamps)


def atn(a, stamps=False):
    from nsplit import ln_init
    a.label('L_atn')
    rt_stamp(a, stamps, 0)
    arrive(a)
    ln_init(a, 24)
    MC, MM = 16, 20
    sH, sC, sKm, sOo = 45, 47, 48, 51
    a.i(f's_lshl_b32 s{sH}, s{sIDX}, 2')
    a.i(f's_add_u32 s{sH}, s{sH}, s{sW}')
    a.i(f's_mov_b32 s{sC}, {hex(f2u(128 ** -0.5 * math.log2(math.e)))}')
    a.i('v_and_b32 v40, 15, v0')
    a.i('v_lshrrev_b32 v41, 4, v0')
    a.i('v_lshlrev_b32 v41, 2, v41')
    a.i('v_mov_b32 v42, 0xff800000')
    for r in range(4):
        a.i(f'v_add_u32 v43, {r}, v41')
        a.i('v_cmp_gt_u32 vcc, v43, v40')
        a.i(f'v_cndmask_b32 v{MC + r}, 0, v42, vcc')
    a.i('v_cmp_lt_u32 vcc, 31, v0')
    for r in range(4):
        a.i(f'v_cndmask_b32 v{MM + r}, 0, v42, vcc')
    bits(a, vFa, 0, [(0, 3, 9), (2, 1, 16)], 40)
    a.i(f's_lshl_b32 s28, s{sH}, 11')
    a.i(f's_add_u32 s28, s28, {F_Q + 4}')
    a.i(f'v_add_u32 v{vFa}, s28, v{vFa}')
    a.i(f's_lshl_b32 s{sFp}, s{sH}, 9')
    a.i(f's_add_u32 s28, s{sFp}, {F_KVM}')
    a.i('v_mov_b32 v40, s28')
    a.i(f'v_cndmask_b32 v{vFa}, v{vFa}, v40, vcc')
    bits(a, vKm, 0, [(0, 7, 4), (4, 3, 7)], 40)
    bits(a, vVm, 0, [(0, 31, 4)], 40)
    a.i(f'v_lshlrev_b32 v{vLn}, 4, v0')
    a.i(f's_lshl_b32 s{sFn}, s{sL}, 8')
    a.i(f's_add_u32 s{sFp}, s{sFp}, s{sFn}')
    a.i(f's_add_u32 s{sFp}, s{sFp}, {F_O}')
    a.i(f'v_subrev_u32 v{vT}, 4, v{vFa}')
    a.i(f's_mul_i32 s{sIn}, s{sL}, {64 * QKV_UNIT}')
    a.i(f's_mul_i32 s28, s{sH}, 24576')
    a.i(f's_add_u32 s{sIn}, s{sIn}, s28')
    a.i(f's_add_u32 s{sIn}, s{sIn}, {QKV}')
    a.i(f's_mul_i32 s{sKm}, s{sL}, {64 * KVM_UNIT}')
    a.i(f's_lshl_b32 s28, s{sH}, 12')
    a.i(f's_add_u32 s{sKm}, s{sKm}, s28')
    a.i(f's_add_u32 s{sKm}, s{sKm}, {KVM}')
    a.i(f's_mul_i32 s{sOo}, s{sL}, {64 * O_UNIT}')
    a.i(f's_add_u32 s{sOo}, s{sOo}, s28')
    a.i(f's_add_u32 s{sOo}, s{sOo}, {OB}')
    a.i(f's_mov_b32 s{sS}, 0')
    Q, K, V, OX, KM, VM, S, P, M = 24, 56, 88, 120, 184, 200, 216, 228, 240
    mx, lx, t0, t1, al = M, M + 2, M + 4, M + 6, M + 8
    a.i('s_mov_b64 s[52:53], -1')
    a.i(f'v_mov_b32 v{P + 2}, 0')
    a.i(f'v_mov_b32 v{P + 3}, 0')
    rt_stamp(a, stamps, 1, 40)

    def qkv_loads():
        for n in range(24):
            if n % 4 == 0:
                a.i(f's_add_u32 s28, s{sIn}, {n * 1024}')
            a.i(f'buffer_load_dwordx4 {R(Q + 4 * n, 4)}, v{vLn}, {WS}, s28 offen offset:{(n & 3) * 1024} sc1')
        a.i(f's_add_u32 s{sIn}, s{sIn}, {QKV_UNIT}')

    def both(fn):
        for ins in zip(fn(0), fn(1)):
            for x in ins:
                if x:
                    a.i(x)

    def xl(op, r, t):
        out = []
        for sw in (16, 32):
            out += [f'v_mov_b32 v{t}, v{r}', f'v_permlane{sw}_swap_b32 v{r}, v{t}', f'{op} v{r}, v{r}, v{t}']
        return out
    l = spin_head(a, 13)
    a.i(f'buffer_load_dword v{vFl}, v{vT}, {WS}, s{sFn} offen sc1')
    a.i(f'v_cmp_eq_u32 vcc, 0, v{vFl}')
    a.i('s_cmp_lg_u32 vcc_lo, 0')
    a.i(f's_cbranch_scc1 {l}', nohaz=True)
    qkv_loads()
    vm0 = list(a.vm)
    a.out.append('L_atn_loop:')
    stamp(a, stamps, 0)
    for kb in range(4):
        a.mfma(S, K + 8 * kb, Q + 8 * kb, MC if kb == 0 else S)
        a.mfma(S + 4, K + 8 * kb, Q + 8 * kb + 4, None if kb == 0 else S + 4)
        a.mfma(S + 8, K + 8 * kb + 4, Q + 8 * kb + 4, MC if kb == 0 else S + 8)
    a.i(f'v_max3_f32 v{mx}, v{S}, v{S + 1}, v{S + 2}')
    a.i(f'v_max3_f32 v{mx + 1}, v{S + 4}, v{S + 5}, v{S + 6}')
    a.i(f'v_max_f32 v{mx}, v{S + 3}, v{mx}')
    a.i(f'v_max3_f32 v{mx + 1}, v{S + 7}, v{S + 8}, v{mx + 1}')
    a.i(f'v_max3_f32 v{mx + 1}, v{S + 9}, v{S + 10}, v{mx + 1}')
    a.i(f'v_max_f32 v{mx + 1}, v{S + 11}, v{mx + 1}')
    both(lambda q: xl('v_max_f32', mx + q, t1 + q) + [f'v_mul_f32 v{mx + q}, s{sC}, v{mx + q}'])
    for x in range(12):
        a.i(f'v_fma_f32 v{S + x}, v{S + x}, s{sC}, -v{mx + (x >= 4)}')
    for x in range(12):
        a.i(f'v_exp_f32 v{S + x}, v{S + x}')
    for x in range(6):
        a.i(f'v_cvt_pk_bf16_f32 v{P + x + (2 if x >= 2 else 0)}, v{S + 2 * x}, v{S + 2 * x + 1}')
    adds = [f'v_add_f32 v{lx}, v{S}, v{S + 1}', f'v_add_f32 v{lx + 1}, v{S + 4}, v{S + 5}']
    adds += [f'v_add_f32 v{lx}, v{lx}, v{S + x}' for x in (2, 3)] + [f'v_add_f32 v{lx + 1}, v{lx + 1}, v{S + x}' for x in range(6, 12)]
    for d in range(8):
        for q in range(2):
            a.mfma(OX + 32 * q + 4 * d, V + 4 * d, P + 4 * q, None)
            if adds:
                a.i(adds.pop(0))
    stamp(a, stamps, 1)
    def kvm_loads():
        for kb in range(4):
            a.i(f'buffer_load_dwordx4 {R(KM + 4 * kb, 4)}, v{vKm}, {WS}, s{sKm} offen offset:{kb * 512} sc1')
        for kb in range(4):
            a.i(f'buffer_load_dwordx4 {R(VM + 4 * kb, 4)}, v{vVm}, {WS}, s{sKm} offen offset:{2048 + kb * 512} sc1')
    a.i('s_mov_b64 vcc, s[52:53]')
    a.i('s_cmp_eq_u32 s53, 0')
    a.i('s_cbranch_scc1 L_atn_hm', nohaz=True)
    l = spin_head(a, 14)
    poll(a)
    a.i(f'v_cmp_eq_u32 vcc, 0, v{vFl}')
    a.i('s_cmp_lg_u32 vcc_hi, 0')
    a.i(f's_cbranch_scc1 {l}', nohaz=True)
    kvm_loads()
    a.label('L_atn_hm')
    a.i('s_cmp_eq_u32 vcc_lo, 0')
    a.i('s_cselect_b64 vcc, 1, 0')
    a.i(f's_cmp_eq_u32 s{sS}, 63')
    a.i('s_cselect_b64 vcc, 0, vcc')
    a.i(f's_add_u32 s{sKm}, s{sKm}, {KVM_UNIT}')
    order = list(range(8, 16)) + list(range(0, 8)) + list(range(16, 24))

    def ld(n):
        a.i(f's_add_u32 s28, s{sIn}, {n * 1024}')
        a.i(f'buffer_load_dwordx4 {R(Q + 4 * n, 4)}, v{vLn}, {WS}, s28 offen sc1')

    def bulk(cnt=1):
        l = a.new('L_sk')
        vm, lg = list(a.vm), list(a.lg)
        a.i(f's_cbranch_vccz {l}', nohaz=True)
        for _ in range(cnt):
            ld(order.pop(0))
        a.out.append(l + ':')
        a.vm, a.lg = vm, lg
    a.i('s_cbranch_vccz L_atn_w0', nohaz=True)
    for _ in range(6):
        ld(order.pop(0))
    a.waitcnt(vm=6)
    a.i('s_branch L_atn_w1', nohaz=True)
    a.out.append('L_atn_w0:')
    a.waitcnt(vm=0)
    a.out.append('L_atn_w1:')
    stamp(a, stamps, 2)
    for kb in range(4):
        for q in range(2):
            a.mfma(S + 4 * q, KM + 4 * kb, Q + 8 * kb + 4 * q, MM if kb == 0 else S + 4 * q)
    bulk(2)
    stamp(a, stamps, 3)
    PM = S + 8

    def post(q):
        s, m, t, A = S + 4 * q, t0 + q, t1 + q, al + 2 * q
        return ([f'v_max3_f32 v{m}, v{s}, v{s + 1}, v{s + 2}', f'v_max_f32 v{m}, v{s + 3}, v{m}'] + xl('v_max_f32', m, t)
                + [f'v_mul_f32 v{m}, s{sC}, v{m}', f'v_max_f32 v{m}, v{m}, v{mx + q}', f'v_sub_f32 v{A}, v{mx + q}, v{m}']
                + [f'v_fma_f32 v{s + x}, v{s + x}, s{sC}, -v{m}' for x in range(4)]
                + [f'v_exp_f32 v{A}, v{A}'] + [f'v_exp_f32 v{s + x}, v{s + x}' for x in range(4)]
                + [f'v_fma_f32 v{m}, v{lx + q}, v{A}, v{s}', f'v_add_f32 v{t}, v{s + 1}, v{s + 2}',
                   f'v_add_f32 v{m}, v{m}, v{s + 3}', f'v_add_f32 v{m}, v{m}, v{t}'] + xl('v_add_f32', m, t)
                + [f'v_rcp_f32 v{m}, v{m}', f'v_mul_f32 v{A}, v{m}, v{A}']
                + [f'v_mul_f32 v{s + x}, v{m}, v{s + x}' for x in range(4)]
                + [f'v_mov_b32 v{A + 1}, v{A}', f'v_cvt_pk_bf16_f32 v{PM + 2 * q}, v{s}, v{s + 1}',
                   f'v_cvt_pk_bf16_f32 v{PM + 2 * q + 1}, v{s + 2}, v{s + 3}'])
    poll(a, 4)
    for ix, ins in enumerate(zip(post(0), post(1))):
        for x in ins:
            a.i(x)
        if ix % 10 == 4:
            bulk()
    a.i(f's_add_u32 s60, s{sOo}, {O_UNIT // 2}')
    for n in range(32):
        a.i(f'v_pk_mul_f32 {R(OX + 2 * n, 2)}, {R(OX + 2 * n, 2)}, {R(al + 2 * (n >> 4), 2)}')
        if n % 9 == 4:
            bulk()
    a.vm = [({('v', vFl)}, set())] + [(set(), set())] * 8
    a.i('s_cbranch_vccz L_atn_np', nohaz=True)
    a.i(f'v_cmp_eq_u32 s[52:53], 0, v{vFl}')
    a.out.append('L_atn_np:')
    a.vm = []
    low = []
    for n in range(16):
        o = OX + 4 * n
        a.mfma(o, VM + 2 * (n & 7), PM + 2 * (n >> 3), o, k=16)
        a.fill(low, 3)
        if n >= 3 and n % 2 == 1 or n == 15:
            for f in ([(n - 3) // 2] if n < 15 else [6, 7]):
                o = OX + 8 * f
                low += [f'v_cvt_pk_bf16_f32 v{o + x}, v{o + 2 * x}, v{o + 2 * x + 1}' for x in range(4)]
                low.append(lambda o=o, f=f: a.i(
                    f'buffer_store_dwordx4 {R(o, 4)}, v{vLn}, {WS}, s{sOo if f < 4 else 60} offen offset:{(f & 3) * 1024} sc1', tag='o'))
    a.fill(low, 999)
    stamp(a, stamps, 4)
    a.i(f's_add_u32 s{sOo}, s{sOo}, {O_UNIT}')
    a.i('s_cbranch_vccz L_atn_slow', nohaz=True)
    print('atn: loads left after stores', len(order))
    a.i('s_cmp_lg_u32 s53, 0')
    a.i('s_cbranch_scc1 L_atn_nm', nohaz=True)
    vm = list(a.vm)
    for path in range(2):
        if path == 0:
            kvm_loads()
        else:
            a.out.append('L_atn_nm:')
            a.vm = list(vm)
        for n in order:
            ld(n)
        a.wait_tag('o')
        a.i('s_mov_b64 exec, 1')
        a.i(f'buffer_store_dword v{vFa}, off, {WS}, s{sFp} sc1')
        a.i('s_mov_b64 exec, -1')
        a.i(f's_add_u32 s{sIn}, s{sIn}, {QKV_UNIT}')
        a.i('s_branch L_atn_adv')
    a.label('L_atn_slow')
    a.i('s_mov_b64 s[52:53], -1')
    a.waitcnt(vm=0)
    a.i('s_mov_b64 exec, 1')
    a.i(f'buffer_store_dword v{vFa}, off, {WS}, s{sFp} sc1')
    a.i('s_mov_b64 exec, -1')
    a.i(f's_cmp_eq_u32 s{sS}, 63')
    a.i('s_cbranch_scc1 L_atn_done')
    l = spin_head(a, 15)
    poll(a)
    a.i(f'v_cmp_eq_u32 vcc, 0, v{vFl}')
    a.i('s_cmp_lg_u32 vcc_lo, 0')
    a.i(f's_cbranch_scc1 {l}', nohaz=True)
    qkv_loads()
    a.label('L_atn_adv')
    stamp(a, stamps, 5)
    stamp_flush(a, stamps, 6, sS, S)
    a.i(f's_add_u32 s{sFp}, s{sFp}, 4')
    a.i(f's_add_u32 s{sFn}, s{sFn}, 4')
    a.i(f's_add_u32 s{sS}, s{sS}, 1')
    a.i('s_branch L_atn_loop')
    a.label('L_atn_done')
    rt_stamp(a, stamps, 2, 40)
    a.i('s_endpgm')
```

```python
import math
from common import *
from chain import f2u

vLn, vXe, vXo, vFa, vFl, vT = 0, 1, 2, 3, 4, 5
vD9 = 6
sS, sPre, sSrc, sFn, sLb, sW1k, sW9k, sOut, sFp, sFq, sPq = range(30, 41)
sDx = 44
UPP = int(os.environ.get('UPP', 76))
PJP = int(os.environ.get('PJP', 30))
XB = UNIT


def publish(a, sflag, vnz=vXo):
    a.i('s_mov_b64 exec, 1')
    a.i(f'buffer_store_dword v{vnz}, off, {WS}, s{sflag} sc1')
    a.i('s_mov_b64 exec, -1')


def x_setup(a, nbase, fbase, t0, t1, t2):
    dma_voff_72(a, vD9, SWZ['x'], t0, t1, t2)
    for n in range(9):
        a.i(f'v_add_u32 v{vD9 + n}, {4096 - (n & 3) * 1024}, v{vD9 + n}')
    a.i(f'v_and_b32 v{t0}, 15, v0')
    a.i(f'v_bfe_u32 v{t1}, v0, 1, 3')
    a.i(f'v_lshrrev_b32 v{t2}, 4, v0')
    a.i(f'v_xor_b32 v{t1}, v{t1}, v{t2}')
    a.i(f'v_mul_u32_u24 v{t0}, 1152, v{t0}')
    a.i(f'v_lshl_add_u32 v{vXe}, v{t1}, 4, v{t0}')
    a.i(f'v_xor_b32 v{t1}, 4, v{t1}')
    a.i(f'v_lshl_add_u32 v{vXo}, v{t1}, 4, v{t0}')
    a.i(f'v_and_b32 v{vFa}, 15, v0')
    a.i(f'v_lshlrev_b32 v{vFa}, 9, v{vFa}')
    a.i(f's_mul_i32 s{sSrc}, s{sL}, {64 * UNIT}')
    a.i(f's_add_u32 s{sSrc}, s{sSrc}, {nbase - 4096}')
    a.i(f's_lshl_b32 s{sFn}, s{sW}, 13')
    a.i(f's_lshl_b32 s28, s{sL}, 8')
    a.i(f's_add_u32 s{sFn}, s{sFn}, s28')
    a.i(f's_add_u32 s{sFn}, s{sFn}, {fbase}')
    a.i(f's_mov_b32 s{sLb}, s{sW9k}')
    a.i(f's_mov_b32 s{sS}, 0')
    a.i(f's_mov_b32 s{sDx}, {XB}')
    a.i(f's_mov_b64 s[{sPq}:{sPq + 1}], 0')
    srd(a, 8, K_WS, 0)
    a.i(f'v_lshlrev_b32 v{vLn}, 4, v0')


def x_poll(a):
    a.i(f'buffer_load_dword v{vFl}, v{vFa}, {WS}, s{sFn} offen sc1')


def x_dma_list(srdn):
    o = []
    for n in range(9):
        if n % 4 == 0:
            o.append(f's_add_u32 m0, s{sLb}, {n * 1024}')
        o.append(f'buffer_load_dwordx4 v{vD9 + n}, {srdn}, s{sSrc} offen offset:{(n & 3) * 1024} sc1 lds')
    return o


def x_adv(a):
    a.i(f's_add_u32 s{sSrc}, s{sSrc}, {UNIT}')
    a.i(f's_add_u32 s{sFn}, s{sFn}, 4')
    a.i(f's_add_u32 s{sLb}, s{sLb}, s{sDx}')


def x_flag(a):
    a.waitcnt(vm=0)
    a.i(f's_mov_b64 exec, s[{sPq}:{sPq + 1}]')
    a.i(f'buffer_store_dword v{vXo}, off, {WS}, s{sFq} sc1')
    a.vm.pop()
    a.i('s_mov_b64 exec, -1')


def x_chk(a):
    a.i(f'v_cmp_eq_u32 vcc, 0, v{vFl}')
    a.i('s_cmp_eq_u64 vcc, 0')
    a.i(f's_cselect_b32 s10, {WS_BYTES}, 0')


def x_block(a, code):
    l = spin_head(a, code)
    x_poll(a)
    a.i(f'v_cmp_eq_u32 vcc, 0, v{vFl}')
    a.i(f's_cbranch_vccnz {l}', nohaz=True)
    for p in x_dma_list(WS):
        a.i(p)
    a.waitcnt(vm=0)


def x_next(a, pfx, code, regs):
    a.i(f's_add_u32 s{sFq}, s{sFq}, 4')
    a.i(f's_add_u32 s{sS}, s{sS}, 1')
    a.i(f's_cmp_eq_u32 s{sS}, 64')
    a.i(f's_cselect_b32 s10, 0, s10')
    a.i(f's_mov_b64 s[{sPq}:{sPq + 1}], 1')
    for r in regs:
        a.i(f'v_add_u32 v{r}, s{sDx}, v{r}')
    a.i(f's_sub_u32 s{sDx}, 0, s{sDx}')
    a.i('s_cmp_lg_u32 s10, 0')
    a.wait_tag('x')
    a.i(f's_cbranch_scc1 {pfx}_loop')
    l = spin_head(a, code)
    x_poll(a)
    x_flag(a)
    a.i(f's_mov_b64 s[{sPq}:{sPq + 1}], 0')
    a.i(f's_cmp_eq_u32 s{sS}, 64')
    a.i(f's_cbranch_scc1 {pfx}_done')
    a.i(f'v_cmp_eq_u32 vcc, 0, v{vFl}')
    a.i(f's_cbranch_vccnz {l}', nohaz=True)
    for p in x_dma_list(WS):
        a.i(p)
    a.waitcnt(vm=0)
    a.i(f's_branch {pfx}_loop')


def xread(a, dst, rt, j):
    a.i(f'ds_read_b128 {R(dst, 4)}, v{(vXe, vXo)[j & 1]} offset:{(j >> 1) * 128 + rt * 18432}')


def stage256(a, mats, gpitch, scol, W, qk_style):
    vq, a0, a1, aq, tA = 20, 21, 22, 23, 24
    sw = SWZ['p2', 'nat']
    dma_voff_pow2(a, vq, 16, gpitch, sw, 30, 31)
    a.i(f's_lshl_b32 s62, s{sW}, 2')

    def u_qk(t):
        a.i(f'v_and_b32 v{t}, 3, v0')
        a.i(f'v_add_u32 v{t}, s62, v{t}')

    def u_nat(add):
        def f(t):
            a.i(f'v_bfe_u32 v{t}, v0, 1, 1')
            a.i(f'v_add_u32 v{t}, s62, v{t}')
            if add:
                a.i(f'v_add_u32 v{t}, {add}, v{t}')
        return f

    def sub8(t):
        a.i(f'v_and_b32 v{t}, 1, v0')
        a.i(f'v_lshlrev_b32 v{t}, 3, v{t}')
    tr_addr(a, aq, 256, 'nat', sw, u_qk, None, 30, 31)
    tr_addr(a, a0, 256, 'nat', sw, u_nat(0), sub8, 30, 31)
    tr_addr(a, a1, 256, 'nat', sw, u_nat(2), sub8, 30, 31)
    ds = DsAddr(a, tA)
    chunks = [(m, h) for m in mats for h in range(2)]

    def issue(c):
        (m, karg, nb), h = chunks[c]
        srd(a, 8, karg, nb)
        for bi in range(9):
            for hh in range(2):
                dma(a, vq, WT, sW1k, (BUF0, BUF1)[c & 1] + bi * 8192 + hh * 4096, scol, (32 * (9 * h + bi) + 16 * hh) * gpitch)
    issue(0)
    issue(1)
    for c in range(len(chunks)):
        a.waitcnt(vm=18 if c + 1 < len(chunks) else 0)
        a.i('s_barrier')
        (m, _, _), h = chunks[c]
        for bi in range(9):
            for b in range(2):
                ar, o = (aq, 8 * b) if m in qk_style else ((a0, a1)[b], 0)
                tr_frag(a, ds, W[(m, b, 9 * h + bi)], ar, (BUF0, BUF1)[c & 1] + bi * 8192 + o, 256, 'nat')
        a.barrier()
        if c + 2 < len(chunks):
            issue(c + 2)


def proj(a, stamps=False):
    a.label('L_proj')
    rt_stamp(a, stamps, 0)
    arrive(a)
    W = {}
    for m in 'kvq':
        for j in range(18):
            for b in range(2):
                W[(m, b, j)] = 80 + 4 * len(W)
    a.i(f's_lshl_b32 s{sW1k}, s{sW}, 10')
    a.i(f's_mul_i32 s{sW9k}, s{sW}, 9216')
    a.i(f's_lshl_b32 s61, s{sIDX}, 8')
    nb = 576 * 4096 * 2
    stage256(a, [('k', K_WK, nb), ('v', K_WV, nb), ('q', K_WQ, nb)], 8192, 61, W, 'qk')
    x_setup(a, NA, F_NA, 30, 31, 32)
    a.i(f's_mul_i32 s{sOut}, s{sL}, {64 * QKV_UNIT}')
    a.i(f's_mul_i32 s28, s{sIDX}, 24576')
    a.i(f's_add_u32 s{sOut}, s{sOut}, s28')
    a.i(f's_lshl_b32 s28, s{sW}, 11')
    a.i(f's_add_u32 s{sOut}, s{sOut}, s28')
    a.i(f's_add_u32 s{sOut}, s{sOut}, {QKV}')
    a.i(f's_lshl_b32 s{sFp}, s{sIDX}, 11')
    a.i(f's_lshl_b32 s28, s{sW}, 9')
    a.i(f's_add_u32 s{sFp}, s{sFp}, s28')
    a.i(f's_lshl_b32 s28, s{sL}, 8')
    a.i(f's_add_u32 s{sFp}, s{sFp}, s28')
    a.i(f's_add_u32 s{sFq}, s{sFp}, {F_Q - 4}')
    a.i(f's_add_u32 s{sFp}, s{sFp}, {F_KV}')
    wait_init(a, 30)
    rt_stamp(a, stamps, 1, 30)
    x_block(a, 5)
    KA, VA, QA, RG = 16, 32, 48, 64
    a.label('L_proj_loop')
    a.i('s_barrier')
    stamp(a, stamps, 0)
    a.batch = 1
    r1 = [RG, RG + 4, RG + 8, RG + 12, QA, QA + 4]
    for n in range(6):
        xread(a, r1[n], n & 1, n >> 1)
    x_adv(a)
    r2 = [RG, RG + 4, RG + 8, RG + 12, KA + 4, KA + 12]
    low = []
    at = {10: [lambda: x_flag(a)], PJP: [lambda: x_poll(a)]}
    dl = x_dma_list(WT)
    for n in range(36):
        j, rt = n >> 1, n & 1
        x = r1[n % 6]
        low += at.get(n, [])
        for q in range(4):
            b = q >> 1
            if q & 1:
                acc = VA + 8 * b + 4 * rt
                a.mfma(acc, x, W[('v', b, j)], None if j == 0 else acc)
            else:
                acc = KA + 8 * rt + 4 * b
                a.mfma(acc, W[('k', b, j)], x, None if j == 0 else acc)
            if q == 3:
                if n + 6 < 36:
                    xread(a, x, (n + 6) & 1, (n + 6) >> 1)
                elif x in r2[:4]:
                    m = r2.index(x)
                    xread(a, x, m & 1, m >> 1)
                a.prewait_regs(r1[(n + 1) % 6] if n < 35 else r2[0])
            elif q != 1:
                a.fill(low)
    assert not low
    stamp(a, stamps, 1)
    low = [f's_add_u32 s60, s{sOut}, 8192', f's_add_u32 s61, s{sOut}, 16384']
    st = []
    for gi, (base, so) in enumerate(((KA, 60), (KA + 8, 60), (VA, 61), (VA + 8, 61))):
        low += [f'v_cvt_pk_bf16_f32 v{base + x}, v{base + 2 * x}, v{base + 2 * x + 1}' for x in range(4)]
        if gi < 2:
            low.append(lambda gi=gi: xread(a, r2[4 + gi], gi, 2))
        st.append(lambda base=base, so=so, gi=gi: a.i(
            f'buffer_store_dwordx4 {R(base, 4)}, v{vLn}, {WS}, s{so} offen offset:{(gi & 1) * 1024} sc1', tag='kv'))
        if gi:
            low.append(st[gi - 1])
    low.append(st[3])
    low.append(lambda: x_chk(a))
    for n in range(36):
        j, rt = n >> 1, n & 1
        x = r2[n % 6]
        if n >= 12 and dl:
            low.append(dl.pop(0))
            if not dl:
                low.append(lambda: a.join_vm_tag('x'))
        for b in range(2):
            acc = QA + 8 * rt + 4 * b
            a.mfma(acc, W[('q', b, j)], x, None if j == 0 else acc)
            if b == 1:
                if n + 6 < 36:
                    xread(a, x, (n + 6) & 1, (n + 6) >> 1)
                if n < 35:
                    if n < 5:
                        a.fill(low, 4)
                    a.prewait_regs(r2[(n + 1) % 6])
            a.fill(low, 3 if n < 5 else 2)
    assert not low and not dl
    a.batch = 0
    a.wait_tag('kv')
    publish(a, sFp)
    a.i(f's_add_u32 s{sFp}, s{sFp}, 4')
    for rt in range(2):
        base = QA + 8 * rt
        for x in range(4):
            a.i(f'v_cvt_pk_bf16_f32 v{base + x}, v{base + 2 * x}, v{base + 2 * x + 1}')
        a.i(f'buffer_store_dwordx4 {R(base, 4)}, v{vLn}, {WS}, s{sOut} offen offset:{rt * 1024} sc1')
    a.i(f's_add_u32 s{sOut}, s{sOut}, {QKV_UNIT}')
    stamp(a, stamps, 2)
    stamp_flush(a, stamps, 3, sS, KA)
    x_next(a, 'L_proj', 6, (vXe, vXo))
    a.label('L_proj_done')
    rt_stamp(a, stamps, 2, 30)
    a.i('s_endpgm')


def ln_init(a, add=0):
    X, F, t = 16, 64, 140
    srd(a, 12, K_X, 2048 * 1152)
    a.i(f's_lshl_b32 s60, s{sL}, 5')
    a.i(f's_add_u32 s60, s60, s{sIDX}')
    a.i(f's_add_u32 s60, s60, {add}')
    a.i(f's_mul_i32 s61, s60, {UNIT}')
    a.i(f's_mul_i32 s28, s{sW}, 9216')
    a.i(f's_add_u32 s61, s61, s28')
    a.i(f'v_lshrrev_b32 v{t}, 3, v0')
    a.i(f'v_mul_u32_u24 v{t}, 1152, v{t}')
    a.i(f'v_and_b32 v{t + 1}, 7, v0')
    a.i(f'v_lshl_add_u32 v{t}, v{t + 1}, 4, v{t}')
    for i in range(9):
        a.i(f'buffer_load_dwordx4 {R(X + 4 * i, 4)}, v{t}, {IO}, s61 offen offset:{i * 128}')
    for d in range(36):
        a.i(f'v_lshlrev_b32 v{F + 2 * d}, 16, v{X + d}')
        a.i(f'v_and_b32 v{F + 2 * d + 1}, 0xffff0000, v{X + d}')
    s_, q_ = t + 2, t + 3

    def red(r):
        for m in ('quad_perm:[1,0,3,2]', 'quad_perm:[2,3,0,1]', 'row_half_mirror'):
            a.i(f'v_add_f32_dpp v{r}, v{r}, v{r} {m} row_mask:0xf bank_mask:0xf')
    a.i(f'v_add_f32 v{s_}, v{F}, v{F + 1}')
    for d in range(2, 72):
        a.i(f'v_add_f32 v{s_}, v{s_}, v{F + d}')
    red(s_)
    a.i(f'v_mul_f32 v{s_}, {hex(f2u(1 / 576))}, v{s_}')
    for d in range(72):
        a.i(f'v_sub_f32 v{F + d}, v{F + d}, v{s_}')
    a.i(f'v_mul_f32 v{q_}, v{F}, v{F}')
    for d in range(1, 72):
        a.i(f'v_fmac_f32 v{q_}, v{F + d}, v{F + d}')
    red(q_)
    a.i(f'v_mov_b32 v{s_}, {hex(f2u(1e-5))}')
    a.i(f'v_fmac_f32 v{s_}, {hex(f2u(1 / 576))}, v{q_}')
    a.i(f'v_rsq_f32 v{s_}, v{s_}')
    for d in range(72):
        a.i(f'v_mul_f32 v{F + d}, v{F + d}, v{s_}')
    for d in range(36):
        a.i(f'v_cvt_pk_bf16_f32 v{X + d}, v{F + 2 * d}, v{F + 2 * d + 1}')
    a.i(f's_add_u32 s61, s61, {NA}')
    for i in range(9):
        a.i(f'buffer_store_dwordx4 {R(X + 4 * i, 4)}, v{t}, {WS}, s61 offen offset:{i * 128} sc1')
    wait_init(a, t + 1)
    a.i(f'v_and_b32 v{t}, 15, v0')
    a.i(f'v_lshlrev_b32 v{t}, 9, v{t}')
    a.i(f's_lshl_b32 s61, s{sW}, 13')
    a.i('s_lshl_b32 s60, s60, 2')
    a.i('s_add_u32 s61, s61, s60')
    a.i(f'v_mov_b32 v{t + 1}, 1')
    a.i('s_mov_b64 exec, 0xffff')
    a.i(f'buffer_store_dword v{t + 1}, v{t}, {WS}, s61 offen offset:{F_NA} sc1')
    a.i('s_mov_b64 exec, -1')


def geglu(g, u, t, vc0, sc1):
    return [f'v_mul_f32 v{t}, v{g}, v{g}',
            f'v_fma_f32 v{t}, v{t}, s{sc1}, v{vc0}',
            f'v_mul_f32 v{t}, v{t}, v{g}',
            f'v_exp_f32 v{t}, v{t}',
            f'v_mul_f32 v{g}, v{g}, v{u}',
            f'v_add_f32 v{t}, 1.0, v{t}',
            f'v_rcp_f32 v{t}, v{t}',
            f'v_mul_f32 v{g}, v{g}, v{t}']


def up(a, stamps=False):
    a.label('L_up')
    rt_stamp(a, stamps, 0)
    arrive(a)
    a.i(f's_lshl_b32 s{sW1k}, s{sW}, 10')
    a.i(f's_mul_i32 s{sW9k}, s{sW}, 9216')
    ln_init(a)
    W = {}
    for j in range(36):
        for b in range(3):
            W[(b, j)] = 80 + 4 * len(W)
    v3, at, tA = 20, 23, 26
    sw = SWZ['p1', 'nat']
    dma_voff_72(a, v3, sw, 30, 31, 32, upr=24, gpitch=9216)
    a.i(f's_mul_i32 s62, s{sW}, 6')
    bits(a, 30, 0, [(2, 3, 0), (5, 1, 3)], 31)
    bits(a, 32, 30, sw, 31)
    a.i('v_mul_u32_u24 v30, 384, v30')
    a.i('v_bfe_u32 v31, v0, 4, 1')
    a.i('v_mul_u32_u24 v31, 36864, v31')
    a.i('v_add_u32 v30, v30, v31')
    a.i('v_and_b32 v31, 2, v0')
    a.i('v_lshl_add_u32 v30, v31, 2, v30')
    for b in range(3):
        a.i('v_and_b32 v31, 1, v0')
        a.i('v_add_u32 v31, s62, v31')
        a.i(f'v_add_u32 v31, {2 * b}, v31')
        a.i('v_xor_b32 v31, v31, v32')
        a.i(f'v_lshl_add_u32 v{at + b}, v31, 4, v30')
    ds = DsAddr(a, tA)
    a.i(f's_mul_i32 s60, s{sW}, 3072')
    a.i(f's_mul_i32 s61, s{sIDX}, 384')

    def issue(c):
        for mi, karg in enumerate((K_WG, K_WU)):
            srd(a, 8, karg, 576 * 4608 * 2)
            for bi in range(3):
                for k in range(3):
                    dma(a, v3 + k, WT, 60, (BUF0, BUF1)[c & 1] + mi * 36864 + bi * 12288 + k * 1024, 61, 32 * (3 * c + bi) * 9216)
    issue(0)
    issue(1)
    for c in range(6):
        a.waitcnt(vm=18 if c < 5 else 0)
        a.i('s_barrier')
        for b in range(3):
            for jj in range(6):
                tr_frag(a, ds, W[(b, 6 * c + jj)], at + b, (BUF0, BUF1)[c & 1] + jj * 6144, 384, 'nat')
        a.barrier()
        if c + 2 < 6:
            issue(c + 2)
    vC0, vX2, vX3, vH, sC1 = 15, 16, 17, vT, 42
    bits(a, vH, 0, [(0, 15, 4), (5, 1, 8)], 30)
    a.i('v_bfe_u32 v30, v0, 4, 1')
    a.i(f'v_mul_u32_u24 v30, {144 * 1024}, v30')
    a.i(f'v_add_u32 v{vH}, v{vH}, v30')
    a.i('v_and_b32 v33, 31, v0')
    a.i('v_mul_u32_u24 v33, 1152, v33')
    a.i('v_bfe_u32 v34, v0, 1, 3')
    a.i('v_lshrrev_b32 v35, 5, v0')
    a.i('v_xor_b32 v34, v34, v35')
    x_setup(a, NB, F_NB, 30, 31, 32)
    xa = [vXe, vXo, vX2, vX3]
    for q in range(4):
        a.i(f'v_xor_b32 v35, {2 * q}, v34')
        a.i(f'v_lshl_add_u32 v{xa[q]}, v35, 4, v33')
    c0 = -2 * math.sqrt(2 / math.pi) * math.log2(math.e)
    a.i(f'v_mov_b32 v{vC0}, {hex(f2u(c0))}')
    a.i(f's_mov_b32 s{sC1}, {hex(f2u(c0 * 0.044715))}')
    a.i(f's_mul_i32 s{sOut}, s{sL}, {64 * H_UNIT}')
    a.i(f's_add_u32 s{sOut}, s{sOut}, {HB}')
    a.i(f's_mul_i32 s28, s{sIDX}, 6144')
    a.i(f's_add_u32 s{sOut}, s{sOut}, s28')
    a.i(f's_mul_i32 s28, s{sW}, 1536')
    a.i(f's_add_u32 s{sOut}, s{sOut}, s28')
    a.i(f's_lshl_b32 s{sFq}, s{sIDX}, 11')
    a.i(f's_lshl_b32 s28, s{sW}, 9')
    a.i(f's_add_u32 s{sFq}, s{sFq}, s28')
    a.i(f's_lshl_b32 s28, s{sL}, 8')
    a.i(f's_add_u32 s{sFq}, s{sFq}, s28')
    a.i(f's_add_u32 s{sFq}, s{sFq}, {F_H - 4}')
    code_touch(a, 30)
    rt_stamp(a, stamps, 1, 30)
    x_block(a, 7)
    ACC, RG, TM = 20, 52, 72
    a.i(f'v_mov_b32 v18, s{sC1}')
    a.i(f'v_mov_b32 v19, v{vC0}')
    a.label('L_up_loop')
    a.i('s_barrier')
    stamp(a, stamps, 0)
    a.batch = 1

    def fin(b):
        base = ACC + 16 * (b & 1)
        return [f'v_cvt_pk_bf16_f32 v{base + k}, v{base + 2 * k}, v{base + 2 * k + 1}' for k in range(4)] + \
               [f'buffer_store_dwordx4 {R(base, 4)}, v{vH}, {WS}, s{sOut} offen offset:{b * 512} sc1']

    def epi(b):
        base = ACC + 16 * (b & 1)
        ls = [geglu(base + k, base + 8 + k, TM + k, vC0, sC1) for k in range(8)]
        return [l[st] for st in range(8) for l in ls] + fin(b)

    def epi_pk(b):
        g = ACC + 16 * (b & 1)
        P = lambda r: R(r, 2)
        o = [f'v_pk_mul_f32 {P(TM + k)}, {P(g + k)}, {P(g + k)}' for k in (0, 2, 4, 6)]
        o += [f'v_pk_fma_f32 {P(TM + k)}, {P(TM + k)}, v[18:19], v[18:19] op_sel:[0,0,1] op_sel_hi:[1,0,1]' for k in (0, 2, 4, 6)]
        o += [f'v_pk_mul_f32 {P(TM + k)}, {P(TM + k)}, {P(g + k)}' for k in (0, 2, 4, 6)]
        o += [f'v_exp_f32 v{TM + k}, v{TM + k}' for k in range(8)]
        o += [f'v_pk_mul_f32 {P(g + k)}, {P(g + k)}, {P(g + 8 + k)}' for k in (0, 2, 4, 6)]
        o += [f'v_pk_add_f32 {P(TM + k)}, {P(TM + k)}, 1.0 op_sel_hi:[1,0]' for k in (0, 2, 4, 6)]
        o += [f'v_rcp_f32 v{TM + k}, v{TM + k}' for k in range(8)]
        o += [f'v_pk_mul_f32 {P(g + k)}, {P(g + k)}, {P(TM + k)}' for k in (0, 2, 4, 6)]
        return o + fin(b)

    def rd(n):
        j = n % 36
        a.i(f'ds_read_b128 {R(RG + 4 * (n % 5), 4)}, v{xa[j & 3]} offset:{(j >> 2) * 128}')
    for n in range(5):
        rd(n)
    x_adv(a)
    low = []
    at = {28: [lambda: x_flag(a)], 39: epi(0), 75: epi(1)}
    dl = x_dma_list(WT)
    for n in range(108):
        b, j = divmod(n, 36)
        acc = ACC + 16 * (b & 1)
        if j == 0:
            assert not low
        a.mfma(acc, W[(b, j)], RG + 4 * (n % 5), None if j == 0 else acc, k='big')
        if n + 5 < 108:
            rd(n + 5)
        if n < 107:
            a.prewait_regs(RG + 4 * ((n + 1) % 5))
        if n == UPP:
            x_poll(a)
        if n == UPP + 16:
            x_chk(a)
        if n > UPP + 16 and dl:
            a.i(dl.pop(0))
            if dl and not dl[0].startswith('s_') and a.hist[-1].kind == 'salu':
                a.i(dl.pop(0))
            if not dl:
                a.join_vm_tag('x')
        low += at.get(n, [])
        a.fill(low, 6)
    assert not low and not dl
    a.batch = 0
    stamp(a, stamps, 1)
    for p in epi_pk(2):
        a.i(p)
    a.i(f's_add_u32 s{sOut}, s{sOut}, {H_UNIT}')
    stamp(a, stamps, 2)
    stamp_flush(a, stamps, 3, sS, ACC + 16)
    x_next(a, 'L_up', 8, xa)
    a.label('L_up_done')
    rt_stamp(a, stamps, 2, 30)
    a.i('s_endpgm')
```

```python
from asmlib import *
from layout import *
import os

WS = 's[4:7]'
WT = 's[8:11]'
IO = 's[12:15]'
DBG = 's[16:19]'
sW, sIDX, sGID, sTO = 20, 21, 22, 23
sL = 24
TIMEOUT = 1 << 15
BUF0, BUF1 = 0, 73728


def srd(a, base, karg, nbytes):
    a.i(f's_load_dwordx2 s[{base}:{base + 1}], s[0:1], {karg}')
    a.i(f's_mov_b32 s{base + 2}, {nbytes}')
    a.i(f's_mov_b32 s{base + 3}, 0x20000')
    a.waitcnt(lg=0)


def prologue(a, roles):
    a.i(f's_load_dwordx2 s[4:5], s[0:1], {K_WS}')
    a.i(f's_load_dwordx2 s[16:17], s[0:1], {K_DBG}')
    a.i(f's_load_dwordx2 s[8:9], s[0:1], {K_WQ}')
    a.i(f's_load_dwordx2 s[12:13], s[0:1], {K_X}')
    a.i('s_getreg_b32 s25, hwreg(HW_REG_XCC_ID)')
    a.i('s_and_b32 s25, s25, 7')
    a.i('v_lshrrev_b32 v1, 6, v0')
    a.i(f'v_readfirstlane_b32 s{sW}, v1')
    a.i(f's_mov_b32 s6, {WS_BYTES}')
    a.i('s_mov_b32 s7, 0x20000')
    a.i('s_mov_b32 s10, 0')
    a.i('s_mov_b32 s11, 0x20000')
    a.i('s_mov_b32 s14, 0')
    a.i('s_mov_b32 s15, 0x20000')
    a.i('s_mov_b32 s18, 256')
    a.i('s_mov_b32 s19, 0x20000')
    a.i('v_lshlrev_b32 v4, 3, v0')
    a.i('v_and_b32 v0, 63, v0')
    a.i('v_mov_b32 v2, 1')
    a.i('s_lshl_b32 s26, s25, 5')
    a.i('v_mov_b32 v3, s26')
    a.i('v_mov_b32 v5, 0')
    a.waitcnt(lg=0)
    a.i(f's_cmp_lg_u32 s{sW}, 0')
    a.i('s_cbranch_scc1 L_tick_done')
    a.i('s_mov_b64 exec, 1')
    a.i(f'buffer_atomic_add v2, v3, {DBG}, 0 offen sc0 sc1')
    a.i('ds_write_b32 v5, v2')
    a.i('s_mov_b64 exec, -1')
    a.label('L_tick_done')
    a.waitcnt(vm=0, lg=0)
    a.i('s_barrier')
    a.i('ds_read_b32 v2, v5')
    a.i('v_readfirstlane_b32 s27, v2')
    a.i('s_cmp_ge_u32 s27, 32')
    a.i('s_cbranch_scc1 L_exit')
    a.i(f's_add_u32 s{sGID}, s26, s27')
    a.i('s_barrier')
    a.i('s_getpc_b64 s[68:69]')
    a.out.append('L_pc:')
    a.i('s_mov_b32 s70, L_code_end-L_pc')
    a.i('s_mov_b32 s71, 0x20000')
    a.i('s_lshl_b32 s72, s27, 12')
    a.i(f's_lshl_b32 s28, s{sW}, 10')
    a.i('s_add_u32 s72, s72, s28')
    a.i('v_mov_b32 v6, 0')
    a.i('v_mov_b32 v7, 0')
    a.i(f's_lshl_b32 s28, s{sGID}, 11')
    a.i(f'buffer_store_dwordx2 v[6:7], v4, {WS}, s28 offen sc1')
    a.i(f's_and_b32 s{sL}, s25, 1')
    a.i('s_lshr_b32 s25, s25, 1')
    a.i(f's_mov_b32 s{sIDX}, s27')
    a.i('s_cmp_eq_u32 s25, 0')
    a.i(f's_cbranch_scc1 {roles["chain"]}')
    a.i('s_bitcmp1_b32 s27, 0')
    a.i('s_cbranch_scc1 L_disp_odd')
    a.i(f's_lshr_b32 s{sIDX}, s27, 1')
    a.i('s_cmp_eq_u32 s25, 1')
    a.i(f's_cbranch_scc1 {roles["oproj"]}')
    a.i('s_cmp_eq_u32 s25, 2')
    a.i(f's_cbranch_scc1 {roles["down"]}')
    a.i(f's_lshr_b32 s{sIDX}, s27, 2')
    a.i('s_bitcmp0_b32 s27, 1')
    a.i(f's_cbranch_scc1 {roles["atn"]}')
    a.i(f's_add_u32 s{sIDX}, s{sIDX}, 24')
    a.i(f's_branch {roles["proj"]}')
    a.label('L_disp_odd')
    a.i('s_lshl_b32 s28, s25, 3')
    a.i(f's_lshr_b32 s{sIDX}, s27, 2')
    a.i(f's_add_u32 s{sIDX}, s{sIDX}, s28')
    a.i(f's_sub_u32 s{sIDX}, s{sIDX}, 8')
    a.i('s_bitcmp1_b32 s27, 1')
    a.i(f's_cbranch_scc1 {roles["proj"]}')
    a.i(f's_branch {roles["up"]}')
    a.label('L_spare')
    arrive(a)
    a.label('L_exit')
    a.i('s_endpgm')
    a.label('L_abort')
    a.i('s_mov_b64 exec, 1')
    a.i(f's_lshl_b32 s28, s{sGID}, 8')
    a.i('s_or_b32 s29, s29, s28')
    a.i(f's_lshl_b32 s28, s{sW}, 16')
    a.i('s_or_b32 s29, s29, s28')
    a.i('s_or_b32 s29, s29, 0x40000000')
    a.i('v_mov_b32 v2, s29')
    a.i(f'buffer_store_dword v2, off, {DBG}, 0 offset:20 sc1')
    a.i('s_endpgm')


def arrive(a, v=2):
    l = a.new('L_arr')
    a.waitcnt(vm=0)
    a.i('s_barrier')
    a.i(f's_cmp_lg_u32 s{sW}, 0')
    a.i(f's_cbranch_scc1 {l}')
    a.i('s_mov_b64 exec, 1')
    a.i(f'v_mov_b32 v{v}, 1')
    a.i(f'buffer_atomic_add v{v}, off, {DBG}, 0 offset:16 sc1')
    a.i('s_mov_b64 exec, -1')
    a.label(l)


def spin_head(a, code):
    a.i(f's_mov_b32 s{sTO}, {TIMEOUT}')
    a.i(f's_mov_b32 s29, {code}')
    l = a.new('L_spin')
    a.label(l)
    a.i(f's_sub_u32 s{sTO}, s{sTO}, 1')
    a.i('s_cbranch_scc1 L_abort')
    return l


def code_touch(a, v):
    if os.environ.get('NOCT'):
        return
    a.i(f'v_mbcnt_lo_u32_b32 v{v}, -1, 0')
    a.i(f'v_mbcnt_hi_u32_b32 v{v}, -1, v{v}')
    a.i(f'v_lshlrev_b32 v{v}, 4, v{v}')
    a.i(f'buffer_load_dword v{v}, v{v}, s[68:71], s72 offen')
    a.waitcnt(vm=0)


def wait_init(a, v=2):
    code_touch(a, v)
    l = spin_head(a, 1)
    a.i('s_sleep 4')
    a.i(f'buffer_load_dword v{v}, off, {DBG}, 0 offset:16 sc1')
    a.i(f'v_cmp_gt_u32 vcc, 256, v{v}')
    a.i(f's_cbranch_vccnz {l}')


class DsAddr:
    def __init__(self, a, tmp):
        self.a, self.tmp, self.cur = a, tmp, None

    def __call__(self, reg, off):
        if off < 65536:
            return f'v{reg}', off
        hi = off & ~0x7fff
        if self.cur != (reg, hi):
            if self.cur and self.cur[0] == reg and 0 <= off - self.cur[1] < 65536:
                return f'v{self.tmp}', off - self.cur[1]
            self.a.i(f'v_add_u32 v{self.tmp}, {hi}, v{reg}')
            self.cur = (reg, hi)
        return f'v{self.tmp}', off - hi


def bits(a, dst, src, spec, tmp):
    first = True
    for s, m, d in spec:
        t = dst if first else tmp
        a.i(f'v_lshrrev_b32 v{t}, {s}, v{src}')
        a.i(f'v_and_b32 v{t}, {m}, v{t}')
        if first:
            if d:
                a.i(f'v_lshlrev_b32 v{t}, {d}, v{t}')
        else:
            a.i(f'v_lshl_or_b32 v{dst}, v{t}, {d}, v{dst}')
        first = False


SWZ = {
    ('p2', 'pair'): [(0, 7, 1)],
    ('p1', 'pair'): [(1, 3, 1)],
    ('p1', 'nat'): [(1, 1, 1), (3, 1, 2)],
    ('p2', 'nat'): [(0, 3, 1), (3, 1, 3)],
    'x': [(1, 7, 0)],
}


def dma_voff_pow2(a, dst, upr, gpitch, swz, t0, t1):
    lg = {8: 3, 16: 4}[upr]
    rpi = 64 // upr
    a.i(f'v_lshrrev_b32 v{t0}, {lg}, v0')
    a.i(f's_mul_i32 s28, s{sW}, {rpi}')
    a.i(f'v_add_u32 v{t0}, s28, v{t0}')
    bits(a, dst, t0, swz, t1)
    a.i(f'v_and_b32 v{t1}, {upr - 1}, v0')
    a.i(f'v_xor_b32 v{dst}, v{dst}, v{t1}')
    a.i(f'v_lshlrev_b32 v{dst}, 4, v{dst}')
    a.i(f'v_mul_u32_u24 v{t0}, {gpitch}, v{t0}')
    a.i(f'v_add_u32 v{dst}, v{dst}, v{t0}')


def dma_voff_72(a, dst9, swz, t0, t1, t2, upr=72, gpitch=1152):
    magic = {72: 911, 24: 2731}[upr]
    assert all((u * magic) >> 16 == u // upr for u in range(8 * upr))
    a.i(f's_lshl_b32 s28, s{sW}, 3')
    for n in range(upr // 8):
        d = dst9 + n
        a.i(f'v_add_u32 v{t2}, {64 * n}, v0')
        a.i(f'v_mul_u32_u24 v{t0}, {magic}, v{t2}')
        a.i(f'v_lshrrev_b32 v{t0}, 16, v{t0}')
        a.i(f'v_mul_u32_u24 v{t1}, {upr}, v{t0}')
        a.i(f'v_sub_u32 v{t2}, v{t2}, v{t1}')
        a.i(f'v_add_u32 v{t0}, s28, v{t0}')
        bits(a, d, t0, swz, t1)
        a.i(f'v_xor_b32 v{d}, v{d}, v{t2}')
        a.i(f'v_lshlrev_b32 v{d}, 4, v{d}')
        a.i(f'v_mul_u32_u24 v{t0}, {gpitch}, v{t0}')
        a.i(f'v_add_u32 v{d}, v{d}, v{t0}')


def dma(a, voff, srdn, s_lds, lds_off, s_src, src_off, mods='', tag=None):
    a.i(f's_add_u32 m0, s{s_lds}, {lds_off}')
    a.i(f's_add_u32 s28, s{s_src}, {src_off}')
    a.i(f'buffer_load_dwordx4 v{voff}, {srdn}, s28 offen{mods} lds', tag=tag)


def tr_addr(a, dst, pitch, korder, swz, unit_expr, sub_expr, t0, t1):
    if korder == 'pair':
        a.i(f'v_lshrrev_b32 v{t0}, 2, v0')
    else:
        bits(a, t0, 0, [(2, 3, 0), (4, 3, 3)], t1)
    bits(a, dst, t0, swz, t1)
    unit_expr(t1)
    a.i(f'v_xor_b32 v{dst}, v{dst}, v{t1}')
    a.i(f'v_lshlrev_b32 v{dst}, 4, v{dst}')
    a.i(f'v_mul_u32_u24 v{t0}, {pitch}, v{t0}')
    a.i(f'v_add_u32 v{dst}, v{dst}, v{t0}')
    if sub_expr:
        sub_expr(t1)
        a.i(f'v_add_u32 v{dst}, v{dst}, v{t1}')


def tr_frag(a, ds, dreg, areg, off, pitch, korder):
    half = (16 if korder == 'pair' else 4) * pitch
    for h in range(2):
        r, o = ds(areg, off + h * half)
        a.i(f'ds_read_b64_tr_b16 {R(dreg + 2 * h, 2)}, {r} offset:{o}')


import os
PROF = os.environ.get('PROF')


LITE = os.environ.get('LITE')


def stamp(a, on, k):
    if LITE:
        return
    if on and PROF:
        if k == 0:
            a.prof([int(x) for x in PROF.split(',')])
        return
    if on:
        a.i(f'{"s_memrealtime" if os.environ.get("RT") else "s_memtime"} s[{80 + 2 * k}:{81 + 2 * k}]')


def stamp_flush(a, on, n, sstep, v0):
    if not on or LITE:
        return
    if PROF:
        n = len(PROF.split(',')) + 1
        a.i(f's_memtime s[{80 + 2 * (n - 1)}:{81 + 2 * (n - 1)}]')
        a.pm = None
    a.waitcnt(lg=0)
    for k in range(n):
        a.i(f'v_mov_b32 v{v0 + k}, s{80 + 2 * k}')
    a.i(f's_lshl_b32 s28, s{sstep}, 8')
    a.i(f's_add_u32 s28, s28, s{sGID}')
    a.i('s_lshl_b32 s28, s28, 2')
    a.i(f's_add_u32 s28, s28, s{sW}')
    a.i('s_lshl_b32 s28, s28, 6')
    a.i(f's_add_u32 s28, s28, {STAMP + 65536}')
    a.i('s_mov_b64 exec, 1')
    for k in range(0, n, 4):
        a.i(f'buffer_store_dwordx4 {R(v0 + k, 4)}, off, {WS}, s28 offset:{4 * k}')
    a.i('s_mov_b64 exec, -1')


def rt_stamp(a, on, slot, v0=8):
    if not on:
        return
    l = a.new('L_rt')
    a.i(f's_cmp_lg_u32 s{sW}, 0')
    a.i(f's_cbranch_scc1 {l}')
    a.i('s_memrealtime s[76:77]')
    a.waitcnt(lg=0)
    a.i(f'v_mov_b32 v{v0}, s76')
    a.i(f's_lshl_b32 s28, s{sGID}, 6')
    a.i(f's_add_u32 s28, s28, {STAMP}')
    a.i('s_mov_b64 exec, 1')
    a.i(f'buffer_store_dword v{v0}, off, {WS}, s28 offset:{slot * 4}')
    a.i('s_mov_b64 exec, -1')
    a.label(l)


def sel_frag(a, dst, t0, t1, dual=False):
    a.i(f'v_and_b32 v{t0}, 1, v0')
    a.i(f'v_lshlrev_b32 v{t0}, 4, v{t0}')
    a.i(f'v_mov_b32 v{t1}, 0x3f80')
    a.i(f'v_lshlrev_b32 v{t1}, v{t0}, v{t1}')
    if dual:
        a.i(f'v_lshrrev_b32 v{t0}, 2, v0')
        a.i(f'v_xor_b32 v{t0}, v{t0}, v0')
        a.i(f'v_and_b32 v{t0}, 8, v{t0}')
        a.i(f'v_cmp_eq_u32 vcc, 0, v{t0}')
        a.i(f'v_cndmask_b32 v{t1}, 0, v{t1}, vcc')
    a.i(f'v_bfe_u32 v{t0}, v0, 1, 2')
    for k in range(4):
        a.i(f'v_cmp_eq_u32 vcc, {k}, v{t0}')
        a.i(f'v_cndmask_b32 v{dst + k}, 0, v{t1}, vcc')
```

```python
import math
from common import *
from chain import f2u

vLn, vPs, vP1, vR1, vR2, vT1, vT2, vTr, vL2, vFa, vFl, vT, vKm, vVm, vXb, vXq = range(16)
SEL = 16
sS, sTag, sPst, sRd, sRes, sYo, sFp, sFn, sIn, sSl, sW1k, sSp, sPre, sLb, sDx = range(30, 45)
TBO = 16384
INB = 32768


def kstage(a, W, nkb, karg, nbytes, sbase, ko):
    v9, at, tA = 24, 33, 37
    sw = SWZ['p1', ko]
    dma_voff_72(a, v9, sw, 40, 41, 42)
    a.i(f's_mul_i32 s62, s{sW}, 18')
    for i in range(4):
        def un(t, i=i):
            a.i(f'v_bfe_u32 v{t}, v0, 1, 1')
            a.i(f'v_add_u32 v{t}, s62, v{t}')
            if i:
                a.i(f'v_add_u32 v{t}, {2 * i}, v{t}')

        def sub(t):
            a.i(f'v_and_b32 v{t}, 1, v0')
            a.i(f'v_lshlrev_b32 v{t}, 3, v{t}')
        tr_addr(a, at + i, 1152, ko, sw, un, sub, 40, 41)
    ds = DsAddr(a, tA)
    a.i(f's_mul_i32 s60, s{sW}, 9216')
    srd(a, 8, karg, nbytes)
    chunks = [list(range(k, min(k + 2, nkb))) for k in range(0, nkb, 2)]

    def issue(c):
        for bi, kb in enumerate(chunks[c]):
            for n in range(9):
                dma(a, v9 + n, WT, 60, (BUF0, BUF1)[c & 1] + bi * 36864 + n * 1024, sbase, kb * 36864)
    issue(0)
    issue(1)
    for c in range(len(chunks)):
        a.waitcnt(vm=9 * len(chunks[c + 1]) if c + 1 < len(chunks) else 0)
        a.i('s_barrier')
        for bi, kb in enumerate(chunks[c]):
            for i in range(9):
                tr_frag(a, ds, W[(i, kb)], at + (i & 3), (BUF0, BUF1)[c & 1] + bi * 36864 + 128 * (i >> 2), 1152, ko)
        a.barrier()
        if c + 2 < len(chunks):
            issue(c + 2)


def kinit(a, grp):
    a.i(f's_lshl_b32 s{sW1k}, s{sW}, 10')
    a.i(f's_add_u32 s28, s{sL}, {grp}')
    a.i(f's_mul_i32 s{sSl}, s28, {2 * PRS_SLOT}')
    a.i(f's_add_u32 s{sSl}, s{sSl}, {PRS}')
    a.i(f's_mul_i32 s{sRd}, s{sIDX}, {UNIT}')
    a.i(f's_add_u32 s{sRd}, s{sRd}, s{sSl}')
    a.i('v_lshlrev_b32 v10, 4, v0')
    for k in range(4):
        a.i(f'v_mov_b32 v{16 + k}, 1')
    a.i(f's_mul_i32 s60, s{sW}, 9216')
    a.i(f's_add_u32 s60, s60, s{sRd}')
    for sl in range(2):
        for n in range(9):
            a.i(f's_add_u32 s28, s60, {sl * PRS_SLOT + n * 1024}')
            a.i(f'buffer_store_dwordx4 v[16:19], v10, {WS}, s28 offen')
    arrive(a)


def ksetup(a, bufbytes):
    t0, t1, t2 = 40, 41, 42
    sel_frag(a, SEL, t0, t1)
    a.i(f'v_lshrrev_b32 v{t0}, 4, v0')
    a.i(f'v_and_b32 v{t1}, 15, v0')
    a.i(f'v_mul_u32_u24 v{t2}, {2 * UNIT}, v{t0}')
    a.i(f'v_lshl_add_u32 v{vPs}, v{t1}, 3, v{t2}')
    a.i(f'v_lshl_add_u32 v{vP1}, v{t1}, 2, v{t2}')
    a.i(f's_mul_i32 s60, s{sW}, 576')
    a.i(f's_add_u32 s61, s60, {TBO}')
    bits(a, vT1, 0, [(0, 7, 3), (3, 1, 7), (4, 1, 2)], t2)
    a.i(f'v_add_u32 v{vT1}, s61, v{vT1}')
    bits(a, vT2, 0, [(0, 3, 4), (4, 1, 3)], t2)
    a.i(f'v_add_u32 v{vT2}, s61, v{vT2}')
    a.i(f'v_mul_u32_u24 v{t2}, 2304, v{t0}')
    a.i(f'v_lshl_add_u32 v{vR1}, v{t1}, 4, v{t2}')
    bits(a, t1, 0, [(2, 3, 2), (4, 3, 0)], t2)
    a.i(f'v_mul_u32_u24 v{vR2}, 2304, v{t1}')
    a.i(f'v_and_b32 v{t1}, 3, v0')
    a.i(f'v_lshl_add_u32 v{vR2}, v{t1}, 4, v{vR2}')
    a.i(f's_lshr_b32 s61, s{sW}, 1')
    a.i(f's_mul_i32 s62, s61, 2304')
    a.i(f's_add_u32 s62, s62, {TBO}')
    a.i(f'v_lshlrev_b32 v{vTr}, 5, v0')
    a.i(f'v_add_u32 v{vTr}, s62, v{vTr}')
    a.i(f'v_lshlrev_b32 v{vL2}, 1, v0')
    a.i(f's_mul_i32 s{sPst}, s{sIDX}, 2304')
    a.i(f's_mul_i32 s61, s61, 1152')
    a.i(f's_add_u32 s{sRes}, s{sPst}, s61')
    a.i(f's_add_u32 s{sPst}, s{sPst}, s60')
    a.i(f's_add_u32 s{sPst}, s{sPst}, s{sSl}')
    a.i(f's_add_u32 s{sRd}, s{sRd}, s60')
    a.i(f's_lshl_b32 s{sFp}, s{sIDX}, 11')
    a.i(f's_lshl_b32 s28, s{sW}, 9')
    a.i(f's_add_u32 s{sFp}, s{sFp}, s28')
    a.i(f's_add_u32 s28, s{sRd}, {PRS_SLOT}')
    a.i(f's_xor_b32 s{sSp}, s28, s{sRd}')
    a.i(f's_add_u32 s28, s{sPst}, {PRS_SLOT}')
    a.i(f's_xor_b32 s53, s28, s{sPst}')
    a.i(f's_bitcmp0_b32 s{sW}, 0')
    a.i(f's_cselect_b32 s{sEv}, -1, 0')
    a.i(f's_cselect_b32 s{sEv + 1}, 1.0, 0')
    a.i('s_mov_b64 s[56:57], 1')
    a.i(f's_add_u32 s28, s62, 2048')
    a.i(f'v_lshl_add_u32 v{vT}, v{vL2}, 1, s28')
    a.i(f's_lshl_b32 s28, s{sW}, 2')
    a.i(f's_add_u32 s28, s28, {VOTE}')
    a.i(f'v_mov_b32 v{vKm}, s28')
    a.i(f'v_mov_b32 v{vVm}, {VOTE}')
    a.i(f's_mov_b32 s{sDx}, {bufbytes}')
    a.i(f's_mov_b32 s{sS}, 0')
    a.i(f's_mov_b32 s{sPre}, 0')
    a.i('s_mov_b64 s[54:55], 0')
    a.i(f'v_lshlrev_b32 v{vLn}, 4, v0')


X, ACC, PK, L, F3, T, RS = 20, 92, 108, 128, 164, 176, 180
sTr, sEv = 51, 58
KFL = int(os.environ.get('KFL', 6))
KRM = int(os.environ.get('KRM', 3))
VOTE = TBO + 6144
KST = os.environ.get('KST')


def kst(a, k):
    if KST:
        a._emit(Ins(f's_memtime s[{80 + 2 * k}:{81 + 2 * k}]'))


vF2 = 185


def rs_ld(n):
    if n == 8:
        return f'buffer_load_dwordx4 {R(L + 32, 4)}, v{vR2}, {WS}, s{sRd} offen offset:512 sc1'
    x, G = n & 3, n >> 2
    return f'buffer_load_dwordx4 {R(L + 4 * n, 4)}, v{vR1}, {WS}, s{63 + x if x else sRd} offen offset:{256 * G} sc1'


def rs_load(a, n):
    a.i(rs_ld(n))


RD_ADV = [f's_xor_b32 s{sRd}, s{sRd}, s{sSp}'] + [f's_add_u32 s{63 + x}, s{sRd}, {x * 9216}' for x in (1, 2, 3)]


def rs_group(a, code, ns, reload):
    lr, lc = a.new('L_rsr'), a.new('L_rsc')
    a.tail += [lr + ':', f'    s_mov_b32 s29, {code}', f'    s_sub_u32 s{sTO}, s{sTO}, 1', '    s_cbranch_scc1 L_abort', '    s_nop 7']
    a.tail += ['    ' + rs_ld(n) for n in reload] + ['    s_waitcnt vmcnt(0)', f'    s_branch {lc}']
    pm, a.pm = getattr(a, 'pm', None), None
    a.out.append(lc + ':')
    words = []
    for n in ns:
        words += [L + 4 * n, L + 4 * n + 2] if n < 8 else [L + 32 + x for x in range(4)]
    chk = [f'v_bitop3_b32 v{T + x}, v{words[2 * x]}, v{words[2 * x + 1]}, s{sTr} bitop3:0x7e' for x in range(len(words) // 2)]
    if len(chk) == 6:
        chk = chk[:4] + [f'v_or3_b32 v{T + 1}, v{T + 1}, v{T + 2}, v{T + 3}'] + \
              [c.replace(f'v{T + 4},', f'v{T + 2},').replace(f'v{T + 5},', f'v{T + 3},') for c in chk[4:]]
    if len(chk) >= 4:
        chk.append(f'v_or3_b32 v{T + 1}, v{T + 1}, v{T + 2}, v{T + 3}')
    chk += [f'v_bitop3_b32 v{T}, v{T}, v{T + 1}, 1 bitop3:0xa8', f'v_cmp_ne_u32 vcc, 0, v{T}']
    a.prewait_regs(L + 4 * ns[-1])
    for n in ns:
        acc = F3 + 4 * (n >> 2)
        a.mfma(acc, SEL, L + 4 * n, None if n % 4 == 0 else acc)
        a.fill(chk)
    for p in chk:
        a.i(p)
    a.i(f's_cbranch_vccnz {lr}', nohaz=True)
    a.pm = pm


def t_wr(G):
    if G < 2:
        return [f'ds_write_b32 v{vT1}, v{F3 + 4 * G + r} offset:{256 * G + (r & 1) * 2304 + (r >> 1) * 64}' for r in range(4)]
    return [f'v_add_f32_dpp v{F3 + 8 + k}, v{F3 + 8 + k}, v{F3 + 8 + k} row_ror:{d} row_mask:0xf bank_mask:0xf'
            for d in (4, 8) for k in range(4)] + \
           [f'ds_write_b32 v{vT2}, v{F3 + 8 + r} offset:{512 + (r & 1) * 2304 + (r >> 1) * 4}' for r in range(4)]


def reduce_phase(a, code, fetch):
    kst(a, 5)
    rs_group(a, code, [0, 1, 2, 3], [0, 1, 2, 3])
    kst(a, 6)
    a.waitcnt(vm=4)
    for n in range(4, 8):
        rs_load(a, n)
    for p in t_wr(0):
        a.i(p)
    a.waitcnt(vm=4)
    kst(a, 7)
    rs_load(a, 8)
    fetch()
    kst(a, 8)
    rs_group(a, code, [4, 5, 6, 7], [4, 5, 6, 7, 8])
    kst(a, 9)
    rs_group(a, code, [8], [8])
    for p in t_wr(1) + t_wr(2):
        a.i(p)


def ln_stream(out_srd, pk=False):
    F, PKD = globals()['L'] + 26, globals()['L'] + 16
    s1, q1, s2, q2 = T, T + 1, T + 2, T + 3
    P = lambda r: R(r, 2)
    L = globals()['L'] + 16
    o = [f'ds_read_b128 {R(F, 4)}, v{vTr}', f'ds_read_b128 {R(F + 4, 4)}, v{vTr} offset:16', f'ds_read_b32 v{F + 8}, v{vT}']
    for k in range(4):
        o += [f'v_lshlrev_b32 v{L + 2 * k}, 16, v{RS + k}', f'v_and_b32 v{L + 2 * k + 1}, 0xffff0000, v{RS + k}']
    o += [f'v_lshlrev_b32 v{L + 8}, 16, v{RS + 4}']
    if pk:
        o += [f'v_pk_add_f32 {P(F + k)}, {P(F + k)}, {P(L + k)}' for k in (0, 2, 4, 6)] + [f'v_add_f32 v{F + 8}, v{F + 8}, v{L + 8}']
        o += [f'v_pk_add_f32 {P(L)}, {P(F)}, {P(F + 2)}', f'v_pk_add_f32 {P(L + 2)}, {P(F + 4)}, {P(F + 6)}',
              f'v_pk_mul_f32 {P(L + 4)}, {P(F)}, {P(F)}', f'v_pk_add_f32 {P(L)}, {P(L)}, {P(L + 2)}']
        o += [f'v_pk_fma_f32 {P(L + 4)}, {P(F + k)}, {P(F + k)}, {P(L + 4)}' for k in (2, 4, 6)]
        o += [f'v_add_f32 v{s1}, v{L}, v{L + 1}', f'v_fma_f32 v{q1}, v{F + 8}, v{F + 8}, v{L + 4}',
              f'v_add_f32 v{s1}, v{s1}, v{F + 8}', f'v_add_f32 v{q1}, v{q1}, v{L + 5}']
    else:
        o += [f'v_add_f32 v{F + k}, v{F + k}, v{L + k}' for k in range(9)]
        o += [f'v_add_f32 v{s1}, v{F}, v{F + 1}', f'v_mul_f32 v{q1}, v{F}, v{F}', f'v_fmac_f32 v{q1}, v{F + 1}, v{F + 1}']
        for k in range(2, 9):
            o += [f'v_add_f32 v{s1}, v{s1}, v{F + k}', f'v_fmac_f32 v{q1}, v{F + k}, v{F + k}']
    for m in ('quad_perm:[1,0,3,2]', 'quad_perm:[2,3,0,1]', 'row_half_mirror', 'row_mirror'):
        o += [f'v_add_f32_dpp v{r}, v{r}, v{r} {m} row_mask:0xf bank_mask:0xf' for r in (s1, q1)]
    o += [f'v_mov_b32 v{q2}, {hex(f2u(1e-5))}', f'v_permlane16_swap_b32 v{s1}, v{q1}', f'v_add_f32 v{s1}, v{s1}, v{q1}',
          f'v_mov_b32 v{s2}, v{s1}', f's_add_u32 s{sRes}, s{sRes}, {UNIT}', f'v_permlane32_swap_b32 v{s1}, v{s2}',
          f'v_add_f32 v{s1}, v{s1}, v{s2}', f'v_mul_f32 v{s1}, {hex(f2u(1 / 576))}, v{s1}',
          f'v_readlane_b32 s60, v{s1}, 0', f'v_readlane_b32 s28, v{s1}, 16', 's_mov_b64 s[54:55], s[56:57]',
          f'v_add_f32 v{q2}, s28, v{q2}', f'v_fma_f32 v{q2}, -v{s1}, s60, v{q2}']
    o += [f'v_rsq_f32 v{q2}, v{q2}', f's_andn2_b32 s60, s60, s{sEv}', f'v_readlane_b32 s28, v{q2}, 0',
          f's_andn2_b32 s28, s28, s{sEv}', f's_or_b32 s28, s28, s{sEv + 1}', f'v_mov_b32 v{s2}, s28', f'v_mul_f32 v{q2}, s60, v{s2}']
    if pk:
        o += [f'v_pk_fma_f32 {P(F + k)}, {P(F + k)}, {P(s2)}, {P(s2)} op_sel:[0,0,1] op_sel_hi:[1,0,1] neg_lo:[0,0,1] neg_hi:[0,0,1]'
              for k in (0, 2, 4, 6)] + [f'v_fma_f32 v{F + 8}, v{F + 8}, v{s2}, -v{q2}']
    else:
        o += [f'v_fma_f32 v{F + k}, v{F + k}, v{s2}, -v{q2}' for k in range(9)]
    o += [f'v_cvt_pk_bf16_f32 v{PKD + k}, v{F + 2 * k}, v{F + 2 * k + 1}' for k in range(4)] + [f'v_cvt_pk_bf16_f32 v{PKD + 4}, v{F + 8}, 0']
    o += [f'buffer_store_dwordx4 {R(PKD, 4)}, v{vLn}, {out_srd}, s{sYo} offen sc1',
          f'buffer_store_short v{PKD + 4}, v{vL2}, {out_srd}, s{sYo} offen offset:1024 sc1',
          f's_add_u32 s{sYo}, s{sYo}, {UNIT}']
    return o


def klate(a):
    a.i('s_mov_b64 exec, s[54:55]')
    a.i(f'buffer_store_dword v{vTr}, off, {WS}, s{sFp} sc1')
    a.vm.pop()
    a.i('s_mov_b64 exec, -1')
    a.i('s_lshl_b32 s28, s54, 2')
    a.i(f's_add_u32 s{sFp}, s{sFp}, s28')
    a.i('s_mov_b64 s[54:55], 0')


def kgemm(a, W, nkb, side, stream):
    def xreg(n):
        return X + 4 * ((n & 1) * nkb + (n >> 1))

    def xr(n):
        a.i(f'ds_read_b128 {R(xreg(n), 4)}, v{vXb} offset:{((n & 1) * nkb + (n >> 1)) * 1024}')
    a.batch = 1
    for n in range(8):
        xr(n)
    so = [sPst, 61, 62, 63]
    pend = []
    low = [f's_lshr_b32 s{sTag}, s{sS}, 1'] + [f's_add_u32 s{60 + q}, s{sPst}, {(8 * (q >> 1) + (q & 1)) * UNIT}' for q in range(1, 4)]
    k = 0
    for i in range(10):
        acc = ACC + 8 * (i & 1)
        if i < 9:
            for kb in range(nkb):
                for rt in range(2):
                    a.mfma(acc + 4 * rt, X + 4 * (rt * nkb + kb), W[(i, kb)], None if kb == 0 else acc + 4 * rt)
                    if k + 8 < 2 * nkb:
                        xr(k + 8)
                    if k + 1 < 2 * nkb:
                        a.prewait_regs(xreg(k + 1))
                    elif k + 1 == 2 * nkb:
                        a.batch = 0
                    for f in side.get(k, []):
                        if f == 'flush':
                            while low:
                                a.fill(low, 99)
                        else:
                            f()
                    while kb >= 2 and pend and a.gap < (2 if i == 8 else 1):
                        p = pend.pop(0)
                        if p:
                            a.i(p)
                        elif i < 8:
                            break
                    low += stream.get(k, [])
                    a.fill(low, KRM if k > 4 * nkb else 2)
                    k += 1
        if i == 9:
            a.fill(low, 999)
        for p in pend:
            if p:
                a.i(p)
        pend = []
        if i == 9:
            break
        if i == 8:
            for q in range(4):
                r = PK + 16 + q
                pend += [f'v_cvt_pk_bf16_f32 v{r}, v{acc + 2 * q}, v{acc + 2 * q + 1}', f'v_bfi_b32 v{r}, 1, s{sTag}, v{r}',
                         f'buffer_store_dword v{r}, v{vP1}, {WS}, s{so[q]} offen offset:512']
        else:
            d = i & 1
            for q in range(4):
                r = PK + 8 * ((i >> 1) & 1) + 2 * q
                pend.append(f'v_cvt_pk_bf16_f32 v{r + d}, v{acc + 2 * q}, v{acc + 2 * q + 1}')
                if d == 0:
                    pend.append(f'v_bfi_b32 v{r}, 1, s{sTag}, v{r}')
                else:
                    pend.append(f'buffer_store_dwordx2 {R(r, 2)}, v{vPs}, {WS}, s{so[q]} offen offset:{128 * (i >> 1)}')
                    pend.append(None)
    a.i(f's_mov_b32 s{sTr}, s{sTag}')
    a.i(f's_xor_b32 s{sPst}, s{sPst}, s53')


def res_load(a, srdn):
    a.i(f'buffer_load_dwordx4 {R(RS, 4)}, v{vLn}, {srdn}, s{sRes} offen sc1')
    a.i(f'buffer_load_ushort v{RS + 4}, v{vL2}, {srdn}, s{sRes} offen offset:1024 sc1')


def poll(a, off=0, dst=vFl):
    a.i(f'buffer_load_dword v{dst}, v{vFa}, {WS}, s{sFn} offen offset:{off} sc1')


def in_dma(n, srdn, sLb=sLb):
    o = [f's_mov_b32 m0, s{sLb}']
    o += [f'buffer_load_dwordx4 v{vLn}, {srdn}, s{sIn} offen offset:{k * 1024} sc1 lds' for k in range(4)]
    if n == 5:
        o += [f's_add_u32 m0, s{sLb}, 4096', f'buffer_load_dwordx4 v{vXq}, {srdn}, s{sIn} offen sc1 lds']
    return o


def krole(a, nm, stamps):
    dn = nm == 'down'
    nkb = 9 if dn else 8
    P = f'L_{nm}'
    a.label(P)
    rt_stamp(a, stamps, 0)
    kinit(a, 2 if dn else 0)
    W = {}
    for i in range(9):
        for kb in range(nkb):
            W[(i, kb)] = 512 - 36 * nkb + 4 * len(W)
    a.i(f's_mul_i32 s61, s{sIDX}, {32 * nkb * 1152}')
    kstage(a, W, nkb, K_WD if dn else K_WO, 16 * 32 * nkb * 1152, 61, 'nat' if dn else 'pair')
    nfl = 6 if dn else 2
    a.i(f'v_min_u32 v{vFa}, {nfl - 1}, v0')
    a.i(f'v_lshlrev_b32 v{vFa}, 9, v{vFa}')
    BB = 2 * nkb * 1024
    IU, IB, FI = (H_UNIT, HB, F_H) if dn else (O_UNIT, OB, F_O)
    ksetup(a, BB)
    a.i(f'v_add_u32 v{vXq}, 4096, v{vLn}')
    srd(a, 8, K_WS, 0)
    for p in RD_ADV[1:]:
        a.i(p)
    a.i(f'v_add_u32 v{vXb}, {INB}, v{vLn}')
    a.i(f's_mul_i32 s60, s{sL}, {64 * UNIT}')
    a.i(f's_lshl_b32 s61, s{sL}, 8')
    if dn:
        srd(a, 12, K_OUT, 2048 * 1152)
        a.i(f's_bitcmp1_b32 s{sW}, 0')
        a.i(f's_cselect_b32 s{sYo}, {OOB}, s{sRes}')
        a.i('s_mov_b64 s[56:57], 0')
        a.i(f's_cmp_eq_u32 s{sL}, 1')
        a.i(f's_cbranch_scc1 {P}_o')
        srd(a, 12, K_WS, WS_BYTES)
        a.i('s_mov_b64 s[56:57], 1')
        a.i(f's_mov_b32 s{sYo}, s{sRes}')
        a.i(f's_bitcmp1_b32 s{sW}, 0')
        a.i(f's_mov_b32 s28, {X2}')
        a.i(f's_cselect_b32 s28, {NA + 64 * UNIT}, s28')
        a.i(f's_add_u32 s{sYo}, s{sYo}, s28')
        a.label(f'{P}_o')
        a.i(f's_add_u32 s{sRes}, s{sRes}, s60')
        a.i(f's_add_u32 s{sRes}, s{sRes}, {YB}')
        a.i(f's_add_u32 s{sFp}, s{sFp}, {F_NA + 256}')
        res_srd, out_srd = WS, IO
    else:
        a.i(f's_add_u32 s{sYo}, s60, s{sRes}')
        a.i(f's_bitcmp1_b32 s{sW}, 0')
        a.i(f's_mov_b32 s28, {YB}')
        a.i(f's_cselect_b32 s28, {NB}, s28')
        a.i(f's_add_u32 s{sYo}, s{sYo}, s28')
        a.i(f's_add_u32 s{sFp}, s{sFp}, s61')
        a.i(f's_add_u32 s{sFp}, s{sFp}, {F_NB}')
        srd(a, 12, K_X, 2048 * 1152)
        a.i(f's_cmp_eq_u32 s{sL}, 0')
        a.i(f's_cbranch_scc1 {P}_o')
        srd(a, 12, K_WS, WS_BYTES)
        a.i(f's_add_u32 s{sRes}, s{sRes}, {X2}')
        a.label(f'{P}_o')
        res_srd, out_srd = IO, WS
    a.i(f's_mul_i32 s{sFn}, s{sIDX}, {nfl * 512}')
    a.i(f's_add_u32 s{sFn}, s{sFn}, s61')
    a.i(f's_add_u32 s{sFn}, s{sFn}, {FI}')
    a.i(f's_mul_i32 s{sIn}, s{sL}, {64 * IU}')
    a.i(f's_mul_i32 s28, s{sIDX}, {nkb * 1024}')
    a.i(f's_add_u32 s{sIn}, s{sIn}, s28')
    a.i(f's_add_u32 s{sIn}, s{sIn}, {IB}')
    nd = nkb - 4
    a.i(f's_lshr_b32 s28, s{sW}, 1')
    a.i(f's_mul_i32 s{sLb}, s28, {nkb * 1024}')
    a.i(f's_mul_i32 s28, s28, {IU // 2}')
    a.i(f's_add_u32 s{sIn}, s{sIn}, s28')
    a.i(f's_and_b32 s28, s{sW}, 1')
    a.i('s_lshl_b32 s28, s28, 12')
    a.i(f's_add_u32 s{sLb}, s{sLb}, s28')
    a.i(f's_add_u32 s{sLb}, s{sLb}, {INB}')
    a.i(f's_add_u32 s{sIn}, s{sIn}, s28')
    wait_init(a, 40)
    rt_stamp(a, stamps, 1, 40)
    code = 10 if dn else 12

    def decide():
        a.i(f'v_cmp_eq_u32 vcc, 0, v{vFl}')
        a.i('s_cmp_eq_u64 vcc, 0')
        a.i(f's_cselect_b32 s10, s47, 0')

    def body(carry):
        n1, n8 = 2 * nkb, 2 * nkb * 8
        kD = n8 - 34
        side = {kD - 34: [lambda: poll(a)], kD: [decide]}
        stream = {1: [f's_add_u32 s{sIn}, s{sIn}, {IU}', f's_add_u32 s{sLb}, s{sLb}, s{sDx}', f's_add_u32 s{sFn}, s{sFn}, 4',
                      f's_mov_b32 s{sTO}, {TIMEOUT}',
                      lambda: (a.i(f's_cmp_eq_u32 s{sS}, 63'), a.i(f's_cselect_b32 s47, 0, s6'))]}
        if carry:
            for n in range(9):
                side[2 + 3 * n] = [lambda n=n: rs_load(a, n)]
            side[24] = ['flush', lambda: rs_group(a, code, [0, 1, 2, 3], [0, 1, 2, 3])]
            stream[28] = t_wr(0)
            side[2 * n1 + 3] = [lambda: rs_group(a, code, [4, 5, 6, 7, 8], [4, 5, 6, 7, 8])]
            stream[2 * n1 + 5] = t_wr(1) + t_wr(2)
            side[2 * n1 + 13] = ['flush', lambda: a.barrier()]
            stream[2 * n1 + 14] = ln_stream(out_srd) + [lambda: a.join_vm_tag('n')] + RD_ADV
            side[kD - 1] = ['flush']
            side[n8 - KFL] = [lambda: (a.wait_tag('n'), klate(a))]
        k = kD + 2
        for p in in_dma(nd, WT, sLb):
            side.setdefault(k - (1 if p.startswith('s_') else 0), []).append(lambda p=p: a.i(p, tag='x'))
            k += 0 if p.startswith('s_') else 3
        side.setdefault(k, []).append(lambda: res_load(a, res_srd))
        kgemm(a, W, nkb, side, stream)

    def block():
        l = spin_head(a, 9 if dn else 11)
        poll(a)
        a.i(f'v_cmp_eq_u32 vcc, 0, v{vFl}')
        a.i(f's_cbranch_vccnz {l}', nohaz=True)
        for p in in_dma(nd, WS):
            a.i(p)
        a.waitcnt(vm=0)
    block()
    a.i('s_barrier')
    body(False)
    a.i(f's_branch {P}_end')
    vm = list(a.vm)
    a.label(f'{P}_carry')
    a.vm = [({('v', r) for r in range(RS, RS + 5)}, set())]
    a.i('s_barrier')
    stamp(a, stamps, 0)
    body(True)
    a.vm = vm
    a.out.append(f'{P}_end:')
    stamp(a, stamps, 1)
    a.i(f'v_add_u32 v{vXb}, s{sDx}, v{vXb}')
    a.i(f's_sub_u32 s{sDx}, 0, s{sDx}')
    a.wait_tag('x')
    for k in (2, 3):
        if stamps and not PROF:
            a.i(f's_mov_b32 s{80 + 2 * k}, 0')
    stamp_flush(a, stamps, 4, sS, ACC)
    a.i(f's_add_u32 s{sS}, s{sS}, 1')
    a.i('s_cmp_lg_u32 s10, 0')
    a.i(f's_cbranch_scc1 {P}_carry', nohaz=True)
    a.i(f's_cmp_eq_u32 s{sS}, 64')
    a.i(f's_cbranch_scc1 {P}_last', nohaz=True)
    block()
    a.i(f's_branch {P}_carry', nohaz=True)
    a.label(f'{P}_last')
    a.i('s_barrier')
    a.vm = []
    for n in range(4):
        rs_load(a, n)
    rs_group(a, code, [0, 1, 2, 3], [0, 1, 2, 3])
    for n in range(4, 9):
        rs_load(a, n)
    for p in t_wr(0):
        a.i(p)
    rs_group(a, code, [4, 5, 6, 7, 8], [4, 5, 6, 7, 8])
    for p in t_wr(1) + t_wr(2):
        a.i(p)
    a.barrier()
    for p in ln_stream(out_srd, pk=True):
        a.i(p)
    a.waitcnt(vm=0)
    klate(a)
    rt_stamp(a, stamps, 2, 40)
    a.i('s_endpgm')
    a.out += a.tail
    a.tail = []


def down(a, stamps=False):
    krole(a, 'down', stamps)


def oproj(a, stamps=False):
    krole(a, 'oproj', stamps)


def atn(a, stamps=False):
    from nsplit import ln_init
    a.label('L_atn')
    rt_stamp(a, stamps, 0)
    arrive(a)
    ln_init(a, 24)
    MC, MM = 16, 20
    sH, sC, sKm, sOo = 45, 47, 48, 51
    a.i(f's_lshl_b32 s{sH}, s{sIDX}, 2')
    a.i(f's_add_u32 s{sH}, s{sH}, s{sW}')
    a.i(f's_mov_b32 s{sC}, {hex(f2u(128 ** -0.5 * math.log2(math.e)))}')
    a.i('v_and_b32 v40, 15, v0')
    a.i('v_lshrrev_b32 v41, 4, v0')
    a.i('v_lshlrev_b32 v41, 2, v41')
    a.i('v_mov_b32 v42, 0xff800000')
    for r in range(4):
        a.i(f'v_add_u32 v43, {r}, v41')
        a.i('v_cmp_gt_u32 vcc, v43, v40')
        a.i(f'v_cndmask_b32 v{MC + r}, 0, v42, vcc')
    a.i('v_cmp_lt_u32 vcc, 31, v0')
    for r in range(4):
        a.i(f'v_cndmask_b32 v{MM + r}, 0, v42, vcc')
    bits(a, vFa, 0, [(0, 3, 9), (2, 1, 16)], 40)
    a.i(f's_lshl_b32 s28, s{sH}, 11')
    a.i(f's_add_u32 s28, s28, {F_Q + 4}')
    a.i(f'v_add_u32 v{vFa}, s28, v{vFa}')
    a.i(f's_lshl_b32 s{sFp}, s{sH}, 9')
    a.i(f's_add_u32 s28, s{sFp}, {F_KVM}')
    a.i('v_mov_b32 v40, s28')
    a.i(f'v_cndmask_b32 v{vFa}, v{vFa}, v40, vcc')
    bits(a, vKm, 0, [(0, 7, 4), (4, 3, 7)], 40)
    bits(a, vVm, 0, [(0, 31, 4)], 40)
    a.i(f'v_lshlrev_b32 v{vLn}, 4, v0')
    a.i(f's_lshl_b32 s{sFn}, s{sL}, 8')
    a.i(f's_add_u32 s{sFp}, s{sFp}, s{sFn}')
    a.i(f's_add_u32 s{sFp}, s{sFp}, {F_O - 4}')
    a.i('s_mov_b64 s[54:55], 0')
    a.i(f'v_subrev_u32 v{vT}, 4, v{vFa}')
    a.i(f's_mul_i32 s{sIn}, s{sL}, {64 * QKV_UNIT}')
    a.i(f's_mul_i32 s28, s{sH}, 24576')
    a.i(f's_add_u32 s{sIn}, s{sIn}, s28')
    a.i(f's_add_u32 s{sIn}, s{sIn}, {QKV}')
    a.i(f's_mul_i32 s{sKm}, s{sL}, {64 * KVM_UNIT}')
    a.i(f's_lshl_b32 s28, s{sH}, 12')
    a.i(f's_add_u32 s{sKm}, s{sKm}, s28')
    a.i(f's_add_u32 s{sKm}, s{sKm}, {KVM}')
    a.i(f's_mul_i32 s{sOo}, s{sL}, {64 * O_UNIT}')
    a.i(f's_add_u32 s{sOo}, s{sOo}, s28')
    a.i(f's_add_u32 s{sOo}, s{sOo}, {OB}')
    a.i(f's_mov_b32 s{sS}, 0')
    OX, KM, VM, S, P, M = 120, 184, 200, 216, 228, 240
    mx, lx, t0, t1, al = M, M + 2, M + 4, M + 6, M + 8
    PM = S + 8
    a.i(f'v_mov_b32 v{P + 2}, 0')
    a.i(f'v_mov_b32 v{P + 3}, 0')
    srd(a, 8, K_WS, 0)
    rt_stamp(a, stamps, 1, 40)

    def lds(base, srdn):
        return [f'buffer_load_dwordx4 {R(base + 4 * n, 4)}, v{vLn}, {srdn}, s{60 + (n >> 2)} offen offset:{(n & 3) * 1024} sc1'
                for n in range(24)]
    PTR = [f's_add_u32 s{60 + k}, s{sIn}, {4096 * k}' for k in range(6)]

    def xl(op, r, t):
        out = []
        for sw in (16, 32):
            out += [f'v_mov_b32 v{t}, v{r}', f'v_permlane{sw}_swap_b32 v{r}, v{t}', f'{op} v{r}, v{r}, v{t}']
        return out

    def zipb(fn):
        return [x for ins in zip(fn(0), fn(1)) for x in ins]

    def block(base, code, addr):
        l = spin_head(a, code)
        a.i(f'buffer_load_dword v{vFl}, v{addr}, {WS}, s{sFn} offen sc1')
        a.i(f'v_cmp_eq_u32 vcc, 0, v{vFl}')
        a.i('s_cmp_lg_u32 vcc_lo, 0')
        a.i(f's_cbranch_scc1 {l}', nohaz=True)
        for p in lds(base, WS):
            a.i(p)
        a.waitcnt(vm=0)

    def unit(cur, nxt, tag, other):
        Q, K, V = cur, cur + 32, cur + 64
        a.label(f'L_atn_{tag}')
        a.vm = []
        stamp(a, stamps, 0)
        a.i(f'v_cmp_eq_u32 s[52:53], 0, v{vFl}')
        a.i(f's_add_u32 s{sIn}, s{sIn}, {QKV_UNIT}')
        for p in PTR:
            a.i(p)
        a.i('s_cmp_eq_u32 s52, 0')
        a.i('s_cselect_b32 s10, s6, 0')
        a.i(f's_cmp_eq_u32 s{sS}, 63')
        a.i('s_cselect_b32 s10, 0, s10')
        bulk = lds(nxt, WT)
        kvm = [f'buffer_load_dwordx4 {R(KM + 4 * kb, 4)}, v{vKm}, {WS}, s{sKm} offen offset:{kb * 512} sc1' for kb in range(4)] + \
              [f'buffer_load_dwordx4 {R(VM + 4 * kb, 4)}, v{vVm}, {WS}, s{sKm} offen offset:{2048 + kb * 512} sc1' for kb in range(4)]
        a.i('s_cmp_lg_u32 s53, 0')
        a.i(f's_cbranch_scc1 L_atn_{tag}a', nohaz=True)
        for p in kvm:
            a.i(p)
        a.out.append(f'L_atn_{tag}a:')
        a.vm = [(set(), {'n'})] + [({('v', r) for r in range(cur + 4 * n, cur + 4 * n + 4)}, set()) for n in range(20, 24)]

        def flag():
            a.wait_tag('n')
            a.i('s_mov_b64 exec, s[54:55]')
            a.i(f'buffer_store_dword v{vFa}, off, {WS}, s{sFp} sc1')
            a.vm.pop()
            a.i('s_mov_b64 exec, -1')
            a.i(f's_add_u32 s{sFp}, s{sFp}, 4')

        def run(ins, every):
            for ix, p in enumerate(ins):
                p() if callable(p) else a.i(p)
                if ix % every == every - 1 and bulk:
                    a.i(bulk.pop(0))
        x = []
        for kb in range(4):
            x += [lambda kb=kb: a.mfma(S, K + 8 * kb, Q + 8 * kb, MC if kb == 0 else S),
                  lambda kb=kb: a.mfma(S + 4, K + 8 * kb, Q + 8 * kb + 4, None if kb == 0 else S + 4),
                  lambda kb=kb: a.mfma(S + 8, K + 8 * kb + 4, Q + 8 * kb + 4, MC if kb == 0 else S + 8)]
        run(x, 4)
        x = [f'v_max3_f32 v{mx}, v{S}, v{S + 1}, v{S + 2}', f'v_max3_f32 v{mx + 1}, v{S + 4}, v{S + 5}, v{S + 6}',
             f'v_max_f32 v{mx}, v{S + 3}, v{mx}', f'v_max3_f32 v{mx + 1}, v{S + 7}, v{S + 8}, v{mx + 1}',
             f'v_max3_f32 v{mx + 1}, v{S + 9}, v{S + 10}, v{mx + 1}', f'v_max_f32 v{mx + 1}, v{S + 11}, v{mx + 1}']
        x += zipb(lambda q: xl('v_max_f32', mx + q, t1 + q) + [f'v_mul_f32 v{mx + q}, s{sC}, v{mx + q}'])
        x += [f'v_fma_f32 v{S + k}, v{S + k}, s{sC}, -v{mx + (k >= 4)}' for k in range(12)]
        x += [f'v_exp_f32 v{S + k}, v{S + k}' for k in range(12)]
        x += [f'v_cvt_pk_bf16_f32 v{P + k + (2 if k >= 2 else 0)}, v{S + 2 * k}, v{S + 2 * k + 1}' for k in range(6)]
        run(x, 16)
        flag()
        adds = [f'v_add_f32 v{lx}, v{S}, v{S + 1}', f'v_add_f32 v{lx + 1}, v{S + 4}, v{S + 5}']
        adds += [f'v_add_f32 v{lx}, v{lx}, v{S + k}' for k in (2, 3)] + [f'v_add_f32 v{lx + 1}, v{lx + 1}, v{S + k}' for k in range(6, 12)]
        x = []
        for d in range(8):
            for q in range(2):
                x.append(lambda d=d, q=q: a.mfma(OX + 32 * q + 4 * d, V + 4 * d, P + 4 * q, None))
                if adds:
                    x.append(adds.pop(0))
        run(x, 8)
        stamp(a, stamps, 1)
        nb = 6
        a.i('s_cmp_eq_u32 s53, 0')
        a.i(f's_cbranch_scc1 L_atn_{tag}b', nohaz=True)
        l = spin_head(a, 14)
        poll(a)
        a.i(f'v_cmp_eq_u32 vcc, 0, v{vFl}')
        a.i('s_cmp_lg_u32 vcc_hi, 0')
        a.i(f's_cbranch_scc1 {l}', nohaz=True)
        for p in kvm:
            a.i(p)
        a.out.append(f'L_atn_{tag}b:')
        for _ in range(nb):
            a.i(bulk.pop(0))
        a.i(f's_add_u32 s{sKm}, s{sKm}, {KVM_UNIT}')
        a.i(f's_add_u32 s66, s{sOo}, {O_UNIT // 2}')
        stamp(a, stamps, 2)
        for kb in range(4):
            for q in range(2):
                a.mfma(S + 4 * q, KM + 4 * kb, Q + 8 * kb + 4 * q, MM if kb == 0 else S + 4 * q)
        stamp(a, stamps, 3)

        def post(q):
            s, m, t, A = S + 4 * q, t0 + q, t1 + q, al + 2 * q
            return ([f'v_max3_f32 v{m}, v{s}, v{s + 1}, v{s + 2}', f'v_max_f32 v{m}, v{s + 3}, v{m}'] + xl('v_max_f32', m, t)
                    + [f'v_mul_f32 v{m}, s{sC}, v{m}', f'v_max_f32 v{m}, v{m}, v{mx + q}', f'v_sub_f32 v{A}, v{mx + q}, v{m}']
                    + [f'v_fma_f32 v{s + k}, v{s + k}, s{sC}, -v{m}' for k in range(4)]
                    + [f'v_exp_f32 v{A}, v{A}'] + [f'v_exp_f32 v{s + k}, v{s + k}' for k in range(4)]
                    + [f'v_fma_f32 v{m}, v{lx + q}, v{A}, v{s}', f'v_add_f32 v{t}, v{s + 1}, v{s + 2}',
                       f'v_add_f32 v{m}, v{m}, v{s + 3}', f'v_add_f32 v{m}, v{m}, v{t}'] + xl('v_add_f32', m, t)
                    + [f'v_rcp_f32 v{m}, v{m}', f'v_mul_f32 v{A}, v{m}, v{A}']
                    + [f'v_mul_f32 v{s + k}, v{m}, v{s + k}' for k in range(4)]
                    + [f'v_cvt_pk_bf16_f32 v{PM + 2 * q}, v{s}, v{s + 1}', f'v_cvt_pk_bf16_f32 v{PM + 2 * q + 1}, v{s + 2}, v{s + 3}'])
        poll(a, 4)
        run(zipb(post), 18)
        run([f'v_pk_mul_f32 {R(OX + 2 * n, 2)}, {R(OX + 2 * n, 2)}, {R(al + 2 * (n >> 4), 2)} op_sel_hi:[1,0]' for n in range(32)], 20)
        low = []
        for n in range(16):
            o = OX + 4 * n
            a.mfma(o, VM + 2 * (n & 7), PM + 2 * (n >> 3), o, k=16)
            a.fill(low, 3)
            if n >= 3 and n % 2 == 1 or n == 15:
                for f in ([(n - 3) // 2] if n < 15 else [6, 7]):
                    o = OX + 8 * f
                    low += [f'v_cvt_pk_bf16_f32 v{o + k}, v{o + 2 * k}, v{o + 2 * k + 1}' for k in range(4)]
                    low.append(lambda o=o, f=f: a.i(
                        f'buffer_store_dwordx4 {R(o, 4)}, v{vLn}, {WS}, s{sOo if f < 4 else 66} offen offset:{(f & 3) * 1024} sc1', tag='o'))
        a.fill(low, 999)
        stamp(a, stamps, 4)
        print('atn: loads left after stores', len(bulk))
        assert len(bulk) == 4
        a.waitcnt(vm=8)
        for p in bulk:
            a.i(p)
        a.i(f's_add_u32 s{sOo}, s{sOo}, {O_UNIT}')
        a.i('s_mov_b64 s[54:55], 1')
        stamp(a, stamps, 5)
        stamp_flush(a, stamps, 6, sS, S)
        a.i(f's_add_u32 s{sS}, s{sS}, 1')
        a.i('s_cmp_lg_u32 s10, 0')
        a.i(f's_cbranch_scc1 L_atn_{tag}c', nohaz=True)
        a.waitcnt(vm=0)
        a.i('s_mov_b64 exec, 1')
        a.i(f'buffer_store_dword v{vFa}, off, {WS}, s{sFp} sc1')
        a.i('s_mov_b64 exec, -1')
        a.i('s_mov_b64 s[54:55], 0')
        a.i(f's_cmp_eq_u32 s{sS}, 64')
        a.i('s_cbranch_scc1 L_atn_done')
        block(nxt, 15, vFa)
        poll(a, 4)
        a.waitcnt(vm=0)
        a.label(f'L_atn_{tag}c')
        a.i(f's_add_u32 s{sFn}, s{sFn}, 4')
        if other:
            a.i(f's_branch L_atn_{other}')
    for p in PTR:
        a.i(p)
    block(24, 13, vT)
    poll(a)
    a.waitcnt(vm=0)
    unit(24, 256, 'e', None)
    unit(256, 24, 'o', 'e')
    a.label('L_atn_done')
    rt_stamp(a, stamps, 2, 40)
    a.i('s_endpgm')
```

```python
from asmlib import *
from layout import *
import os

WS = 's[4:7]'
WT = 's[8:11]'
IO = 's[12:15]'
DBG = 's[16:19]'
sW, sIDX, sGID, sTO = 20, 21, 22, 23
sL = 24
TIMEOUT = 1 << 15
BUF0, BUF1 = 0, 73728


def srd(a, base, karg, nbytes):
    a.i(f's_load_dwordx2 s[{base}:{base + 1}], s[0:1], {karg}')
    a.i(f's_mov_b32 s{base + 2}, {nbytes}')
    a.i(f's_mov_b32 s{base + 3}, 0x20000')
    a.waitcnt(lg=0)


def prologue(a, roles):
    if os.environ.get('DBGT'):
        a.i('s_memrealtime s[74:75]')
    a.i(f's_load_dwordx2 s[4:5], s[0:1], {K_WS}')
    a.i(f's_load_dwordx2 s[16:17], s[0:1], {K_DBG}')
    a.i(f's_load_dwordx2 s[8:9], s[0:1], {K_WQ}')
    a.i(f's_load_dwordx2 s[12:13], s[0:1], {K_X}')
    a.i('s_getreg_b32 s25, hwreg(HW_REG_XCC_ID)')
    a.i('s_and_b32 s25, s25, 7')
    a.i('v_lshrrev_b32 v1, 6, v0')
    a.i(f'v_readfirstlane_b32 s{sW}, v1')
    a.i(f's_mov_b32 s6, {WS_BYTES}')
    a.i('s_mov_b32 s7, 0x20000')
    a.i('s_mov_b32 s10, 0')
    a.i('s_mov_b32 s11, 0x20000')
    a.i('s_mov_b32 s14, 0')
    a.i('s_mov_b32 s15, 0x20000')
    a.i('s_mov_b32 s18, 256')
    a.i('s_mov_b32 s19, 0x20000')
    a.i('v_lshlrev_b32 v4, 3, v0')
    a.i('v_and_b32 v0, 63, v0')
    a.i('v_mov_b32 v2, 1')
    a.i('s_lshl_b32 s26, s25, 5')
    a.i('v_mov_b32 v3, s26')
    a.i('v_mov_b32 v5, 0')
    a.waitcnt(lg=0)
    a.i(f's_cmp_lg_u32 s{sW}, 0')
    a.i('s_cbranch_scc1 L_tick_done')
    a.i('s_mov_b64 exec, 1')
    a.i(f'buffer_atomic_add v2, v3, {DBG}, 0 offen sc0 sc1')
    a.i('ds_write_b32 v5, v2')
    a.i('s_mov_b64 exec, -1')
    a.label('L_tick_done')
    a.waitcnt(vm=0, lg=0)
    a.i('s_barrier')
    a.i('ds_read_b32 v2, v5')
    a.i('v_readfirstlane_b32 s27, v2')
    a.i('s_cmp_ge_u32 s27, 32')
    a.i('s_cbranch_scc1 L_exit')
    a.i(f's_add_u32 s{sGID}, s26, s27')
    a.i('s_barrier')
    a.i('s_getpc_b64 s[68:69]')
    a.out.append('L_pc:')
    a.i('s_mov_b32 s70, L_code_end-L_pc')
    a.i('s_mov_b32 s71, 0x20000')
    a.i('s_lshl_b32 s72, s27, 12')
    a.i(f's_lshl_b32 s28, s{sW}, 10')
    a.i('s_add_u32 s72, s72, s28')
    a.i('v_mov_b32 v6, 0')
    a.i('v_mov_b32 v7, 0')
    a.i(f's_lshl_b32 s28, s{sGID}, 11')
    a.i(f'buffer_store_dwordx2 v[6:7], v4, {WS}, s28 offen sc1')
    a.i(f's_and_b32 s{sL}, s25, 1')
    a.i('s_lshr_b32 s25, s25, 1')
    a.i(f's_mov_b32 s{sIDX}, s27')
    a.i('s_cmp_eq_u32 s25, 0')
    a.i(f's_cbranch_scc1 {roles["chain"]}')
    a.i('s_bitcmp1_b32 s27, 0')
    a.i('s_cbranch_scc1 L_disp_odd')
    a.i(f's_lshr_b32 s{sIDX}, s27, 1')
    a.i('s_cmp_eq_u32 s25, 1')
    a.i(f's_cbranch_scc1 {roles["oproj"]}')
    a.i('s_cmp_eq_u32 s25, 2')
    a.i(f's_cbranch_scc1 {roles["down"]}')
    a.i(f's_lshr_b32 s{sIDX}, s27, 2')
    a.i('s_bitcmp0_b32 s27, 1')
    a.i(f's_cbranch_scc1 {roles["atn"]}')
    a.i(f's_add_u32 s{sIDX}, s{sIDX}, 24')
    a.i(f's_branch {roles["proj"]}')
    a.label('L_disp_odd')
    a.i('s_lshl_b32 s28, s25, 3')
    a.i(f's_lshr_b32 s{sIDX}, s27, 2')
    a.i(f's_add_u32 s{sIDX}, s{sIDX}, s28')
    a.i(f's_sub_u32 s{sIDX}, s{sIDX}, 8')
    a.i('s_bitcmp1_b32 s27, 1')
    a.i(f's_cbranch_scc1 {roles["proj"]}')
    a.i(f's_branch {roles["up"]}')
    a.label('L_spare')
    arrive(a)
    a.label('L_exit')
    a.i('s_endpgm')
    a.label('L_abort')
    a.i('s_mov_b64 exec, 1')
    a.i(f's_lshl_b32 s28, s{sGID}, 8')
    a.i('s_or_b32 s29, s29, s28')
    a.i(f's_lshl_b32 s28, s{sW}, 16')
    a.i('s_or_b32 s29, s29, s28')
    a.i('s_or_b32 s29, s29, 0x40000000')
    a.i('v_mov_b32 v2, s29')
    a.i(f'buffer_store_dword v2, off, {DBG}, 0 offset:20 sc1')
    a.i('s_endpgm')


def arrive(a, v=2):
    l = a.new('L_arr')
    a.waitcnt(vm=0)
    a.i('s_barrier')
    a.i(f's_cmp_lg_u32 s{sW}, 0')
    a.i(f's_cbranch_scc1 {l}')
    a.i('s_mov_b64 exec, 1')
    a.i(f'v_mov_b32 v{v}, 1')
    a.i(f'buffer_atomic_add v{v}, off, {DBG}, 0 offset:16 sc1')
    a.i('s_mov_b64 exec, -1')
    a.label(l)


def spin_head(a, code):
    a.i(f's_mov_b32 s{sTO}, {TIMEOUT}')
    a.i(f's_mov_b32 s29, {code}')
    l = a.new('L_spin')
    a.label(l)
    a.i(f's_sub_u32 s{sTO}, s{sTO}, 1')
    a.i('s_cbranch_scc1 L_abort')
    return l


def code_touch(a, v):
    if not os.environ.get('CT'):
        return
    a.i(f'v_mbcnt_lo_u32_b32 v{v}, -1, 0')
    a.i(f'v_mbcnt_hi_u32_b32 v{v}, -1, v{v}')
    a.i(f'v_lshlrev_b32 v{v}, 4, v{v}')
    a.i(f'buffer_load_dword v{v}, v{v}, s[68:71], s72 offen')
    a.waitcnt(vm=0)


def wait_init(a, v=2):
    code_touch(a, v)
    l = spin_head(a, 1)
    a.i('s_sleep 4')
    a.i(f'buffer_load_dword v{v}, off, {DBG}, 0 offset:16 sc1')
    a.i(f'v_cmp_gt_u32 vcc, 256, v{v}')
    a.i(f's_cbranch_vccnz {l}')


class DsAddr:
    def __init__(self, a, tmp):
        self.a, self.tmp, self.cur = a, tmp, None

    def __call__(self, reg, off):
        if off < 65536:
            return f'v{reg}', off
        hi = off & ~0x7fff
        if self.cur != (reg, hi):
            if self.cur and self.cur[0] == reg and 0 <= off - self.cur[1] < 65536:
                return f'v{self.tmp}', off - self.cur[1]
            self.a.i(f'v_add_u32 v{self.tmp}, {hi}, v{reg}')
            self.cur = (reg, hi)
        return f'v{self.tmp}', off - hi


def bits(a, dst, src, spec, tmp):
    first = True
    for s, m, d in spec:
        t = dst if first else tmp
        a.i(f'v_lshrrev_b32 v{t}, {s}, v{src}')
        a.i(f'v_and_b32 v{t}, {m}, v{t}')
        if first:
            if d:
                a.i(f'v_lshlrev_b32 v{t}, {d}, v{t}')
        else:
            a.i(f'v_lshl_or_b32 v{dst}, v{t}, {d}, v{dst}')
        first = False


SWZ = {
    ('p2', 'pair'): [(0, 7, 1)],
    ('p1', 'pair'): [(1, 3, 1)],
    ('p1', 'nat'): [(1, 1, 1), (3, 1, 2)],
    ('p2', 'nat'): [(0, 3, 1), (3, 1, 3)],
    'x': [(1, 7, 0)],
}


def dma_voff_pow2(a, dst, upr, gpitch, swz, t0, t1):
    lg = {8: 3, 16: 4}[upr]
    rpi = 64 // upr
    a.i(f'v_lshrrev_b32 v{t0}, {lg}, v0')
    a.i(f's_mul_i32 s28, s{sW}, {rpi}')
    a.i(f'v_add_u32 v{t0}, s28, v{t0}')
    bits(a, dst, t0, swz, t1)
    a.i(f'v_and_b32 v{t1}, {upr - 1}, v0')
    a.i(f'v_xor_b32 v{dst}, v{dst}, v{t1}')
    a.i(f'v_lshlrev_b32 v{dst}, 4, v{dst}')
    a.i(f'v_mul_u32_u24 v{t0}, {gpitch}, v{t0}')
    a.i(f'v_add_u32 v{dst}, v{dst}, v{t0}')


def dma_voff_72(a, dst9, swz, t0, t1, t2, upr=72, gpitch=1152):
    magic = {72: 911, 24: 2731}[upr]
    assert all((u * magic) >> 16 == u // upr for u in range(8 * upr))
    a.i(f's_lshl_b32 s28, s{sW}, 3')
    for n in range(upr // 8):
        d = dst9 + n
        a.i(f'v_add_u32 v{t2}, {64 * n}, v0')
        a.i(f'v_mul_u32_u24 v{t0}, {magic}, v{t2}')
        a.i(f'v_lshrrev_b32 v{t0}, 16, v{t0}')
        a.i(f'v_mul_u32_u24 v{t1}, {upr}, v{t0}')
        a.i(f'v_sub_u32 v{t2}, v{t2}, v{t1}')
        a.i(f'v_add_u32 v{t0}, s28, v{t0}')
        bits(a, d, t0, swz, t1)
        a.i(f'v_xor_b32 v{d}, v{d}, v{t2}')
        a.i(f'v_lshlrev_b32 v{d}, 4, v{d}')
        a.i(f'v_mul_u32_u24 v{t0}, {gpitch}, v{t0}')
        a.i(f'v_add_u32 v{d}, v{d}, v{t0}')


def dma(a, voff, srdn, s_lds, lds_off, s_src, src_off, mods='', tag=None):
    a.i(f's_add_u32 m0, s{s_lds}, {lds_off}')
    a.i(f's_add_u32 s28, s{s_src}, {src_off}')
    a.i(f'buffer_load_dwordx4 v{voff}, {srdn}, s28 offen{mods} lds', tag=tag)


def tr_addr(a, dst, pitch, korder, swz, unit_expr, sub_expr, t0, t1):
    if korder == 'pair':
        a.i(f'v_lshrrev_b32 v{t0}, 2, v0')
    else:
        bits(a, t0, 0, [(2, 3, 0), (4, 3, 3)], t1)
    bits(a, dst, t0, swz, t1)
    unit_expr(t1)
    a.i(f'v_xor_b32 v{dst}, v{dst}, v{t1}')
    a.i(f'v_lshlrev_b32 v{dst}, 4, v{dst}')
    a.i(f'v_mul_u32_u24 v{t0}, {pitch}, v{t0}')
    a.i(f'v_add_u32 v{dst}, v{dst}, v{t0}')
    if sub_expr:
        sub_expr(t1)
        a.i(f'v_add_u32 v{dst}, v{dst}, v{t1}')


def tr_frag(a, ds, dreg, areg, off, pitch, korder):
    half = (16 if korder == 'pair' else 4) * pitch
    for h in range(2):
        r, o = ds(areg, off + h * half)
        a.i(f'ds_read_b64_tr_b16 {R(dreg + 2 * h, 2)}, {r} offset:{o}')


import os
PROF = os.environ.get('PROF')


LITE = os.environ.get('LITE')


def stamp(a, on, k):
    if LITE:
        return
    if on and PROF:
        if k == 0:
            a.prof([int(x) for x in PROF.split(',')])
        return
    if on:
        a.i(f'{"s_memrealtime" if os.environ.get("RT") else "s_memtime"} s[{80 + 2 * k}:{81 + 2 * k}]')


def stamp_flush(a, on, n, sstep, v0):
    if not on or LITE:
        return
    if PROF:
        n = len(PROF.split(',')) + 1
        a.i(f's_memtime s[{80 + 2 * (n - 1)}:{81 + 2 * (n - 1)}]')
        a.pm = None
    a.waitcnt(lg=0)
    for k in range(n):
        a.i(f'v_mov_b32 v{v0 + k}, s{80 + 2 * k}')
    a.i(f's_lshl_b32 s28, s{sstep}, 8')
    a.i(f's_add_u32 s28, s28, s{sGID}')
    a.i('s_lshl_b32 s28, s28, 2')
    a.i(f's_add_u32 s28, s28, s{sW}')
    a.i('s_lshl_b32 s28, s28, 6')
    a.i(f's_add_u32 s28, s28, {STAMP + 65536}')
    a.i('s_mov_b64 exec, 1')
    for k in range(0, n, 4):
        a.i(f'buffer_store_dwordx4 {R(v0 + k, 4)}, off, {WS}, s28 offset:{4 * k}')
    a.i('s_mov_b64 exec, -1')


def rt_stamp(a, on, slot, v0=8):
    if not on:
        return
    if os.environ.get('DBGT'):
        tab = {0: [(0, 1), (31, 9)], 1: [(0, 2), (31, 10), (67, 11), (32, 12)], 2: [(0, 3), (32, 6), (160, 7), (128, 13), (64, 14)]}[slot]
        for gid, word in tab:
            l = a.new('L_rt')
            a.i(f's_lshl_b32 s28, s{sW}, 8')
            a.i(f's_add_u32 s28, s28, s{sGID}')
            a.i(f's_cmp_lg_u32 s28, {gid}')
            a.i(f's_cbranch_scc1 {l}')
            a.i('s_memrealtime s[76:77]')
            a.waitcnt(lg=0)
            a.i('s_sub_u32 s76, s76, s74')
            a.i(f'v_mov_b32 v{v0}, s76')
            a.i('s_mov_b64 exec, 1')
            a.i(f'buffer_store_dword v{v0}, off, {DBG}, 0 offset:{word * 4} sc1')
            a.i('s_mov_b64 exec, -1')
            a.label(l)
        return
    l = a.new('L_rt')
    a.i(f's_cmp_lg_u32 s{sW}, 0')
    a.i(f's_cbranch_scc1 {l}')
    a.i('s_memrealtime s[76:77]')
    a.waitcnt(lg=0)
    a.i(f'v_mov_b32 v{v0}, s76')
    a.i(f's_lshl_b32 s28, s{sGID}, 6')
    a.i(f's_add_u32 s28, s28, {STAMP}')
    a.i('s_mov_b64 exec, 1')
    a.i(f'buffer_store_dword v{v0}, off, {WS}, s28 offset:{slot * 4}')
    a.i('s_mov_b64 exec, -1')
    a.label(l)


def sel_frag(a, dst, t0, t1, dual=False):
    a.i(f'v_and_b32 v{t0}, 1, v0')
    a.i(f'v_lshlrev_b32 v{t0}, 4, v{t0}')
    a.i(f'v_mov_b32 v{t1}, 0x3f80')
    a.i(f'v_lshlrev_b32 v{t1}, v{t0}, v{t1}')
    if dual:
        a.i(f'v_lshrrev_b32 v{t0}, 2, v0')
        a.i(f'v_xor_b32 v{t0}, v{t0}, v0')
        a.i(f'v_and_b32 v{t0}, 8, v{t0}')
        a.i(f'v_cmp_eq_u32 vcc, 0, v{t0}')
        a.i(f'v_cndmask_b32 v{t1}, 0, v{t1}, vcc')
    a.i(f'v_bfe_u32 v{t0}, v0, 1, 2')
    for k in range(4):
        a.i(f'v_cmp_eq_u32 vcc, {k}, v{t0}')
        a.i(f'v_cndmask_b32 v{dst + k}, 0, v{t1}, vcc')
```

```python
import re

_REG = re.compile(r'^(-|abs\()?([vas])(?:(\d+)|\[(\d+):(\d+)\])\)?$')
TRANS = ('v_exp_f32', 'v_log_f32', 'v_rcp_f32', 'v_rsq_f32', 'v_sqrt_f32', 'v_sin_f32', 'v_cos_f32')


def regs_of(tok):
    tok = tok.strip()
    if tok == 'vcc':
        return {('s', 106), ('s', 107)}
    if tok == 'exec':
        return {('s', 126), ('s', 127)}
    if tok in ('vcc_lo', 'vcc_hi', 'exec_lo', 'exec_hi', 'm0'):
        return {('s', {'vcc_lo': 106, 'vcc_hi': 107, 'exec_lo': 126, 'exec_hi': 127, 'm0': 124}[tok])}
    m = _REG.match(tok)
    if not m:
        return set()
    k = m.group(2)
    lo = int(m.group(3) if m.group(3) is not None else m.group(4))
    hi = int(m.group(3) if m.group(3) is not None else m.group(5))
    if k == 'a':
        return {('v', 256 + i) for i in range(lo, hi + 1)}
    return {(k, i) for i in range(lo, hi + 1)}


def R(n, cnt=1):
    k, b = ('v', n) if n < 256 else ('a', n - 256)
    assert b + cnt <= 256, (n, cnt)
    return f'{k}{b}' if cnt == 1 else f'{k}[{b}:{b + cnt - 1}]'


def S(n, cnt=1):
    return f's{n}' if cnt == 1 else f's[{n}:{n + cnt - 1}]'


class Ins:
    def __init__(self, text):
        self.text = text
        t = text.split(';')[0].strip()
        p = t.split(None, 1)
        self.op = p[0]
        rest = p[1] if len(p) > 1 else ''
        ops = [o.strip() for o in rest.split(',')] if rest else []
        self.mods = []
        if ops:
            last = ops[-1].split()
            ops[-1] = last[0]
            self.mods = last[1:]
        clean = []
        for o in ops:
            if ' ' in o:
                w = o.split()
                clean.append(w[0])
                self.mods += w[1:]
                break
            clean.append(o)
        self.ops = clean
        op = self.op
        rs = [regs_of(o) for o in self.ops]
        U = lambda l: set().union(*l) if l else set()
        self.kind = 'other'
        self.w, self.r = set(), set()
        self.srcC = set()
        self.srcAB = set()
        if op.startswith('v_smfmac'):
            self.kind = 'mfma'
            self.w = rs[0]
            self.srcAB = rs[1] | rs[2] | rs[3]
            self.srcC = rs[0]
            self.r = self.srcAB | self.srcC
        elif op.startswith('v_mfma'):
            self.kind = 'mfma'
            self.w = rs[0]
            self.srcAB = rs[1] | rs[2]
            self.srcC = rs[3]
            self.r = self.srcAB | self.srcC
        elif op.startswith('v_'):
            self.kind = 'valu'
            if 'permlane' in op and 'swap' in op:
                self.w = rs[0] | rs[1]
                self.r = rs[0] | rs[1]
            else:
                self.w = rs[0]
                self.r = U(rs[1:])
                if op.startswith(('v_fmac', 'v_dot2c', 'v_pk_fmac')) or '_dpp' in op:
                    self.r |= rs[0]
        elif op.startswith('ds_'):
            self.kind = 'ds'
            if op.startswith(('ds_read', 'ds_bpermute', 'ds_swizzle')):
                self.w = rs[0]
                self.r = U(rs[1:])
            else:
                self.r = U(rs)
        elif op.startswith('buffer_'):
            self.kind = 'vmem'
            if op.startswith('buffer_load') and 'lds' not in self.mods:
                self.w = rs[0]
                self.r = U(rs[1:])
            else:
                self.r = U(rs)
                if op.startswith('buffer_atomic') and 'sc0' in self.mods:
                    self.w = rs[0]
                if 'lds' in self.mods:
                    self.r |= {('s', 124)}
        elif op.startswith('s_'):
            self.kind = 'salu'
            if op.startswith(('s_cmp', 's_bitcmp', 's_cbranch', 's_branch', 's_waitcnt', 's_nop', 's_barrier',
                              's_sleep', 's_setprio', 's_endpgm')):
                self.r = U(rs)
            else:
                self.w = rs[0] if rs else set()
                self.r = U(rs[1:])
        self.states = 1
        if op == 's_nop':
            self.states = int(self.ops[0]) + 1


def need(p, c):
    n = 0
    pv = {x for x in p.w if x[0] == 'v'}
    ps = {x for x in p.w if x[0] == 's'}
    if p.kind == 'valu':
        if c.kind == 'mfma' and pv & c.r:
            n = max(n, 2)
        if c.kind == 'valu':
            if pv & c.r:
                if 'permlane' in c.op or '_dpp' in c.op:
                    n = max(n, 2)
                if c.op.startswith(('v_readlane', 'v_readfirstlane')):
                    n = max(n, 1)
                if p.op.startswith(TRANS):
                    n = max(n, 1)
            if ps & c.r:
                n = max(n, 4 if c.op.startswith(('v_readlane', 'v_writelane')) else 2)
        if c.kind == 'vmem' and ps & c.r:
            n = max(n, 5)
        if c.kind in ('ds', 'vmem') and p.op.startswith(TRANS) and pv & c.r:
            n = max(n, 1)
        if c.kind == 'salu' and ps & c.r:
            n = max(n, 1)
    if p.kind == 'mfma':
        x = 4 if '32x32' in p.op else 0
        if c.kind == 'mfma':
            if pv & c.srcAB:
                n = max(n, 8 + x)
            if pv & c.srcC and pv != c.srcC:
                n = max(n, 6 + x)
            if pv & c.w and pv != c.srcC:
                n = max(n, 6 + x)
        elif c.kind in ('valu', 'ds', 'vmem'):
            if pv & (c.r | c.w):
                n = max(n, 8 + x)
            if p.srcC & c.w:
                n = max(n, 3 + x)
    if p.kind == 'vmem' and p.op.startswith(('buffer_store_dwordx4', 'buffer_store_dwordx3')):
        data = regs_of(p.ops[0])
        if data & c.w:
            n = max(n, 2)
    if p.kind == 'salu' and ('s', 124) in p.w and c.kind == 'vmem' and 'lds' in c.mods:
        n = max(n, 1)
    return n


def worst(p):
    if p.kind == 'mfma':
        return 12 if '32x32' in p.op else 8
    if p.kind == 'valu':
        return 5 if any(x[0] == 's' for x in p.w) else 2
    if p.kind == 'vmem' and p.op.startswith('buffer_store'):
        return 2
    if p.kind == 'salu' and ('s', 124) in p.w:
        return 1
    return 0


class Asm:
    def __init__(self):
        self.out = []
        self.hist = []
        self.vm = []
        self.lg = []
        self.uid = 0
        self.ninst = 0
        self.tail = []
        self.gap = 0
        self.batch = 0

    def raw(self, s):
        self.out.append(s)

    def c(self, s):
        self.out.append('    ; ' + s)

    def _emit(self, ins):
        self.out.append('    ' + ins.text)
        self.hist.append(ins)
        self.ninst += 1
        if ins.kind == 'mfma':
            self.gap = 1 if 'smfmac' in ins.op else 0
        elif ins.kind == 'vmem':
            self.gap += 3
        elif ins.op.startswith(TRANS):
            self.gap += 2
        else:
            self.gap += ins.states
        if len(self.hist) > 16:
            self.hist.pop(0)

    def _pad(self, fn):
        d = 0
        req = 0
        for p in reversed(self.hist):
            req = max(req, fn(p) - d)
            d += p.states
            if d >= 13:
                break
        if req > 0:
            self._emit(Ins(f's_nop {req - 1}'))

    def _cnt(self, q, pred):
        for i in range(len(q) - 1, -1, -1):
            if pred(q[i]):
                return len(q) - 1 - i
        return None

    def waitcnt(self, vm=None, lg=None):
        parts = []
        if vm is not None:
            vm = min(vm, 63)
            parts.append(f'vmcnt({vm})')
            self.vm = self.vm[len(self.vm) - vm:] if vm < len(self.vm) and vm > 0 else ([] if vm == 0 else self.vm)
        if lg is not None:
            lg = min(lg, 15)
            parts.append(f'lgkmcnt({lg})')
            self.lg = self.lg[len(self.lg) - lg:] if lg < len(self.lg) and lg > 0 else ([] if lg == 0 else self.lg)
        self._emit(Ins('s_waitcnt ' + ' '.join(parts)))

    def wait_tag(self, tag):
        v = self._cnt(self.vm, lambda e: tag in e[1])
        l = self._cnt(self.lg, lambda e: tag in e[1])
        if v is not None or l is not None:
            self.waitcnt(v, l)

    def prewait(self, touched):
        v = self._cnt(self.vm, lambda e: e[0] & touched)
        l = self._cnt(self.lg, lambda e: e[0] & touched)
        if l is not None and l > self.batch + 1:
            l -= self.batch
        if v is not None or l is not None:
            self.waitcnt(v, l)

    def prewait_regs(self, *bases):
        self.prewait({('v', b + x) for b in bases for x in range(4)})

    def fill(self, low, room=2):
        while low and self.gap < room:
            p = low[0]
            if callable(p):
                low.pop(0)()
                continue
            c = 2 if p.startswith(TRANS) else 1
            if self.gap and self.gap + c > room:
                break
            self.i(low.pop(0))

    def i(self, text, tag=None, nohaz=False):
        ins = Ins(text)
        assert ins.op != 's_waitcnt', 'use waitcnt()'
        self.prewait(ins.r | ins.w)
        if ins.op.startswith(('s_cbranch', 's_branch')) and not nohaz:
            self._pad(lambda p: max(worst(p) - 1, need(p, ins)))
        else:
            self._pad(lambda p: need(p, ins))
        self._emit(ins)
        tg = {tag} if tag else set()
        if ins.kind == 'vmem':
            self.vm.append((set(ins.w), tg))
        elif ins.kind == 'ds':
            self.lg.append((set(ins.w), tg))
        elif ins.op.startswith(('s_load', 's_memrealtime', 's_memtime')):
            self.lg.append((set(ins.w), tg | {'smem'}))
            vm = self.vm
            self.join()
            self.vm = vm

    def join(self):
        for name in ('vm', 'lg'):
            q = getattr(self, name)
            if q:
                regs = set().union(*[e[0] for e in q])
                tags = set().union(*[e[1] for e in q])
                setattr(self, name, [(regs, tags)])

    def join_vm_tag(self, tag):
        if self.vm:
            self.vm[-1] = (self.vm[-1][0], self.vm[-1][1] | {tag})
        else:
            self.vm = [(set(), {tag})]

    def label(self, name):
        self.join()
        self.out.append(name + ':')

    def new(self, p='L'):
        self.uid += 1
        return f'{p}_{self.uid}'

    def barrier(self, lg=0):
        if lg is not None and self.lg:
            self.waitcnt(lg=lg)
        self.i('s_barrier')

    def prof(self, marks):
        self.pm, self.pk = list(marks), 0

    def mfma(self, d, a, b, c, k=32):
        if getattr(self, 'pm', None) is not None:
            if self.pk in self.pm:
                ix = self.pm.index(self.pk)
                self._emit(Ins(f's_memtime s[{80 + 2 * ix}:{81 + 2 * ix}]'))
            self.pk += 1
        if k == 'sp':
            self.i(f'v_smfmac_f32_16x16x64_bf16 {R(d, 4)}, {R(a, 4)}, {R(b, 8)}, v{c}')
            return
        if k == 'big':
            self.i(f'v_mfma_f32_32x32x16_bf16 {R(d, 16)}, {R(a, 4)}, {R(b, 4)}, {"0" if c is None else R(c, 16)}')
            return
        n = 4 if k == 32 else 2
        cs = '0' if c is None else R(c, 4)
        self.i(f'v_mfma_f32_16x16x{k}_bf16 {R(d, 4)}, {R(a, n)}, {R(b, n)}, {cs}')

    def text(self):
        return '\n'.join(self.out) + '\n'
```

```python
import math
import struct
from common import *

WORK = 147456
MEMO, SAO, S1O, OO = 0, 9216, 9216 + 4096, 9216 + 5120
vLn, vMd, vWc, vPs, vAg, vSa, vFl, vT, vQw, vSh, vS1, vQr = range(12)
SEL, KV, A, Dr, C, E0, E1 = 12, 16, 32, 48, 64, 72, 80
LBLK = [0, 1, 4, 5, 8, 9, 12, 13, 16]
sT, sTask, sRS, sAG0, sAG1, sAG2, sPst, sPs8, sU, sC, sKV, sAGb, sXb, sYb, sFo, sFk = range(30, 46)
sM1, sHi, sPx = 46, 48, 50
sH256, sW1k, sW256 = 52, 53, 54


def f2u(x):
    return struct.unpack('<I', struct.pack('<f', x))[0]


def frag_map():
    m = {('q', 0, 17): 76, ('q', 1, 17): 84}
    nxt = [88]

    def al(key):
        m[key] = nxt[0]
        nxt[0] += 4
    for mt in 'kvq':
        for J in range(9):
            for b in range(2):
                for j in (2 * J, 2 * J + 1):
                    if mt != 'q' or (j not in LBLK and j != 17):
                        al((mt, b, j))
    for i in range(9):
        al(('o', i, 0))
        al(('o', i, 1))
    assert nxt[0] == 512, nxt
    return m


def task_id(a):
    a.i(f's_lshl_b32 s{sTask}, s{sW}, 5')
    a.i(f's_add_u32 s{sTask}, s{sTask}, s{sIDX}')


def chain(a, stamps=False):
    W = frag_map()
    a.label('L_chain')
    rt_stamp(a, stamps, 0)
    a.i(f's_lshl_b32 s{sH256}, s{sIDX}, 8')
    a.i(f's_lshl_b32 s{sW1k}, s{sW}, 10')
    a.i(f's_lshl_b32 s{sW256}, s{sW}, 8')
    task_id(a)
    a.i(f's_mov_b32 s{sM1}, 0x00ff00ff')
    a.i(f's_mov_b32 s{sM1 + 1}, 0x00ff00ff')
    a.i(f's_mov_b32 s{sHi}, 0')
    a.i(f's_mov_b32 s{sHi + 1}, -1')
    a.i(f's_mov_b32 s{sC}, {hex(f2u(128 ** -0.5 * math.log2(math.e)))}')
    a.i(f's_mul_i32 s{sRS}, s{sL}, {CRS_L}')
    a.i(f's_add_u32 s{sPst}, s{sRS}, {CRS}')
    a.i(f's_lshl_b32 s28, s{sTask}, 12')
    a.i(f's_add_u32 s{sRS}, s{sPst}, s28')
    a.i(f's_cmp_ge_u32 s{sTask}, 72')
    a.i(f's_cselect_b32 s{sRS}, {OOB}, s{sRS}')
    a.i(f's_mul_i32 s{sAG0}, s{sL}, {CAG_L}')
    a.i(f's_add_u32 s{sAG0}, s{sAG0}, {CAG}')
    a.i(f's_add_u32 s{sAG1}, s{sAG0}, {CAG_SLOT}')
    a.i(f's_add_u32 s{sAG2}, s{sAG0}, {2 * CAG_SLOT}')
    a.i('v_lshlrev_b32 v10, 4, v0')
    bits(a, vAg, 0, [(0, 7, 4), (4, 1, 3)], 12)
    srd(a, 12, K_MEM0, 9216)
    a.i(f's_cmp_ge_u32 s{sTask}, 72')
    a.i('s_cbranch_scc1 L_ch_noinit')
    for k in range(4):
        a.i(f'v_mov_b32 v{16 + k}, 1')
    a.i('v_mov_b32 v20, -1')
    a.i('v_mov_b32 v21, -1')
    for i in range(4):
        a.i(f'buffer_store_dwordx4 v[16:19], v10, {WS}, s{sRS} offen offset:{i * 1024}')
    a.i(f's_lshl_b32 s60, s{sTask}, 7')
    for sl in (sAG1, sAG2):
        a.i(f's_add_u32 s28, s60, s{sl}')
        a.i(f'buffer_store_dwordx2 v[20:21], v{vAg}, {WS}, s28 offen')
    a.i('v_and_b32 v12, 7, v0')
    a.i('v_mul_u32_u24 v12, 1152, v12')
    a.i('v_bfe_u32 v13, v0, 4, 1')
    a.i('v_lshl_add_u32 v12, v13, 5, v12')
    a.i(f's_lshr_b32 s28, s{sTask}, 2')
    a.i('s_lshl_b32 s28, s28, 6')
    a.i(f's_and_b32 s61, s{sTask}, 3')
    a.i('s_lshl_b32 s61, s61, 3')
    a.i('s_add_u32 s28, s28, s61')
    a.i(f'buffer_load_dwordx2 v[22:23], v12, {IO}, s28 offen')
    a.i('v_min_u32 v22, -2, v22')
    a.i('v_min_u32 v23, -2, v23')
    a.i(f's_add_u32 s28, s60, s{sAG0}')
    a.i(f'buffer_store_dwordx2 v[22:23], v{vAg}, {WS}, s28 offen')
    a.label('L_ch_noinit')
    arrive(a)
    vq, v9 = 16, 17
    aQK, aV0, aV1, aO0, aO1, aO8, tA = 26, 27, 28, 29, 30, 31, 32
    dma_voff_pow2(a, vq, 16, 8192, SWZ['p2', 'sp'], 40, 41)
    dma_voff_72(a, v9, SWZ['p1', 'pair'], 40, 41, 42)
    a.i(f's_lshl_b32 s62, s{sW}, 2')
    a.i(f's_lshl_b32 s63, s{sW}, 1')

    def u_qk(t):
        a.i(f'v_and_b32 v{t}, 3, v0')
        a.i(f'v_add_u32 v{t}, s62, v{t}')

    def u_nat(sreg, add):
        def f(t):
            a.i(f'v_bfe_u32 v{t}, v0, 1, 1')
            a.i(f'v_add_u32 v{t}, s{sreg}, v{t}')
            if add:
                a.i(f'v_add_u32 v{t}, {add}, v{t}')
        return f

    def sub8(t):
        a.i(f'v_and_b32 v{t}, 1, v0')
        a.i(f'v_lshlrev_b32 v{t}, 3, v{t}')
    tr_addr(a, aV0, 256, 'sp', SWZ['p2', 'sp'], u_nat(62, 0), sub8, 40, 41)
    tr_addr(a, aV1, 256, 'sp', SWZ['p2', 'sp'], u_nat(62, 2), sub8, 40, 41)
    tr_addr(a, aO0, 1152, 'pair', SWZ['p1', 'pair'], u_nat(62, 0), sub8, 40, 41)
    tr_addr(a, aO1, 1152, 'pair', SWZ['p1', 'pair'], u_nat(62, 2), sub8, 40, 41)
    tr_addr(a, aO8, 1152, 'pair', SWZ['p1', 'pair'], u_nat(63, 64), sub8, 40, 41)
    ds = DsAddr(a, tA)
    a.i(f's_mul_i32 s60, s{sW}, 9216')
    a.i(f's_mul_i32 s61, s{sIDX}, {128 * 1152}')
    chunks = [('k', list(range(0, 9))), ('k', list(range(9, 18))), ('v', list(range(0, 9))), ('v', list(range(9, 18))),
              ('q', [j for j in range(18) if j not in LBLK]), ('o', [0, 1]), ('q', LBLK), ('o', [2, 3])]
    karg = {'q': K_WQ, 'k': K_WK, 'v': K_WV, 'o': K_WO}

    def issue(c):
        m, blks = chunks[c]
        buf = (BUF0, BUF1)[c & 1]
        srd(a, 8, karg[m], 576 * 4096 * 2)
        for bi, j in enumerate(blks):
            if m != 'o':
                for hh in range(2):
                    dma(a, vq, WT, sW1k, buf + bi * 8192 + hh * 4096, sH256, (32 * j + 16 * hh) * 8192)
            else:
                for n in range(9):
                    dma(a, v9 + n, WT, 60, buf + bi * 36864 + n * 1024, 61, j * 36864)

    def reads(c, sel=None, dst=None):
        m, blks = chunks[c]
        buf = (BUF0, BUF1)[c & 1]
        for bi, j in enumerate(blks):
            if sel is not None and bi not in sel:
                continue
            if m == 'o':
                for i in range(9):
                    ar, o = (aO8, 0) if i == 8 else ((aO0, aO1)[i & 1], 256 * (i >> 1))
                    tr_frag(a, ds, dst(('o', i, j)), ar, buf + bi * 36864 + o, 1152, 'pair')
            else:
                for b in range(2):
                    tr_frag(a, ds, dst((m, b, j)), (aV0, aV1)[b], buf + bi * 8192, 256, 'sp')
    issue(0)
    issue(1)
    for c in range(6):
        a.waitcnt(vm=18)
        a.i('s_barrier')
        reads(c, dst=lambda k: W[k])
        a.barrier()
        issue(c + 2)
    a.i('v_lshlrev_b32 v33, 4, v0')
    a.i(f's_lshl_b32 s{sXb}, s{sW}, 11')
    a.i(f's_add_u32 s{sYb}, s60, {BUF1}')
    a.waitcnt(vm=18)
    a.i('s_barrier')
    for sel in ([0, 1, 2, 3], [4, 5, 6, 7], [8]):
        tmp = {}
        reads(6, sel, dst=lambda k: tmp.setdefault(k, 40 + 4 * len(tmp)))
        a.barrier()
        a.i(f'v_add_u32 v34, s{sXb}, v33')
        a.i(f'v_add_u32 v34, {sel[0] * 8192}, v34')
        for (m, b, j), r in tmp.items():
            a.i(f'ds_write_b128 v34, {R(r, 4)} offset:{(LBLK.index(j) - sel[0]) * 8192 + b * 1024}')
    a.waitcnt(vm=0)
    a.barrier()
    a.i(f'v_add_u32 v34, s{sYb}, v33')
    for bi in range(2):
        tmp = {}
        reads(7, [bi], dst=lambda k: tmp.setdefault(k, 40 + 4 * len(tmp)))
        a.barrier()
        for (m, i, j), r in tmp.items():
            a.i(f'ds_write_b128 v34, {R(r, 4)} offset:{bi * 36864 + i * 1024}')
    sel_frag(a, SEL, 16, 17)
    bits(a, vMd, 0, [(0, 7, 4), (4, 3, 7)], 16)
    bits(a, vPs, 0, [(0, 7, 4), (4, 3, 12), (3, 1, 30)], 16)
    bits(a, vQw, 0, [(0, 15, 4), (5, 1, 8), (4, 1, 3)], 16)
    bits(a, vQr, 0, [(2, 3, 4), (4, 3, 7), (0, 1, 3)], 16)
    a.i(f's_add_u32 s28, s{sW1k}, {WORK}')
    a.i(f'v_add_u32 v{vQw}, s28, v{vQw}')
    a.i(f'v_add_u32 v{vQr}, s28, v{vQr}')
    a.i(f's_add_u32 s57, s{sXb}, 65536')
    a.i(f's_lshl_b32 s64, s{sW}, 9')
    bits(a, vSh, 0, [(5, 1, 4)], 16)
    a.i(f'v_add_u32 v{vMd}, {WORK}, v{vMd}')
    a.i(f'v_lshlrev_b32 v{vS1}, 2, v0')
    a.i(f'v_add_u32 v{vS1}, {WORK + S1O}, v{vS1}')
    a.i(f'v_lshlrev_b32 v{vLn}, 4, v0')
    a.i(f'v_add_u32 v{vSa}, {WORK}, v{vLn}')
    a.i(f's_lshl_b32 s28, s{sIDX}, 7')
    a.i(f's_add_u32 s{sPst}, s{sPst}, s28')
    a.i(f's_lshr_b32 s28, s{sW}, 1')
    a.i('s_add_u32 s28, s28, 16')
    a.i('s_lshl_b32 s28, s28, 14')
    a.i(f's_add_u32 s{sPs8}, s{sPst}, s28')
    a.i(f's_and_b32 s28, s{sW}, 1')
    a.i('s_lshl_b32 s28, s28, 3')
    a.i(f's_add_u32 s{sPs8}, s{sPs8}, s28')
    a.i(f's_lshl_b32 s28, s{sW}, 14')
    a.i(f's_add_u32 s{sPst}, s{sPst}, s28')
    a.i(f's_mul_i32 s{sAGb}, s{sW}, 3072')
    a.i(f's_lshl_b32 s55, s{sTask}, 7')
    a.i(f's_mul_i32 s{sU}, s{sIDX}, 24576')
    a.i(f's_add_u32 s{sU}, s{sU}, s{sXb}')
    a.i(f's_mul_i32 s28, s{sL}, {64 * QKV_UNIT}')
    a.i(f's_add_u32 s{sU}, s{sU}, s28')
    a.i(f's_add_u32 s{sU}, s{sU}, {QKV + 8192}')
    a.i(f's_lshl_b32 s{sFo}, s{sIDX}, 11')
    a.i(f's_lshl_b32 s28, s{sW}, 9')
    a.i(f's_add_u32 s{sFo}, s{sFo}, s28')
    a.i(f's_lshl_b32 s{sKV}, s{sIDX}, 12')
    a.i(f's_add_u32 s{sKV}, s{sKV}, s28')
    a.i(f's_lshl_b32 s28, s{sL}, 8')
    a.i(f's_add_u32 s{sFo}, s{sFo}, s28')
    a.i(f's_add_u32 s{sFo}, s{sFo}, {F_KV}')
    a.i(f's_lshl_b32 s{sFk}, s{sIDX}, 9')
    a.i(f's_add_u32 s{sFk}, s{sFk}, s28')
    a.i(f's_add_u32 s{sFk}, s{sFk}, {F_KVM - 4}')
    a.i(f's_mul_i32 s28, s{sL}, {64 * KVM_UNIT}')
    a.i(f's_add_u32 s{sKV}, s{sKV}, s28')
    a.i(f's_add_u32 s{sKV}, s{sKV}, {KVM}')
    a.i(f's_mov_b64 s[{sPx}:{sPx + 1}], 0')
    a.i(f's_add_u32 s56, s{sW256}, {(MEMO + 8192 - S1O) & 0xffffffff}')
    a.i(f's_mov_b32 s{sT}, 0')
    wait_init(a, 32)
    a.barrier()
    rt_stamp(a, stamps, 1, 32)

    def I(text, **kw):
        return lambda: a.i(text, **kw)

    def k_loads():
        return [f'buffer_load_dwordx4 {R(KV + 4 * x, 4)}, v{vLn}, {WS}, s{sU} offen offset:{x * 1024} sc1' for x in range(2)]

    def kv_block(code):
        l = spin_head(a, code)
        a.i(f'buffer_load_dword v{vFl}, off, {WS}, s{sFo} sc1')
        a.i(f'v_cmp_eq_u32 vcc, 0, v{vFl}')
        a.i(f's_cbranch_vccnz {l}', nohaz=True)
        for p in k_loads():
            a.i(p)
        a.waitcnt(vm=0)
    kv_block(3)
    a.label('L_ch_loop')
    Ls = [C, Dr + 8]
    r0, r1 = Dr, Dr + 4
    QA, KA = A, A + 8
    a.i(f'v_add_u32 v{vWc}, s57, v{vLn}')

    def lread(J, b):
        for f in range(2):
            a.i(f'ds_read_b128 {R(Ls[b] + 4 * f, 4)}, v{vWc} offset:{(J + f) * 8192 + b * 1024}')
    a.i(f'ds_read_b128 {R(E0, 4)}, v{vWc} offset:0')
    a.i(f'ds_read_b128 {R(E1, 4)}, v{vWc} offset:1024')
    a.i(f'v_add_u32 v{vWc}, s{sXb}, v{vLn}')
    lread(0, 0)
    lread(0, 1)
    for x in range(16):
        a.i(f'v_mov_b32 v{A + x}, 0')
    stamp(a, stamps, 0)
    a.i(f's_add_u32 s60, s{sAG0}, s{sAGb}')
    a.i(f'v_add_u32 v{vT}, s{sAGb}, v{vSa}')
    a.i(f's_mov_b32 s{sTO}, {TIMEOUT}')
    a.i('s_mov_b32 s29, 2')
    a.i(f's_cmp_lg_u32 s{sW}, 3')
    a.i('s_cbranch_scc1 L_ch_ag', nohaz=True)
    a.waitcnt(vm=0)
    a.i('s_branch L_ch_agok')
    a.label('L_ch_ag')
    AG = [r0, r1, KV + 8]
    for i in range(3):
        a.i(f'buffer_load_dwordx4 {R(AG[i], 4)}, v{vLn}, {WS}, s60 offen offset:{i * 1024} sc1')
    a.i(f's_sub_u32 s{sTO}, s{sTO}, 1')
    a.i('s_cbranch_scc1 L_abort', nohaz=True)
    m0 = KV + 12
    for i in range(3):
        r = AG[i]
        a.i(f'ds_write_b128 v{vT}, {R(r, 4)} offset:{MEMO + i * 1024}')
        if i == 0:
            a.i(f'v_max_u32 v{m0}, v{r}, v{r + 1}')
        else:
            a.i(f'v_max3_u32 v{m0}, v{r}, v{r + 1}, v{m0}')
        a.i(f'v_max3_u32 v{m0}, v{r + 2}, v{r + 3}, v{m0}')
    a.i(f'v_cmp_eq_u32 vcc, -1, v{m0}')
    a.i('s_cbranch_vccnz L_ch_ag', nohaz=True)
    a.label('L_ch_agok')
    stamp(a, stamps, 1)
    a.i(f'v_mov_b32 v{vFl}, 0x4444')
    a.i(f'v_mov_b32 v{vT}, 0xeeee')
    a.i(f'v_cndmask_b32 v{vT}, v{vT}, v{vFl}, s[{sM1}:{sM1 + 1}]')
    a.barrier()
    order = [8, 0, 1, 2, 3, 4, 5, 6, 7]
    slot = [r0, r1, KV + 8, KV + 12, r0, E0, E1, r1, r0]
    vslot = [r1, C, C + 4, Dr + 8, Dr + 12, r0, r1, C, C + 4]

    def mread(dst, J):
        a.i(f'ds_read_b128 {R(dst, 4)}, v{vSa} offset:{MEMO + J * 1024}')
    for n in range(4):
        mread(slot[n], order[n])
    stamp(a, stamps, 2)

    def pub():
        a.i(f's_mov_b64 exec, s[{sPx}:{sPx + 1}]')
        a.i(f'buffer_store_dword v{vMd}, off, {WS}, s{sFk} sc1')
        a.vm.pop()
        a.i('s_mov_b64 exec, -1')
    low = [f's_add_u32 s60, s{sU}, 8192', f's_add_u32 s{sFo}, s{sFo}, 4', f'buffer_load_dword v{vFl}, off, {WS}, s{sFo} sc1', pub,
           f's_add_u32 s{sU}, s{sU}, {QKV_UNIT}']
    after = {0: [(4,), (5,), (6,)], 1: [(7,)], 4: [(8,)]}
    for n, J in enumerate(order):
        for oi, (m, b) in enumerate([('q', 0), ('q', 1), ('k', 0), ('k', 1)]):
            acc = (QA if m == 'q' else KA) + 4 * b
            if m == 'q' and J == 8:
                wr = (E0, E1)[b]
            elif (m, b, 2 * J) in W:
                wr = W[(m, b, 2 * J)]
            else:
                wr = Ls[b]
            a.mfma(acc, slot[n], wr, vT, k='sp')
            if wr in Ls and J + 2 < 8:
                lread(J + 2, b)
            if wr in Ls and J == 6:
                for x in (1, 3):
                    if Ls[b] == vslot[x]:
                        mread(vslot[x], order[x])
                        mread(vslot[x + 1], order[x + 1])
            if oi == 3:
                for (x,) in after.get(n, []):
                    mread(slot[x], order[x])
                if n == 2:
                    low.append(f'buffer_load_dwordx4 {R(KV + 8, 4)}, v{vLn}, {WS}, s60 offen sc1')
                if n == 3:
                    low.append(f'buffer_load_dwordx4 {R(KV + 12, 4)}, v{vLn}, {WS}, s60 offen offset:1024 sc1')
                if n == 6:
                    low += [f'v_mov_b32 v{E0 + x}, 0' for x in range(4)]
                if n == 7:
                    low += [f'v_mov_b32 v{E1 + x}, 0' for x in range(4)]
                if n == 7:
                    mread(vslot[0], order[0])
                if n == 8:
                    mread(vslot[5], order[5])
            a.fill(low)
    a.fill(low, 99)
    stamp(a, stamps, 3)
    B = KV
    qf, kf, sm = A, A + 8, A + 12
    X, xm, t0, t1 = A + 4, B + 4, B + 5, B + 6
    G = None

    def bar():
        a.wait_tag('sw')
        stamp(a, stamps, 4)
        a.i('s_barrier')
    def kst():
        a.i(f's_mov_b64 exec, s[{sM1}:{sM1 + 1}]')
        a.i(f'buffer_store_dwordx4 {R(kf, 4)}, v{vMd}, {WS}, s65 offen sc1')
        a.i('s_mov_b64 exec, -1')
    sv = [f's_sub_u32 s65, s{sKV}, {WORK}', G, G]
    for acc in (QA, KA):
        sv += [f'v_permlane32_swap_b32 v{acc + r}, v{acc + 4 + r}' for r in range(4)]
        sv += [f'v_add_f32 v{acc + r}, v{acc + r}, v{acc + 4 + r}' for r in range(4)]
        sv += [f'v_cvt_pk_bf16_f32 v{acc}, v{acc}, v{acc + 1}', f'v_cvt_pk_bf16_f32 v{acc + 1}, v{acc + 2}, v{acc + 3}',
               f'ds_write_b64 v{vQw}, {R(acc, 2)} offset:{SAO + (512 if acc == KA else 0)}']
    sv += [f'ds_read_b64_tr_b16 {R(d + 2 * h, 2)}, v{vQr} offset:{SAO + o + 64 * h}' for d, o in ((qf, 0), (kf, 512)) for h in range(2)]
    sv += [f'v_add_u32 v{vWc}, s{sW256}, v{vS1}', G, G, G, G,
           lambda: a.mfma(B, B, qf, None), lambda: a.mfma(B + 4, B + 4, qf, None), lambda: a.mfma(sm, kf, qf, None),
           kst, f'v_add_u32 v{A + 4}, s{sW1k}, v{vSa}', G, G]
    sv += [f'v_cndmask_b32 v{B + x}, v{B + 4 + x}, v{B + x}, s[{sM1}:{sM1 + 1}]' for x in range(4)]
    sv += [I(f'ds_write_b128 v{A + 4}, {R(B, 4)} offset:{SAO}', tag='sw'),
           f'v_cndmask_b32 v{sm}, v{sm}, v{sm + 1}, s[{sHi}:{sHi + 1}]',
           f'v_cndmask_b32 v{sm + 2}, v{sm + 2}, v{sm + 3}, s[{sHi}:{sHi + 1}]',
           f'v_cndmask_b32 v{sm}, v{sm + 2}, v{sm}, s[{sM1}:{sM1 + 1}]',
           I(f'ds_write_b32 v{vWc}, v{sm}', tag='sw'), G, G, G, bar]
    sv += [f'ds_read_b128 {R(A + 4 * w, 4)}, v{vSa} offset:{SAO + w * 1024}' for w in range(4)]
    sv += [f'ds_read2st64_b32 {R(B + 4, 2)}, v{vS1} offset0:0 offset1:1', f'ds_read2st64_b32 {R(B + 6, 2)}, v{vS1} offset0:2 offset1:3',
           G, G, G, G, G, G]
    wring = [Dr, Dr + 4, Dr + 8, KV + 8, KV + 12]
    groups = [(0, 1), (2, 3), (4, 5), (6, 7, 8)]
    lorder = [(i, kb) for g in groups for kb in (2, 3) for i in g]

    def wread(n):
        i, kb = lorder[n]
        a.i(f'ds_read_b128 {R(wring[n % 5], 4)}, v{vWc} offset:{(kb - 2) * 36864 + i * 1024}')
    nv = 0
    while sv or nv < 18:
        if nv < 18:
            n, b = divmod(nv, 2)
            a.mfma((E0, E1)[b], vslot[n], W[('v', b, 2 * order[n])], vT, k='sp')
            if b == 1 and n < 3:
                mread(vslot[n + 6], order[n + 6])
            nv += 1
        while sv:
            p = sv.pop(0)
            if p is None:
                if nv < 18:
                    break
                continue
            p() if callable(p) else a.i(p)
    stamp(a, stamps, 5)
    ON, LS = C + 4, Dr + 12
    P, Pm = A, C + 2
    OA, OB = A + 8, A + 12
    a.i(f'v_add_u32 v{vWc}, s{sYb}, v{vLn}')
    Q2 = lambda r: R(r, 2)
    for x in (0, 2):
        a.i(f'v_pk_add_f32 {Q2(A + x)}, {Q2(A + x)}, {Q2(A + 4 + x)}')
        a.i(f'v_pk_add_f32 {Q2(A + 8 + x)}, {Q2(A + 8 + x)}, {Q2(A + 12 + x)}')
    a.i(f'v_pk_add_f32 {Q2(B + 4)}, {Q2(B + 4)}, {Q2(B + 6)}')
    for x in (0, 2):
        a.i(f'v_pk_add_f32 {Q2(X + x)}, {Q2(A + x)}, {Q2(A + 8 + x)}')
    a.i(f'v_add_f32 v{xm}, v{B + 4}, v{B + 5}')
    a.i(f'v_max3_f32 v{t0}, v{X}, v{X + 1}, v{X + 2}')
    a.i(f'v_max3_f32 v{t0}, v{X + 3}, v{xm}, v{t0}')
    fl = [f'v_permlane32_swap_b32 v{E0 + r}, v{E1 + r}' for r in range(4)] + \
         [f'v_pk_add_f32 {Q2(E0 + x)}, {Q2(E0 + x)}, {Q2(E1 + x)}' for x in (0, 2)]
    for p in fl[:2]:
        a.i(p)
    a.i(f'v_max_f32_dpp v{t0}, v{t0}, v{t0} row_ror:8 row_mask:0xf bank_mask:0xf')
    for ix, sw in enumerate((16, 32)):
        a.i(f'v_mov_b32 v{t1}, v{t0}')
        for p in fl[2 + 2 * ix:4 + 2 * ix]:
            a.i(p)
        a.i(f'v_permlane{sw}_swap_b32 v{t0}, v{t1}')
        a.i(f'v_max_f32 v{t0}, v{t0}, v{t1}')
    a.i(f'v_mul_f32 v{t0}, s{sC}, v{t0}')
    for r in (X, X + 1, X + 2, X + 3, xm):
        a.i(f'v_fma_f32 v{r}, v{r}, s{sC}, -v{t0}')
    for r in (X, X + 1, X + 2, X + 3, xm):
        a.i(f'v_exp_f32 v{r}, v{r}')
    a.i(f'v_cvt_pk_bf16_f32 v{E1}, v{E0}, v{E0 + 1}')
    a.i(f'v_cvt_pk_bf16_f32 v{E1 + 1}, v{E0 + 2}, v{E0 + 3}')
    a.i(f'v_cvt_pk_bf16_f32 v{P}, v{X}, v{X + 1}')
    a.i(f'v_cvt_pk_bf16_f32 v{P + 1}, v{X + 2}, v{X + 3}')
    a.i(f'v_cvt_pk_bf16_f32 v{Pm}, v{xm}, 0')
    a.i(f'v_mov_b32_dpp v{P + 2}, v{P} row_ror:8 row_mask:0xf bank_mask:0xf')
    a.i(f'v_mov_b32_dpp v{P + 3}, v{P + 1} row_ror:8 row_mask:0xf bank_mask:0xf')
    a.i(f'v_lshlrev_b32 v{Pm}, v{vSh}, v{Pm}')
    a.i(f'v_mov_b32 v{E1 + 2}, v{E1}')
    a.mfma(OA, B + 8, P, None)
    a.i(f'v_mov_b32 v{E1 + 3}, v{E1 + 1}')
    a.i(f'v_mov_b32_dpp v{Pm + 1}, v{Pm} row_ror:8 row_mask:0xf bank_mask:0xf')
    a.mfma(OB, B + 12, P, None)
    a.i(f'v_permlane32_swap_b32 v{E1}, v{E1 + 2}')
    a.i(f'v_permlane32_swap_b32 v{E1 + 1}, v{E1 + 3}')
    for x in range(4):
        a.i(f'v_mov_b32 v{ON + x}, 0x3f803f80')
    a.mfma(OA, E1, Pm, OA, k=16)
    a.mfma(LS, ON, P, None)
    wread(0)
    a.mfma(OB, E1 + 2, Pm, OB, k=16)
    wread(1)
    a.mfma(LS, ON, Pm, LS, k=16)
    a.i(f'v_cmp_eq_u32 s[58:59], 0, v{vFl}')
    a.i(f's_not_b64 exec, s[{sHi}:{sHi + 1}]')
    a.i(f'buffer_store_dwordx4 {R(E1, 4)}, v{vLn}, {WS}, s{sKV} offen offset:2048 sc1')
    a.i('s_not_b64 exec, s[58:59]')
    vm = list(a.vm)
    for p in k_loads():
        a.i(p)
    a.vm = vm
    a.i(f's_mov_b64 exec, s[{sM1}:{sM1 + 1}]')
    a.i(f'v_add_u32 v{vT}, s64, v{vMd}')
    a.i(f'v_rcp_f32 v{LS}, v{LS}')
    a.i(f's_cmp_eq_u32 s{sT}, 63')
    for x in range(0, 8, 2):
        a.i(f'v_pk_mul_f32 {R(OA + x, 2)}, {R(OA + x, 2)}, {R(LS, 2)} op_sel_hi:[1,0]')
    for x in range(4):
        a.i(f'v_cvt_pk_bf16_f32 v{P + x}, v{OA + 2 * x}, v{OA + 2 * x + 1}')
    a.i(f'ds_write_b128 v{vT}, {R(P, 4)} offset:{OO}')
    a.i('s_mov_b64 exec, -1')
    a.i('s_cbranch_scc1 L_ch_end', nohaz=True)
    a.barrier()
    for kb in (2, 0, 3, 1):
        a.i(f'ds_read_b128 {R(A + 4 * kb, 4)}, v{vMd} offset:{OO + kb * 512}')
    wread(2)
    wread(3)
    wread(4)
    stamp(a, stamps, 6)
    low = [f's_mov_b32 s60, s{sPst}', f's_add_u32 s{sKV}, s{sKV}, {KVM_UNIT}', f's_add_u32 s63, s55, s{sAG0}',
           f's_add_u32 s62, s55, s{sAG1}',
           lambda: (a.i(f's_cmp_eq_u32 s{sW}, 3'), a.i(f's_cselect_b32 s{sPx}, 1, 0')), f's_add_u32 s{sFk}, s{sFk}, 4']
    RL = [A, A + 4, A + 8, A + 12]
    rs = [f'buffer_load_dwordx4 {R(RL[i], 4)}, v{vLn}, {WS}, s{sRS} offen offset:{i * 1024} sc1' for i in range(4)]
    ln = 0
    for gi, g in enumerate(groups):
        n = 0
        for kb in (2, 0, 3, 1):
            for i in g:
                acc = ((C, C + 4), (E0, E1))[gi & 1][i & 1] if i < 8 else Dr + 12
                if kb < 2:
                    a.mfma(acc, W[('o', i, kb)], A + 4 * kb, acc)
                else:
                    a.mfma(acc, wring[ln % 5], A + 4 * kb, None if kb == 2 else acc)
                    if ln + 5 < 18:
                        wread(ln + 5)
                    ln += 1
                n += 1
                if n >= 3 or gi == 0:
                    a.fill(low, 3)
        a.fill(low, 99)
        pk, p2 = ((C, C + 4), (E0, E1))[gi & 1]
        low = [f'v_cvt_pk_bf16_f32 v{pk + x}, v{(pk, p2 - 4)[x >> 1] + 2 * x}, v{(pk, p2 - 4)[x >> 1] + 2 * x + 1}' for x in range(4)]
        low.insert(1, f'v_bfi_b32 v{pk}, 1, s{sT}, v{pk}')
        low += [f'v_bfi_b32 v{pk + 2}, 1, s{sT}, v{pk + 2}', f'buffer_store_dwordx4 {R(pk, 4)}, v{vPs}, {WS}, s60 offen']
        if gi < 3:
            low.append('s_add_u32 s60, s60, 65536')
    a.i(f's_cmp_ge_u32 s{sTask}, 72')
    a.i(f's_mov_b32 s{sTO}, {TIMEOUT}')
    a.i('s_mov_b32 s29, 4')
    a.fill(low, 99)
    t8 = Dr + 12
    a.i(f'v_cvt_pk_bf16_f32 v{t8}, v{t8}, v{t8 + 1}')
    a.i(f'v_cvt_pk_bf16_f32 v{t8 + 1}, v{t8 + 2}, v{t8 + 3}')
    a.i(f'v_bfi_b32 v{t8}, 1, s{sT}, v{t8}')
    a.i(f'buffer_store_dwordx2 {R(t8, 2)}, v{vPs}, {WS}, s{sPs8} offen')
    stamp(a, stamps, 7)
    a.i('s_cbranch_scc1 L_ch_next', nohaz=True)
    a.i(f's_cmp_eq_u32 s{sW}, 0')
    a.i('s_cbranch_scc1 L_ch_rs', nohaz=True)
    a.waitcnt(vm=0)
    a.label('L_ch_rs')
    for p in rs:
        a.i(p)
    a.i(f's_sub_u32 s{sTO}, s{sTO}, 1')
    a.i('s_cbranch_scc1 L_abort', nohaz=True)
    a.i(f'v_mov_b32 v{Dr + 2}, -1')
    a.i(f'v_mov_b32 v{Dr + 3}, -1')
    R4, T4 = Dr + 4, Dr + 8
    for i in range(4):
        a.mfma(R4, SEL, RL[i], None if i == 0 else R4)
        a.i(f'v_bitop3_b32 v{T4 + i}, v{RL[i]}, v{RL[i] + 2}, s{sT} bitop3:0x7e')
    a.i(f'v_or3_b32 v{T4}, v{T4}, v{T4 + 1}, v{T4 + 2}')
    a.i(f'v_bitop3_b32 v{T4}, v{T4}, v{T4 + 3}, 1 bitop3:0xa8')
    a.i(f'v_cmp_ne_u32 vcc, 0, v{T4}')
    a.i('s_cbranch_vccnz L_ch_rs', nohaz=True)
    for x in range(4):
        a.i(f'v_add_f32_dpp v{R4 + x}, v{R4 + x}, v{R4 + x} row_ror:8 row_mask:0xf bank_mask:0xf')
    a.i(f'v_cvt_pk_bf16_f32 v{Dr}, v{R4}, v{R4 + 1}')
    a.i(f'v_cvt_pk_bf16_f32 v{Dr + 1}, v{R4 + 2}, v{R4 + 3}')
    a.i(f'v_min_u32 v{Dr}, -2, v{Dr}')
    a.i(f'v_min_u32 v{Dr + 1}, -2, v{Dr + 1}')
    a.i(f'buffer_store_dwordx2 {R(Dr, 2)}, v{vAg}, {WS}, s62 offen')
    a.i(f'buffer_store_dwordx2 {R(Dr + 2, 2)}, v{vAg}, {WS}, s63 offen')
    a.label('L_ch_next')
    stamp(a, stamps, 8)
    stamp_flush(a, stamps, 9, sT, A)
    a.i(f's_mov_b32 s60, s{sAG0}')
    a.i(f's_mov_b32 s{sAG0}, s{sAG1}')
    a.i(f's_mov_b32 s{sAG1}, s{sAG2}')
    a.i(f's_mov_b32 s{sAG2}, s60')
    a.i(f's_add_u32 s{sT}, s{sT}, 1')
    a.i('s_cmp_eq_u64 s[58:59], 0')
    a.i('s_cbranch_scc1 L_ch_loop')
    kv_block(6)
    a.i('s_branch L_ch_loop')
    a.label('L_ch_end')
    a.waitcnt(vm=0, lg=0)
    a.i('s_barrier')
    rt_stamp(a, stamps, 2, 32)
    a.i(f's_cmp_lg_u32 s{sW}, 3')
    a.i('s_cbranch_scc1 L_exit')
    a.i('s_mov_b64 exec, 1')
    a.i(f'buffer_store_dword v{vMd}, off, {WS}, s{sFk} offset:4 sc1')
    a.i('s_endpgm')
    a.out += a.tail
    a.tail = []
```

```python
from asmlib import *
from layout import *
import os

WS = 's[4:7]'
WT = 's[8:11]'
IO = 's[12:15]'
DBG = 's[16:19]'
sW, sIDX, sGID, sTO = 20, 21, 22, 23
sL = 24
TIMEOUT = 1 << 15
BUF0, BUF1 = 0, 73728


def srd(a, base, karg, nbytes):
    a.i(f's_load_dwordx2 s[{base}:{base + 1}], s[0:1], {karg}')
    a.i(f's_mov_b32 s{base + 2}, {nbytes}')
    a.i(f's_mov_b32 s{base + 3}, 0x20000')
    a.waitcnt(lg=0)


def prologue(a, roles):
    if os.environ.get('DBGT'):
        a.i('s_memrealtime s[74:75]')
    a.i(f's_load_dwordx2 s[4:5], s[0:1], {K_WS}')
    a.i(f's_load_dwordx2 s[16:17], s[0:1], {K_DBG}')
    a.i(f's_load_dwordx2 s[8:9], s[0:1], {K_WQ}')
    a.i(f's_load_dwordx2 s[12:13], s[0:1], {K_X}')
    a.i('s_getreg_b32 s25, hwreg(HW_REG_XCC_ID)')
    a.i('s_and_b32 s25, s25, 7')
    a.i('v_lshrrev_b32 v1, 6, v0')
    a.i(f'v_readfirstlane_b32 s{sW}, v1')
    a.i(f's_mov_b32 s6, {WS_BYTES}')
    a.i('s_mov_b32 s7, 0x20000')
    a.i('s_mov_b32 s10, 0')
    a.i('s_mov_b32 s11, 0x20000')
    a.i('s_mov_b32 s14, 0')
    a.i('s_mov_b32 s15, 0x20000')
    a.i('s_mov_b32 s18, 256')
    a.i('s_mov_b32 s19, 0x20000')
    a.i('v_lshlrev_b32 v4, 3, v0')
    a.i('v_and_b32 v0, 63, v0')
    a.i('v_mov_b32 v2, 1')
    a.i('s_lshl_b32 s26, s25, 5')
    a.i('v_mov_b32 v3, s26')
    a.i('v_mov_b32 v5, 0')
    a.waitcnt(lg=0)
    a.i(f's_cmp_lg_u32 s{sW}, 0')
    a.i('s_cbranch_scc1 L_tick_done')
    a.i('s_mov_b64 exec, 1')
    a.i(f'buffer_atomic_add v2, v3, {DBG}, 0 offen sc0 sc1')
    a.i('ds_write_b32 v5, v2')
    a.i('s_mov_b64 exec, -1')
    a.label('L_tick_done')
    a.waitcnt(vm=0, lg=0)
    a.i('s_barrier')
    a.i('ds_read_b32 v2, v5')
    a.i('v_readfirstlane_b32 s27, v2')
    a.i('s_cmp_ge_u32 s27, 32')
    a.i('s_cbranch_scc1 L_exit')
    a.i(f's_add_u32 s{sGID}, s26, s27')
    a.i('s_barrier')
    a.i('s_getpc_b64 s[68:69]')
    a.out.append('L_pc:')
    a.i('s_mov_b32 s70, L_code_end-L_pc')
    a.i('s_mov_b32 s71, 0x20000')
    a.i('s_lshl_b32 s72, s27, 12')
    a.i(f's_lshl_b32 s28, s{sW}, 10')
    a.i('s_add_u32 s72, s72, s28')
    a.i('v_mov_b32 v6, 0')
    a.i('v_mov_b32 v7, 0')
    a.i(f's_lshl_b32 s28, s{sGID}, 11')
    a.i(f'buffer_store_dwordx2 v[6:7], v4, {WS}, s28 offen sc1')
    a.i(f's_and_b32 s{sL}, s25, 1')
    a.i('s_lshr_b32 s25, s25, 1')
    a.i(f's_mov_b32 s{sIDX}, s27')
    a.i('s_cmp_eq_u32 s25, 0')
    a.i(f's_cbranch_scc1 {roles["chain"]}')
    a.i('s_bitcmp1_b32 s27, 0')
    a.i('s_cbranch_scc1 L_disp_odd')
    a.i(f's_lshr_b32 s{sIDX}, s27, 1')
    a.i('s_cmp_eq_u32 s25, 1')
    a.i(f's_cbranch_scc1 {roles["oproj"]}')
    a.i('s_cmp_eq_u32 s25, 2')
    a.i(f's_cbranch_scc1 {roles["down"]}')
    a.i(f's_lshr_b32 s{sIDX}, s27, 2')
    a.i('s_bitcmp0_b32 s27, 1')
    a.i(f's_cbranch_scc1 {roles["atn"]}')
    a.i(f's_add_u32 s{sIDX}, s{sIDX}, 24')
    a.i(f's_branch {roles["proj"]}')
    a.label('L_disp_odd')
    a.i('s_lshl_b32 s28, s25, 3')
    a.i(f's_lshr_b32 s{sIDX}, s27, 2')
    a.i(f's_add_u32 s{sIDX}, s{sIDX}, s28')
    a.i(f's_sub_u32 s{sIDX}, s{sIDX}, 8')
    a.i('s_bitcmp1_b32 s27, 1')
    a.i(f's_cbranch_scc1 {roles["proj"]}')
    a.i(f's_branch {roles["up"]}')
    a.label('L_spare')
    arrive(a)
    a.label('L_exit')
    a.i('s_endpgm')
    a.label('L_abort')
    a.i('s_mov_b64 exec, 1')
    a.i(f's_lshl_b32 s28, s{sGID}, 8')
    a.i('s_or_b32 s29, s29, s28')
    a.i(f's_lshl_b32 s28, s{sW}, 16')
    a.i('s_or_b32 s29, s29, s28')
    a.i('s_or_b32 s29, s29, 0x40000000')
    a.i('v_mov_b32 v2, s29')
    a.i(f'buffer_store_dword v2, off, {DBG}, 0 offset:20 sc1')
    a.i('s_endpgm')


def arrive(a, v=2):
    l = a.new('L_arr')
    a.waitcnt(vm=0)
    a.i('s_barrier')
    a.i(f's_cmp_lg_u32 s{sW}, 0')
    a.i(f's_cbranch_scc1 {l}')
    a.i('s_mov_b64 exec, 1')
    a.i(f'v_mov_b32 v{v}, 1')
    a.i(f'buffer_atomic_add v{v}, off, {DBG}, 0 offset:16 sc1')
    a.i('s_mov_b64 exec, -1')
    a.label(l)


def spin_head(a, code):
    a.i(f's_mov_b32 s{sTO}, {TIMEOUT}')
    a.i(f's_mov_b32 s29, {code}')
    l = a.new('L_spin')
    a.label(l)
    a.i(f's_sub_u32 s{sTO}, s{sTO}, 1')
    a.i('s_cbranch_scc1 L_abort')
    return l


def code_touch(a, v):
    if not os.environ.get('CT'):
        return
    a.i(f'v_mbcnt_lo_u32_b32 v{v}, -1, 0')
    a.i(f'v_mbcnt_hi_u32_b32 v{v}, -1, v{v}')
    a.i(f'v_lshlrev_b32 v{v}, 4, v{v}')
    a.i(f'buffer_load_dword v{v}, v{v}, s[68:71], s72 offen')
    a.waitcnt(vm=0)


def wait_init(a, v=2):
    code_touch(a, v)
    l = spin_head(a, 1)
    a.i('s_sleep 4')
    a.i(f'buffer_load_dword v{v}, off, {DBG}, 0 offset:16 sc1')
    a.i(f'v_cmp_gt_u32 vcc, 256, v{v}')
    a.i(f's_cbranch_vccnz {l}')


class DsAddr:
    def __init__(self, a, tmp):
        self.a, self.tmp, self.cur = a, tmp, None

    def __call__(self, reg, off):
        if off < 65536:
            return f'v{reg}', off
        hi = off & ~0x7fff
        if self.cur != (reg, hi):
            if self.cur and self.cur[0] == reg and 0 <= off - self.cur[1] < 65536:
                return f'v{self.tmp}', off - self.cur[1]
            self.a.i(f'v_add_u32 v{self.tmp}, {hi}, v{reg}')
            self.cur = (reg, hi)
        return f'v{self.tmp}', off - hi


def bits(a, dst, src, spec, tmp):
    first = True
    for s, m, d in spec:
        t = dst if first else tmp
        a.i(f'v_lshrrev_b32 v{t}, {s}, v{src}')
        a.i(f'v_and_b32 v{t}, {m}, v{t}')
        if first:
            if d:
                a.i(f'v_lshlrev_b32 v{t}, {d}, v{t}')
        else:
            a.i(f'v_lshl_or_b32 v{dst}, v{t}, {d}, v{dst}')
        first = False


SWZ = {
    ('p2', 'pair'): [(0, 7, 1)],
    ('p1', 'pair'): [(1, 3, 1)],
    ('p1', 'nat'): [(1, 1, 1), (3, 1, 2)],
    ('p2', 'nat'): [(0, 3, 1), (3, 1, 3)],
    ('p2', 'sp'): [(0, 1, 1), (2, 1, 2)],
    'x': [(1, 7, 0)],
}


def dma_voff_pow2(a, dst, upr, gpitch, swz, t0, t1):
    lg = {8: 3, 16: 4}[upr]
    rpi = 64 // upr
    a.i(f'v_lshrrev_b32 v{t0}, {lg}, v0')
    a.i(f's_mul_i32 s28, s{sW}, {rpi}')
    a.i(f'v_add_u32 v{t0}, s28, v{t0}')
    bits(a, dst, t0, swz, t1)
    a.i(f'v_and_b32 v{t1}, {upr - 1}, v0')
    a.i(f'v_xor_b32 v{dst}, v{dst}, v{t1}')
    a.i(f'v_lshlrev_b32 v{dst}, 4, v{dst}')
    a.i(f'v_mul_u32_u24 v{t0}, {gpitch}, v{t0}')
    a.i(f'v_add_u32 v{dst}, v{dst}, v{t0}')


def dma_voff_72(a, dst9, swz, t0, t1, t2, upr=72, gpitch=1152):
    magic = {72: 911, 24: 2731}[upr]
    assert all((u * magic) >> 16 == u // upr for u in range(8 * upr))
    a.i(f's_lshl_b32 s28, s{sW}, 3')
    for n in range(upr // 8):
        d = dst9 + n
        a.i(f'v_add_u32 v{t2}, {64 * n}, v0')
        a.i(f'v_mul_u32_u24 v{t0}, {magic}, v{t2}')
        a.i(f'v_lshrrev_b32 v{t0}, 16, v{t0}')
        a.i(f'v_mul_u32_u24 v{t1}, {upr}, v{t0}')
        a.i(f'v_sub_u32 v{t2}, v{t2}, v{t1}')
        a.i(f'v_add_u32 v{t0}, s28, v{t0}')
        bits(a, d, t0, swz, t1)
        a.i(f'v_xor_b32 v{d}, v{d}, v{t2}')
        a.i(f'v_lshlrev_b32 v{d}, 4, v{d}')
        a.i(f'v_mul_u32_u24 v{t0}, {gpitch}, v{t0}')
        a.i(f'v_add_u32 v{d}, v{d}, v{t0}')


def dma(a, voff, srdn, s_lds, lds_off, s_src, src_off, mods='', tag=None):
    a.i(f's_add_u32 m0, s{s_lds}, {lds_off}')
    a.i(f's_add_u32 s28, s{s_src}, {src_off}')
    a.i(f'buffer_load_dwordx4 v{voff}, {srdn}, s28 offen{mods} lds', tag=tag)


def tr_addr(a, dst, pitch, korder, swz, unit_expr, sub_expr, t0, t1):
    if korder == 'pair':
        a.i(f'v_lshrrev_b32 v{t0}, 2, v0')
    elif korder == 'sp':
        bits(a, t0, 0, [(2, 1, 0), (3, 1, 2), (5, 1, 3), (4, 1, 4)], t1)
    else:
        bits(a, t0, 0, [(2, 3, 0), (4, 3, 3)], t1)
    bits(a, dst, t0, swz, t1)
    unit_expr(t1)
    a.i(f'v_xor_b32 v{dst}, v{dst}, v{t1}')
    a.i(f'v_lshlrev_b32 v{dst}, 4, v{dst}')
    a.i(f'v_mul_u32_u24 v{t0}, {pitch}, v{t0}')
    a.i(f'v_add_u32 v{dst}, v{dst}, v{t0}')
    if sub_expr:
        sub_expr(t1)
        a.i(f'v_add_u32 v{dst}, v{dst}, v{t1}')


def tr_frag(a, ds, dreg, areg, off, pitch, korder):
    half = {'pair': 16, 'nat': 4, 'sp': 2}[korder] * pitch
    for h in range(2):
        r, o = ds(areg, off + h * half)
        a.i(f'ds_read_b64_tr_b16 {R(dreg + 2 * h, 2)}, {r} offset:{o}')


import os
PROF = os.environ.get('PROF')


LITE = os.environ.get('LITE')


def stamp(a, on, k):
    if LITE:
        return
    if on and PROF:
        if k == 0:
            a.prof([int(x) for x in PROF.split(',')])
        return
    if on:
        a.i(f'{"s_memrealtime" if os.environ.get("RT") else "s_memtime"} s[{80 + 2 * k}:{81 + 2 * k}]')


def stamp_flush(a, on, n, sstep, v0):
    if not on or LITE:
        return
    if PROF:
        n = len(PROF.split(',')) + 1
        a.i(f's_memtime s[{80 + 2 * (n - 1)}:{81 + 2 * (n - 1)}]')
        a.pm = None
    a.waitcnt(lg=0)
    for k in range(n):
        a.i(f'v_mov_b32 v{v0 + k}, s{80 + 2 * k}')
    a.i(f's_lshl_b32 s28, s{sstep}, 8')
    a.i(f's_add_u32 s28, s28, s{sGID}')
    a.i('s_lshl_b32 s28, s28, 2')
    a.i(f's_add_u32 s28, s28, s{sW}')
    a.i('s_lshl_b32 s28, s28, 6')
    a.i(f's_add_u32 s28, s28, {STAMP + 65536}')
    a.i('s_mov_b64 exec, 1')
    for k in range(0, n, 4):
        a.i(f'buffer_store_dwordx4 {R(v0 + k, 4)}, off, {WS}, s28 offset:{4 * k}')
    a.i('s_mov_b64 exec, -1')


def rt_stamp(a, on, slot, v0=8):
    if not on:
        return
    if os.environ.get('DBGT'):
        tab = {0: [(0, 1), (31, 9)], 1: [(0, 2), (31, 10), (67, 11), (32, 12)], 2: [(0, 3), (32, 6), (160, 7), (128, 13), (64, 14)]}[slot]
        for gid, word in tab:
            l = a.new('L_rt')
            a.i(f's_lshl_b32 s28, s{sW}, 8')
            a.i(f's_add_u32 s28, s28, s{sGID}')
            a.i(f's_cmp_lg_u32 s28, {gid}')
            a.i(f's_cbranch_scc1 {l}')
            a.i('s_memrealtime s[76:77]')
            a.waitcnt(lg=0)
            a.i('s_sub_u32 s76, s76, s74')
            a.i(f'v_mov_b32 v{v0}, s76')
            a.i('s_mov_b64 exec, 1')
            a.i(f'buffer_store_dword v{v0}, off, {DBG}, 0 offset:{word * 4} sc1')
            a.i('s_mov_b64 exec, -1')
            a.label(l)
        return
    l = a.new('L_rt')
    a.i(f's_cmp_lg_u32 s{sW}, 0')
    a.i(f's_cbranch_scc1 {l}')
    a.i('s_memrealtime s[76:77]')
    a.waitcnt(lg=0)
    a.i(f'v_mov_b32 v{v0}, s76')
    a.i(f's_lshl_b32 s28, s{sGID}, 6')
    a.i(f's_add_u32 s28, s28, {STAMP}')
    a.i('s_mov_b64 exec, 1')
    a.i(f'buffer_store_dword v{v0}, off, {WS}, s28 offset:{slot * 4}')
    a.i('s_mov_b64 exec, -1')
    a.label(l)


def sel_frag(a, dst, t0, t1, dual=False):
    a.i(f'v_and_b32 v{t0}, 1, v0')
    a.i(f'v_lshlrev_b32 v{t0}, 4, v{t0}')
    a.i(f'v_mov_b32 v{t1}, 0x3f80')
    a.i(f'v_lshlrev_b32 v{t1}, v{t0}, v{t1}')
    if dual:
        a.i(f'v_lshrrev_b32 v{t0}, 2, v0')
        a.i(f'v_xor_b32 v{t0}, v{t0}, v0')
        a.i(f'v_and_b32 v{t0}, 8, v{t0}')
        a.i(f'v_cmp_eq_u32 vcc, 0, v{t0}')
        a.i(f'v_cndmask_b32 v{t1}, 0, v{t1}, vcc')
    a.i(f'v_bfe_u32 v{t0}, v0, 1, 2')
    for k in range(4):
        a.i(f'v_cmp_eq_u32 vcc, {k}, v{t0}')
        a.i(f'v_cndmask_b32 v{dst + k}, 0, v{t1}, vcc')
```

```python
import math
from common import *
from chain import f2u

vLn, vPs, vP1, vR1, vR2, vT1, vT2, vTr, vL2, vFa, vFl, vT, vKm, vVm, vXb, vXq = range(16)
SEL = 16
sS, sTag, sPst, sRd, sRes, sYo, sFp, sFn, sIn, sSl, sW1k, sSp, sPre, sLb, sDx = range(30, 45)
TBO = 16384
INB = 32768


def kstage(a, W, nkb, karg, nbytes, sbase, ko):
    v9, at, tA = 24, 33, 37
    sw = SWZ['p1', ko]
    dma_voff_72(a, v9, sw, 40, 41, 42)
    a.i(f's_mul_i32 s62, s{sW}, 18')
    for i in range(4):
        def un(t, i=i):
            a.i(f'v_bfe_u32 v{t}, v0, 1, 1')
            a.i(f'v_add_u32 v{t}, s62, v{t}')
            if i:
                a.i(f'v_add_u32 v{t}, {2 * i}, v{t}')

        def sub(t):
            a.i(f'v_and_b32 v{t}, 1, v0')
            a.i(f'v_lshlrev_b32 v{t}, 3, v{t}')
        tr_addr(a, at + i, 1152, ko, sw, un, sub, 40, 41)
    ds = DsAddr(a, tA)
    a.i(f's_mul_i32 s60, s{sW}, 9216')
    srd(a, 8, karg, nbytes)
    chunks = [list(range(k, min(k + 2, nkb))) for k in range(0, nkb, 2)]

    def issue(c):
        for bi, kb in enumerate(chunks[c]):
            for n in range(9):
                dma(a, v9 + n, WT, 60, (BUF0, BUF1)[c & 1] + bi * 36864 + n * 1024, sbase, kb * 36864)
    issue(0)
    issue(1)
    for c in range(len(chunks)):
        a.waitcnt(vm=9 * len(chunks[c + 1]) if c + 1 < len(chunks) else 0)
        a.i('s_barrier')
        for bi, kb in enumerate(chunks[c]):
            for i in range(9):
                tr_frag(a, ds, W[(i, kb)], at + (i & 3), (BUF0, BUF1)[c & 1] + bi * 36864 + 128 * (i >> 2), 1152, ko)
        a.barrier()
        if c + 2 < len(chunks):
            issue(c + 2)


def kinit(a, grp):
    a.i(f's_lshl_b32 s{sW1k}, s{sW}, 10')
    a.i(f's_add_u32 s28, s{sL}, {grp}')
    a.i(f's_mul_i32 s{sSl}, s28, {2 * PRS_SLOT}')
    a.i(f's_add_u32 s{sSl}, s{sSl}, {PRS}')
    a.i(f's_mul_i32 s{sRd}, s{sIDX}, {UNIT}')
    a.i(f's_add_u32 s{sRd}, s{sRd}, s{sSl}')
    a.i('v_lshlrev_b32 v10, 4, v0')
    for k in range(4):
        a.i(f'v_mov_b32 v{16 + k}, 1')
    a.i(f's_mul_i32 s60, s{sW}, 9216')
    a.i(f's_add_u32 s60, s60, s{sRd}')
    for sl in range(2):
        for n in range(9):
            a.i(f's_add_u32 s28, s60, {sl * PRS_SLOT + n * 1024}')
            a.i(f'buffer_store_dwordx4 v[16:19], v10, {WS}, s28 offen')
    arrive(a)


def ksetup(a, bufbytes):
    t0, t1, t2 = 40, 41, 42
    sel_frag(a, SEL, t0, t1)
    a.i(f'v_lshrrev_b32 v{t0}, 4, v0')
    a.i(f'v_and_b32 v{t1}, 15, v0')
    a.i(f'v_mul_u32_u24 v{t2}, {2 * UNIT}, v{t0}')
    a.i(f'v_lshl_add_u32 v{vPs}, v{t1}, 3, v{t2}')
    a.i(f'v_lshl_add_u32 v{vP1}, v{t1}, 2, v{t2}')
    a.i(f's_mul_i32 s60, s{sW}, 576')
    a.i(f's_add_u32 s61, s60, {TBO}')
    bits(a, vT1, 0, [(0, 7, 3), (3, 1, 7), (4, 1, 2)], t2)
    a.i(f'v_add_u32 v{vT1}, s61, v{vT1}')
    bits(a, vT2, 0, [(0, 3, 4), (4, 1, 3)], t2)
    a.i(f'v_add_u32 v{vT2}, s61, v{vT2}')
    a.i(f'v_mul_u32_u24 v{t2}, 2304, v{t0}')
    a.i(f'v_lshl_add_u32 v{vR1}, v{t1}, 4, v{t2}')
    bits(a, t1, 0, [(2, 3, 2), (4, 3, 0)], t2)
    a.i(f'v_mul_u32_u24 v{vR2}, 2304, v{t1}')
    a.i(f'v_and_b32 v{t1}, 3, v0')
    a.i(f'v_lshl_add_u32 v{vR2}, v{t1}, 4, v{vR2}')
    a.i(f's_lshr_b32 s61, s{sW}, 1')
    a.i(f's_mul_i32 s62, s61, 2304')
    a.i(f's_add_u32 s62, s62, {TBO}')
    a.i(f'v_lshlrev_b32 v{vTr}, 5, v0')
    a.i(f'v_add_u32 v{vTr}, s62, v{vTr}')
    a.i(f'v_lshlrev_b32 v{vL2}, 1, v0')
    a.i(f's_mul_i32 s{sPst}, s{sIDX}, 2304')
    a.i(f's_mul_i32 s61, s61, 1152')
    a.i(f's_add_u32 s{sRes}, s{sPst}, s61')
    a.i(f's_add_u32 s{sPst}, s{sPst}, s60')
    a.i(f's_add_u32 s{sPst}, s{sPst}, s{sSl}')
    a.i(f's_add_u32 s{sRd}, s{sRd}, s60')
    a.i(f's_lshl_b32 s{sFp}, s{sIDX}, 11')
    a.i(f's_lshl_b32 s28, s{sW}, 9')
    a.i(f's_add_u32 s{sFp}, s{sFp}, s28')
    a.i(f's_add_u32 s28, s{sRd}, {PRS_SLOT}')
    a.i(f's_xor_b32 s{sSp}, s28, s{sRd}')
    a.i(f's_add_u32 s28, s{sPst}, {PRS_SLOT}')
    a.i(f's_xor_b32 s53, s28, s{sPst}')
    a.i(f's_bitcmp0_b32 s{sW}, 0')
    a.i(f's_cselect_b32 s{sEv}, -1, 0')
    a.i(f's_cselect_b32 s{sEv + 1}, 1.0, 0')
    a.i('s_mov_b64 s[56:57], 1')
    a.i(f's_add_u32 s28, s62, 2048')
    a.i(f'v_lshl_add_u32 v{vT}, v{vL2}, 1, s28')
    a.i(f's_lshl_b32 s28, s{sW}, 2')
    a.i(f's_add_u32 s28, s28, {VOTE}')
    a.i(f'v_mov_b32 v{vKm}, s28')
    a.i(f'v_mov_b32 v{vVm}, {VOTE}')
    a.i(f's_mov_b32 s{sDx}, {bufbytes}')
    a.i(f's_mov_b32 s{sS}, 0')
    a.i(f's_mov_b32 s{sPre}, 0')
    a.i('s_mov_b64 s[54:55], 0')
    a.i(f'v_lshlrev_b32 v{vLn}, 4, v0')


X, ACC, PK, L, F3, T, RS = 20, 92, 108, 128, 164, 176, 180
sTr, sEv = 51, 58
KDE = int(os.environ.get('KDE', 1))
KTB = int(os.environ.get('KTB', 13))
KFL = int(os.environ.get('KFL', 6))
KRM = int(os.environ.get('KRM', 3))
VOTE = TBO + 6144
KST = os.environ.get('KST')


def kst(a, k):
    if KST:
        a._emit(Ins(f's_memtime s[{80 + 2 * k}:{81 + 2 * k}]'))


vF2 = 185


def rs_ld(n):
    if n == 8:
        return f'buffer_load_dwordx4 {R(L + 32, 4)}, v{vR2}, {WS}, s{sRd} offen offset:512 sc1'
    x, G = n & 3, n >> 2
    return f'buffer_load_dwordx4 {R(L + 4 * n, 4)}, v{vR1}, {WS}, s{63 + x if x else sRd} offen offset:{256 * G} sc1'


def rs_load(a, n):
    a.i(rs_ld(n))


RD_ADV = [f's_xor_b32 s{sRd}, s{sRd}, s{sSp}'] + [f's_add_u32 s{63 + x}, s{sRd}, {x * 9216}' for x in (1, 2, 3)]


def rs_group(a, code, ns, reload):
    lr, lc = a.new('L_rsr'), a.new('L_rsc')
    a.tail += [lr + ':', f'    s_mov_b32 s29, {code}', f'    s_sub_u32 s{sTO}, s{sTO}, 1', '    s_cbranch_scc1 L_abort', '    s_nop 7']
    a.tail += ['    ' + rs_ld(n) for n in reload] + ['    s_waitcnt vmcnt(0)', f'    s_branch {lc}']
    pm, a.pm = getattr(a, 'pm', None), None
    a.out.append(lc + ':')
    words = []
    for n in ns:
        words += [L + 4 * n, L + 4 * n + 2] if n < 8 else [L + 32 + x for x in range(4)]
    chk = [f'v_bitop3_b32 v{T + x}, v{words[2 * x]}, v{words[2 * x + 1]}, s{sTr} bitop3:0x7e' for x in range(len(words) // 2)]
    if len(chk) == 6:
        chk = chk[:4] + [f'v_or3_b32 v{T + 1}, v{T + 1}, v{T + 2}, v{T + 3}'] + \
              [c.replace(f'v{T + 4},', f'v{T + 2},').replace(f'v{T + 5},', f'v{T + 3},') for c in chk[4:]]
    if len(chk) >= 4:
        chk.append(f'v_or3_b32 v{T + 1}, v{T + 1}, v{T + 2}, v{T + 3}')
    chk += [f'v_bitop3_b32 v{T}, v{T}, v{T + 1}, 1 bitop3:0xa8', f'v_cmp_ne_u32 vcc, 0, v{T}']
    a.prewait_regs(L + 4 * ns[-1])
    for n in ns:
        acc = F3 + 4 * (n >> 2)
        a.mfma(acc, SEL, L + 4 * n, None if n % 4 == 0 else acc)
        a.fill(chk)
    for p in chk:
        a.i(p)
    a.i(f's_cbranch_vccnz {lr}', nohaz=True)
    a.pm = pm


def t_wr(G):
    if G < 2:
        return [f'ds_write_b32 v{vT1}, v{F3 + 4 * G + r} offset:{256 * G + (r & 1) * 2304 + (r >> 1) * 64}' for r in range(4)]
    return [f'v_add_f32_dpp v{F3 + 8 + k}, v{F3 + 8 + k}, v{F3 + 8 + k} row_ror:{d} row_mask:0xf bank_mask:0xf'
            for d in (4, 8) for k in range(4)] + \
           [f'ds_write_b32 v{vT2}, v{F3 + 8 + r} offset:{512 + (r & 1) * 2304 + (r >> 1) * 4}' for r in range(4)]


def reduce_phase(a, code, fetch):
    kst(a, 5)
    rs_group(a, code, [0, 1, 2, 3], [0, 1, 2, 3])
    kst(a, 6)
    a.waitcnt(vm=4)
    for n in range(4, 8):
        rs_load(a, n)
    for p in t_wr(0):
        a.i(p)
    a.waitcnt(vm=4)
    kst(a, 7)
    rs_load(a, 8)
    fetch()
    kst(a, 8)
    rs_group(a, code, [4, 5, 6, 7], [4, 5, 6, 7, 8])
    kst(a, 9)
    rs_group(a, code, [8], [8])
    for p in t_wr(1) + t_wr(2):
        a.i(p)


def ln_stream(out_srd, pk=False):
    F, PKD = globals()['L'] + 26, globals()['L'] + 16
    s1, q1, s2, q2 = T, T + 1, T + 2, T + 3
    P = lambda r: R(r, 2)
    L = globals()['L'] + 16
    o = [f'ds_read_b128 {R(F, 4)}, v{vTr}', f'ds_read_b128 {R(F + 4, 4)}, v{vTr} offset:16', f'ds_read_b32 v{F + 8}, v{vT}']
    for k in range(4):
        o += [f'v_lshlrev_b32 v{L + 2 * k}, 16, v{RS + k}', f'v_and_b32 v{L + 2 * k + 1}, 0xffff0000, v{RS + k}']
    o += [f'v_lshlrev_b32 v{L + 8}, 16, v{RS + 4}']
    if pk:
        o += [f'v_pk_add_f32 {P(F + k)}, {P(F + k)}, {P(L + k)}' for k in (0, 2, 4, 6)] + [f'v_add_f32 v{F + 8}, v{F + 8}, v{L + 8}']
        o += [f'v_pk_add_f32 {P(L)}, {P(F)}, {P(F + 2)}', f'v_pk_add_f32 {P(L + 2)}, {P(F + 4)}, {P(F + 6)}',
              f'v_pk_mul_f32 {P(L + 4)}, {P(F)}, {P(F)}', f'v_pk_add_f32 {P(L)}, {P(L)}, {P(L + 2)}']
        o += [f'v_pk_fma_f32 {P(L + 4)}, {P(F + k)}, {P(F + k)}, {P(L + 4)}' for k in (2, 4, 6)]
        o += [f'v_add_f32 v{s1}, v{L}, v{L + 1}', f'v_fma_f32 v{q1}, v{F + 8}, v{F + 8}, v{L + 4}',
              f'v_add_f32 v{s1}, v{s1}, v{F + 8}', f'v_add_f32 v{q1}, v{q1}, v{L + 5}']
    else:
        o += [f'v_add_f32 v{F + k}, v{F + k}, v{L + k}' for k in range(9)]
        o += [f'v_add_f32 v{s1}, v{F}, v{F + 1}', f'v_mul_f32 v{q1}, v{F}, v{F}', f'v_fmac_f32 v{q1}, v{F + 1}, v{F + 1}']
        for k in range(2, 9):
            o += [f'v_add_f32 v{s1}, v{s1}, v{F + k}', f'v_fmac_f32 v{q1}, v{F + k}, v{F + k}']
    for m in ('quad_perm:[1,0,3,2]', 'quad_perm:[2,3,0,1]', 'row_half_mirror', 'row_mirror'):
        o += [f'v_add_f32_dpp v{r}, v{r}, v{r} {m} row_mask:0xf bank_mask:0xf' for r in (s1, q1)]
    o += [f'v_mov_b32 v{q2}, {hex(f2u(1e-5))}', f'v_permlane16_swap_b32 v{s1}, v{q1}', f'v_add_f32 v{s1}, v{s1}, v{q1}',
          f'v_mov_b32 v{s2}, v{s1}', f's_add_u32 s{sRes}, s{sRes}, {UNIT}', f'v_permlane32_swap_b32 v{s1}, v{s2}',
          f'v_add_f32 v{s1}, v{s1}, v{s2}', f'v_mul_f32 v{s1}, {hex(f2u(1 / 576))}, v{s1}',
          f'v_readlane_b32 s60, v{s1}, 0', f'v_readlane_b32 s28, v{s1}, 16', 's_mov_b64 s[54:55], s[56:57]',
          f'v_add_f32 v{q2}, s28, v{q2}', f'v_fma_f32 v{q2}, -v{s1}, s60, v{q2}']
    o += [f'v_rsq_f32 v{q2}, v{q2}', f's_andn2_b32 s60, s60, s{sEv}', f'v_readlane_b32 s28, v{q2}, 0',
          f's_andn2_b32 s28, s28, s{sEv}', f's_or_b32 s28, s28, s{sEv + 1}', f'v_mov_b32 v{s2}, s28', f'v_mul_f32 v{q2}, s60, v{s2}']
    if pk:
        o += [f'v_pk_fma_f32 {P(F + k)}, {P(F + k)}, {P(s2)}, {P(s2)} op_sel:[0,0,1] op_sel_hi:[1,0,1] neg_lo:[0,0,1] neg_hi:[0,0,1]'
              for k in (0, 2, 4, 6)] + [f'v_fma_f32 v{F + 8}, v{F + 8}, v{s2}, -v{q2}']
    else:
        o += [f'v_fma_f32 v{F + k}, v{F + k}, v{s2}, -v{q2}' for k in range(9)]
    o += [f'v_cvt_pk_bf16_f32 v{PKD + k}, v{F + 2 * k}, v{F + 2 * k + 1}' for k in range(4)] + [f'v_cvt_pk_bf16_f32 v{PKD + 4}, v{F + 8}, 0']
    o += [f'buffer_store_dwordx4 {R(PKD, 4)}, v{vLn}, {out_srd}, s{sYo} offen sc1',
          f'buffer_store_short v{PKD + 4}, v{vL2}, {out_srd}, s{sYo} offen offset:1024 sc1',
          f's_add_u32 s{sYo}, s{sYo}, {UNIT}']
    return o


def klate(a):
    a.i('s_mov_b64 exec, s[54:55]')
    a.i(f'buffer_store_dword v{vTr}, off, {WS}, s{sFp} sc1')
    a.vm.pop()
    a.i('s_mov_b64 exec, -1')
    a.i('s_lshl_b32 s28, s54, 2')
    a.i(f's_add_u32 s{sFp}, s{sFp}, s28')
    a.i('s_mov_b64 s[54:55], 0')


def ktail():
    so = [67, 61, 62, 63]
    o = []
    for q in range(4):
        r = PK + 16 + q
        o += [f'v_cvt_pk_bf16_f32 v{r}, v{ACC + 2 * q}, v{ACC + 2 * q + 1}', f'v_bfi_b32 v{r}, 1, s{sTr}, v{r}',
              f'buffer_store_dword v{r}, v{vP1}, {WS}, s{so[q]} offen offset:512']
    return o


def kgemm(a, W, nkb, side, stream, pre=None):
    def xreg(n):
        return X + 4 * ((n & 1) * nkb + (n >> 1))

    def xr(n):
        a.i(f'ds_read_b128 {R(xreg(n), 4)}, v{vXb} offset:{((n & 1) * nkb + (n >> 1)) * 1024}')
    a.batch = 1
    for n in range(8):
        xr(n)
    if pre:
        pre()
    so = [sPst, 61, 62, 63]
    pend = []
    low = [f's_lshr_b32 s{sTag}, s{sS}, 1'] + [f's_add_u32 s{60 + q}, s{sPst}, {(8 * (q >> 1) + (q & 1)) * UNIT}' for q in range(1, 4)]
    k = 0
    for i in range(10):
        acc = ACC + 8 * (i & 1)
        if i < 9:
            for kb in range(nkb):
                for rt in range(2):
                    a.mfma(acc + 4 * rt, X + 4 * (rt * nkb + kb), W[(i, kb)], None if kb == 0 else acc + 4 * rt)
                    if k + 8 < 2 * nkb:
                        xr(k + 8)
                    if k + 1 < 2 * nkb:
                        a.prewait_regs(xreg(k + 1))
                    elif k + 1 == 2 * nkb:
                        a.batch = 0
                    for f in side.get(k, []):
                        if f == 'flush':
                            while low:
                                a.fill(low, 99)
                        else:
                            f()
                    while kb >= 2 and pend and a.gap < (2 if i == 8 else 1):
                        p = pend.pop(0)
                        if p:
                            a.i(p)
                        elif i < 8:
                            break
                    low += stream.get(k, [])
                    a.fill(low, KRM if k > 4 * nkb else 2)
                    k += 1
        if i == 9:
            a.fill(low, 999)
        for p in pend:
            if p:
                a.i(p)
        pend = []
        if i == 9:
            break
        if i < 8:
            d = i & 1
            for q in range(4):
                r = PK + 8 * ((i >> 1) & 1) + 2 * q
                pend.append(f'v_cvt_pk_bf16_f32 v{r + d}, v{acc + 2 * q}, v{acc + 2 * q + 1}')
                if d == 0:
                    pend.append(f'v_bfi_b32 v{r}, 1, s{sTag}, v{r}')
                else:
                    pend.append(f'buffer_store_dwordx2 {R(r, 2)}, v{vPs}, {WS}, s{so[q]} offen offset:{128 * (i >> 1)}')
                    pend.append(None)
    a.i(f's_mov_b32 s{sTr}, s{sTag}')
    a.i(f's_mov_b32 s67, s{sPst}')
    a.i(f's_mov_b32 s{sTO}, {TIMEOUT}')
    a.i(f's_xor_b32 s{sPst}, s{sPst}, s53')


def res_load(a, srdn):
    a.i(f'buffer_load_dwordx4 {R(RS, 4)}, v{vLn}, {srdn}, s{sRes} offen sc1')
    a.i(f'buffer_load_ushort v{RS + 4}, v{vL2}, {srdn}, s{sRes} offen offset:1024 sc1')


def poll(a, off=0, dst=vFl):
    a.i(f'buffer_load_dword v{dst}, v{vFa}, {WS}, s{sFn} offen offset:{off} sc1')


def in_dma(n, srdn, sLb=sLb):
    o = [f's_mov_b32 m0, s{sLb}']
    o += [f'buffer_load_dwordx4 v{vLn}, {srdn}, s{sIn} offen offset:{k * 1024} sc1 lds' for k in range(4)]
    if n == 5:
        o += [f's_add_u32 m0, s{sLb}, 4096', f'buffer_load_dwordx4 v{vXq}, {srdn}, s{sIn} offen sc1 lds']
    return o


def krole(a, nm, stamps):
    dn = nm == 'down'
    nkb = 9 if dn else 8
    P = f'L_{nm}'
    a.label(P)
    rt_stamp(a, stamps, 0)
    kinit(a, 2 if dn else 0)
    W = {}
    for i in range(9):
        for kb in range(nkb):
            W[(i, kb)] = 512 - 36 * nkb + 4 * len(W)
    a.i(f's_mul_i32 s61, s{sIDX}, {32 * nkb * 1152}')
    kstage(a, W, nkb, K_WD if dn else K_WO, 16 * 32 * nkb * 1152, 61, 'nat' if dn else 'pair')
    nfl = 6 if dn else 2
    a.i(f'v_min_u32 v{vFa}, {nfl - 1}, v0')
    a.i(f'v_lshlrev_b32 v{vFa}, 9, v{vFa}')
    BB = 2 * nkb * 1024
    IU, IB, FI = (H_UNIT, HB, F_H) if dn else (O_UNIT, OB, F_O)
    ksetup(a, BB)
    a.i(f'v_add_u32 v{vXq}, 4096, v{vLn}')
    srd(a, 8, K_WS, 0)
    for p in RD_ADV[1:]:
        a.i(p)
    a.i(f'v_add_u32 v{vXb}, {INB}, v{vLn}')
    a.i(f's_mul_i32 s60, s{sL}, {64 * UNIT}')
    a.i(f's_lshl_b32 s61, s{sL}, 8')
    if dn:
        srd(a, 12, K_OUT, 2048 * 1152)
        a.i(f's_bitcmp1_b32 s{sW}, 0')
        a.i(f's_cselect_b32 s{sYo}, {OOB}, s{sRes}')
        a.i('s_mov_b64 s[56:57], 0')
        a.i(f's_cmp_eq_u32 s{sL}, 1')
        a.i(f's_cbranch_scc1 {P}_o')
        srd(a, 12, K_WS, WS_BYTES)
        a.i('s_mov_b64 s[56:57], 1')
        a.i(f's_mov_b32 s{sYo}, s{sRes}')
        a.i(f's_bitcmp1_b32 s{sW}, 0')
        a.i(f's_mov_b32 s28, {X2}')
        a.i(f's_cselect_b32 s28, {NA + 64 * UNIT}, s28')
        a.i(f's_add_u32 s{sYo}, s{sYo}, s28')
        a.label(f'{P}_o')
        a.i(f's_add_u32 s{sRes}, s{sRes}, s60')
        a.i(f's_add_u32 s{sRes}, s{sRes}, {YB}')
        a.i(f's_add_u32 s{sFp}, s{sFp}, {F_NA + 256}')
        res_srd, out_srd = WS, IO
    else:
        a.i(f's_add_u32 s{sYo}, s60, s{sRes}')
        a.i(f's_bitcmp1_b32 s{sW}, 0')
        a.i(f's_mov_b32 s28, {YB}')
        a.i(f's_cselect_b32 s28, {NB}, s28')
        a.i(f's_add_u32 s{sYo}, s{sYo}, s28')
        a.i(f's_add_u32 s{sFp}, s{sFp}, s61')
        a.i(f's_add_u32 s{sFp}, s{sFp}, {F_NB}')
        srd(a, 12, K_X, 2048 * 1152)
        a.i(f's_cmp_eq_u32 s{sL}, 0')
        a.i(f's_cbranch_scc1 {P}_o')
        srd(a, 12, K_WS, WS_BYTES)
        a.i(f's_add_u32 s{sRes}, s{sRes}, {X2}')
        a.label(f'{P}_o')
        res_srd, out_srd = IO, WS
    a.i(f's_mul_i32 s{sFn}, s{sIDX}, {nfl * 512}')
    a.i(f's_add_u32 s{sFn}, s{sFn}, s61')
    a.i(f's_add_u32 s{sFn}, s{sFn}, {FI}')
    a.i(f's_mul_i32 s{sIn}, s{sL}, {64 * IU}')
    a.i(f's_mul_i32 s28, s{sIDX}, {nkb * 1024}')
    a.i(f's_add_u32 s{sIn}, s{sIn}, s28')
    a.i(f's_add_u32 s{sIn}, s{sIn}, {IB}')
    nd = nkb - 4
    a.i(f's_lshr_b32 s28, s{sW}, 1')
    a.i(f's_mul_i32 s{sLb}, s28, {nkb * 1024}')
    a.i(f's_mul_i32 s28, s28, {IU // 2}')
    a.i(f's_add_u32 s{sIn}, s{sIn}, s28')
    a.i(f's_and_b32 s28, s{sW}, 1')
    a.i('s_lshl_b32 s28, s28, 12')
    a.i(f's_add_u32 s{sLb}, s{sLb}, s28')
    a.i(f's_add_u32 s{sLb}, s{sLb}, {INB}')
    a.i(f's_add_u32 s{sIn}, s{sIn}, s28')
    wait_init(a, 40)
    rt_stamp(a, stamps, 1, 40)
    code = 10 if dn else 12

    def decide():
        a.i(f'v_cmp_eq_u32 vcc, 0, v{vFl}')
        a.i('s_cmp_eq_u64 vcc, 0')
        a.i(f's_cselect_b32 s10, s47, 0')

    def body(carry):
        n1, n8 = 2 * nkb, 2 * nkb * 8
        KDE = dn
        kD = 5 * n1 - 1 if KDE else n8 - 34
        side = {kD - 34: [lambda: poll(a)], kD: [decide]}
        stream = {1: [f's_add_u32 s{sFn}, s{sFn}, 4', f's_add_u32 s{sIn}, s{sIn}, {IU}', f's_add_u32 s{sLb}, s{sLb}, s{sDx}',
                      lambda: (a.i(f's_cmp_eq_u32 s{sS}, 63'), a.i(f's_cselect_b32 s47, 0, s6'))]}
        side[2 * n1 - 1] = ['flush']
        ad = lambda k, f: side.setdefault(k, []).append(f)
        if carry:
            for n in range(9):
                ad(2 + 3 * n + (3 if n == 8 else 0), lambda n=n: rs_load(a, n))
            ad(24, lambda: rs_group(a, code, [0, 1, 2, 3], [0, 1, 2, 3]))
            stream[28] = t_wr(0)
            ad(2 * n1 + 3, lambda: rs_group(a, code, [4, 5, 6, 7, 8], [4, 5, 6, 7, 8]))
            stream[2 * n1 + 5] = t_wr(1) + t_wr(2)
            ad(2 * n1 + KTB, 'flush')
            ad(2 * n1 + KTB, lambda: a.barrier())
            stream[2 * n1 + KTB + 1] = ln_stream(out_srd) + [lambda: a.join_vm_tag('n')] + RD_ADV
            ad(7 * n1 - 4 if KDE else kD - 1, 'flush')
            ad(n8 - KFL, lambda: (a.wait_tag('n'), klate(a)))
        k = kD + 2
        for p in in_dma(nd, WT, sLb):
            ad(k - (1 if p.startswith('s_') else 0), lambda p=p: a.i(p, tag='x'))
            k += 0 if p.startswith('s_') else 3
        ad(7 * n1 + 1 if KDE else k, lambda: res_load(a, res_srd))

        def pre():
            l = a.new('L_kt')
            lg = list(a.lg)
            a.i('s_cmp_eq_u32 s10, 0')
            a.i(f's_cbranch_scc1 {l}', nohaz=True)
            vm = list(a.vm)
            for p in ktail():
                a.i(p)
            a.out.append(l + ':')
            a.i('s_nop 1')
            a.vm, a.lg = vm, lg
        kgemm(a, W, nkb, side, stream, pre if carry else None)

    def block():
        l = spin_head(a, 9 if dn else 11)
        poll(a)
        a.i(f'v_cmp_eq_u32 vcc, 0, v{vFl}')
        a.i(f's_cbranch_vccnz {l}', nohaz=True)
        for p in in_dma(nd, WS):
            a.i(p)
        a.waitcnt(vm=0)
    block()
    a.i('s_barrier')
    body(False)
    a.i(f's_branch {P}_end')
    vm = list(a.vm)
    a.label(f'{P}_carry')
    a.vm = [({('v', r) for r in range(RS, RS + 5)}, set())]
    a.i('s_barrier')
    stamp(a, stamps, 0)
    body(True)
    a.vm = vm
    a.out.append(f'{P}_end:')
    stamp(a, stamps, 1)
    a.i(f'v_add_u32 v{vXb}, s{sDx}, v{vXb}')
    a.i(f's_sub_u32 s{sDx}, 0, s{sDx}')
    a.wait_tag('x')
    for k in (2, 3):
        if stamps and not PROF:
            a.i(f's_mov_b32 s{80 + 2 * k}, 0')
    stamp_flush(a, stamps, 4, sS, L)
    a.i(f's_add_u32 s{sS}, s{sS}, 1')
    a.i('s_cmp_lg_u32 s10, 0')
    a.i(f's_cbranch_scc1 {P}_carry')
    for p in ktail():
        a.i(p)
    a.i(f's_cmp_eq_u32 s{sS}, 64')
    a.i(f's_cbranch_scc1 {P}_last', nohaz=True)
    block()
    a.i(f's_branch {P}_carry', nohaz=True)
    a.label(f'{P}_last')
    a.i('s_barrier')
    a.vm = []
    for n in range(4):
        rs_load(a, n)
    rs_group(a, code, [0, 1, 2, 3], [0, 1, 2, 3])
    for n in range(4, 9):
        rs_load(a, n)
    for p in t_wr(0):
        a.i(p)
    rs_group(a, code, [4, 5, 6, 7, 8], [4, 5, 6, 7, 8])
    for p in t_wr(1) + t_wr(2):
        a.i(p)
    a.barrier()
    for p in ln_stream(out_srd, pk=True):
        a.i(p)
    a.waitcnt(vm=0)
    klate(a)
    rt_stamp(a, stamps, 2, 40)
    a.i('s_endpgm')
    a.out += a.tail
    a.tail = []


def down(a, stamps=False):
    krole(a, 'down', stamps)


def oproj(a, stamps=False):
    krole(a, 'oproj', stamps)


def atn(a, stamps=False):
    from nsplit import ln_init
    a.label('L_atn')
    rt_stamp(a, stamps, 0)
    arrive(a)
    ln_init(a, 24)
    MC, MM = 16, 20
    sH, sC, sKm, sOo = 45, 47, 48, 51
    a.i(f's_lshl_b32 s{sH}, s{sIDX}, 2')
    a.i(f's_add_u32 s{sH}, s{sH}, s{sW}')
    a.i(f's_mov_b32 s{sC}, {hex(f2u(128 ** -0.5 * math.log2(math.e)))}')
    a.i('v_and_b32 v40, 15, v0')
    a.i('v_lshrrev_b32 v41, 4, v0')
    a.i('v_lshlrev_b32 v41, 2, v41')
    a.i('v_mov_b32 v42, 0xff800000')
    for r in range(4):
        a.i(f'v_add_u32 v43, {r}, v41')
        a.i('v_cmp_gt_u32 vcc, v43, v40')
        a.i(f'v_cndmask_b32 v{MC + r}, 0, v42, vcc')
    a.i('v_cmp_lt_u32 vcc, 31, v0')
    for r in range(4):
        a.i(f'v_cndmask_b32 v{MM + r}, 0, v42, vcc')
    bits(a, vFa, 0, [(0, 3, 9), (2, 1, 16)], 40)
    a.i(f's_lshl_b32 s28, s{sH}, 11')
    a.i(f's_add_u32 s28, s28, {F_Q + 4}')
    a.i(f'v_add_u32 v{vFa}, s28, v{vFa}')
    a.i(f's_lshl_b32 s{sFp}, s{sH}, 9')
    a.i(f's_add_u32 s28, s{sFp}, {F_KVM}')
    a.i('v_mov_b32 v40, s28')
    a.i(f'v_cndmask_b32 v{vFa}, v{vFa}, v40, vcc')
    bits(a, vKm, 0, [(0, 7, 4), (4, 3, 7)], 40)
    bits(a, vVm, 0, [(0, 31, 4)], 40)
    a.i(f'v_lshlrev_b32 v{vLn}, 4, v0')
    a.i(f's_lshl_b32 s{sFn}, s{sL}, 8')
    a.i(f's_add_u32 s{sFp}, s{sFp}, s{sFn}')
    a.i(f's_add_u32 s{sFp}, s{sFp}, {F_O - 4}')
    a.i('s_mov_b64 s[54:55], 0')
    a.i(f'v_subrev_u32 v{vT}, 4, v{vFa}')
    a.i(f's_mul_i32 s{sIn}, s{sL}, {64 * QKV_UNIT}')
    a.i(f's_mul_i32 s28, s{sH}, 24576')
    a.i(f's_add_u32 s{sIn}, s{sIn}, s28')
    a.i(f's_add_u32 s{sIn}, s{sIn}, {QKV}')
    a.i(f's_mul_i32 s{sKm}, s{sL}, {64 * KVM_UNIT}')
    a.i(f's_lshl_b32 s28, s{sH}, 12')
    a.i(f's_add_u32 s{sKm}, s{sKm}, s28')
    a.i(f's_add_u32 s{sKm}, s{sKm}, {KVM}')
    a.i(f's_mul_i32 s{sOo}, s{sL}, {64 * O_UNIT}')
    a.i(f's_add_u32 s{sOo}, s{sOo}, s28')
    a.i(f's_add_u32 s{sOo}, s{sOo}, {OB}')
    a.i(f's_mov_b32 s{sS}, 0')
    OX, KM, VM, S, P, M = 120, 184, 200, 216, 228, 240
    mx, lx, t0, t1, al = M, M + 2, M + 4, M + 6, M + 8
    PM = S + 8
    a.i(f'v_mov_b32 v{P + 2}, 0')
    a.i(f'v_mov_b32 v{P + 3}, 0')
    srd(a, 8, K_WS, 0)
    rt_stamp(a, stamps, 1, 40)

    def lds(base, srdn):
        return [f'buffer_load_dwordx4 {R(base + 4 * n, 4)}, v{vLn}, {srdn}, s{60 + (n >> 2)} offen offset:{(n & 3) * 1024} sc1'
                for n in range(24)]
    PTR = [f's_add_u32 s{60 + k}, s{sIn}, {4096 * k}' for k in range(6)]

    def xl(op, r, t):
        out = []
        for sw in (16, 32):
            out += [f'v_mov_b32 v{t}, v{r}', f'v_permlane{sw}_swap_b32 v{r}, v{t}', f'{op} v{r}, v{r}, v{t}']
        return out

    def zipb(fn):
        return [x for ins in zip(fn(0), fn(1)) for x in ins]

    def block(base, code, addr):
        l = spin_head(a, code)
        a.i(f'buffer_load_dword v{vFl}, v{addr}, {WS}, s{sFn} offen sc1')
        a.i(f'v_cmp_eq_u32 vcc, 0, v{vFl}')
        a.i('s_cmp_lg_u32 vcc_lo, 0')
        a.i(f's_cbranch_scc1 {l}', nohaz=True)
        for p in lds(base, WS):
            a.i(p)
        a.waitcnt(vm=0)

    def unit(cur, nxt, tag, other):
        Q, K, V = cur, cur + 32, cur + 64
        a.label(f'L_atn_{tag}')
        a.vm = []
        stamp(a, stamps, 0)
        a.i(f'v_cmp_eq_u32 s[52:53], 0, v{vFl}')
        a.i(f's_add_u32 s{sIn}, s{sIn}, {QKV_UNIT}')
        for p in PTR:
            a.i(p)
        a.i('s_cmp_eq_u32 s52, 0')
        a.i('s_cselect_b32 s10, s6, 0')
        a.i(f's_cmp_eq_u32 s{sS}, 63')
        a.i('s_cselect_b32 s10, 0, s10')
        bulk = lds(nxt, WT)
        kvm = [f'buffer_load_dwordx4 {R(KM + 4 * kb, 4)}, v{vKm}, {WS}, s{sKm} offen offset:{kb * 512} sc1' for kb in range(4)] + \
              [f'buffer_load_dwordx4 {R(VM + 4 * kb, 4)}, v{vVm}, {WS}, s{sKm} offen offset:{2048 + kb * 512} sc1' for kb in range(4)]
        a.i('s_cmp_lg_u32 s53, 0')
        a.i(f's_cbranch_scc1 L_atn_{tag}a', nohaz=True)
        for p in kvm:
            a.i(p)
        a.out.append(f'L_atn_{tag}a:')
        a.vm = [(set(), {'n'})] + [({('v', r) for r in range(cur + 4 * n, cur + 4 * n + 4)}, set()) for n in range(20, 24)]

        def flag():
            a.wait_tag('n')
            a.i('s_mov_b64 exec, s[54:55]')
            a.i(f'buffer_store_dword v{vFa}, off, {WS}, s{sFp} sc1')
            a.vm.pop()
            a.i('s_mov_b64 exec, -1')
            a.i(f's_add_u32 s{sFp}, s{sFp}, 4')

        def run(ins, every):
            for ix, p in enumerate(ins):
                p() if callable(p) else a.i(p)
                if ix % every == every - 1 and bulk:
                    a.i(bulk.pop(0))
        x = []
        for kb in range(4):
            x += [lambda kb=kb: a.mfma(S, K + 8 * kb, Q + 8 * kb, MC if kb == 0 else S),
                  lambda kb=kb: a.mfma(S + 4, K + 8 * kb, Q + 8 * kb + 4, None if kb == 0 else S + 4),
                  lambda kb=kb: a.mfma(S + 8, K + 8 * kb + 4, Q + 8 * kb + 4, MC if kb == 0 else S + 8)]
        run(x, 4)
        x = [f'v_max3_f32 v{mx}, v{S}, v{S + 1}, v{S + 2}', f'v_max3_f32 v{mx + 1}, v{S + 4}, v{S + 5}, v{S + 6}',
             f'v_max_f32 v{mx}, v{S + 3}, v{mx}', f'v_max3_f32 v{mx + 1}, v{S + 7}, v{S + 8}, v{mx + 1}',
             f'v_max3_f32 v{mx + 1}, v{S + 9}, v{S + 10}, v{mx + 1}', f'v_max_f32 v{mx + 1}, v{S + 11}, v{mx + 1}']
        x += zipb(lambda q: xl('v_max_f32', mx + q, t1 + q) + [f'v_mul_f32 v{mx + q}, s{sC}, v{mx + q}'])
        x += [f'v_fma_f32 v{S + k}, v{S + k}, s{sC}, -v{mx + (k >= 4)}' for k in range(12)]
        x += [f'v_exp_f32 v{S + k}, v{S + k}' for k in range(12)]
        x += [f'v_cvt_pk_bf16_f32 v{P + k + (2 if k >= 2 else 0)}, v{S + 2 * k}, v{S + 2 * k + 1}' for k in range(6)]
        run(x, 16)
        flag()
        adds = [f'v_add_f32 v{lx}, v{S}, v{S + 1}', f'v_add_f32 v{lx + 1}, v{S + 4}, v{S + 5}']
        adds += [f'v_add_f32 v{lx}, v{lx}, v{S + k}' for k in (2, 3)] + [f'v_add_f32 v{lx + 1}, v{lx + 1}, v{S + k}' for k in range(6, 12)]
        x = []
        for d in range(8):
            for q in range(2):
                x.append(lambda d=d, q=q: a.mfma(OX + 32 * q + 4 * d, V + 4 * d, P + 4 * q, None))
                if adds:
                    x.append(adds.pop(0))
        run(x, 8)
        stamp(a, stamps, 1)
        nb = 6
        a.i('s_cmp_eq_u32 s53, 0')
        a.i(f's_cbranch_scc1 L_atn_{tag}b', nohaz=True)
        l = spin_head(a, 14)
        poll(a)
        a.i(f'v_cmp_eq_u32 vcc, 0, v{vFl}')
        a.i('s_cmp_lg_u32 vcc_hi, 0')
        a.i(f's_cbranch_scc1 {l}', nohaz=True)
        for p in kvm:
            a.i(p)
        a.out.append(f'L_atn_{tag}b:')
        for _ in range(nb):
            a.i(bulk.pop(0))
        a.i(f's_add_u32 s{sKm}, s{sKm}, {KVM_UNIT}')
        a.i(f's_add_u32 s66, s{sOo}, {O_UNIT // 2}')
        stamp(a, stamps, 2)
        for kb in range(4):
            for q in range(2):
                a.mfma(S + 4 * q, KM + 4 * kb, Q + 8 * kb + 4 * q, MM if kb == 0 else S + 4 * q)
        stamp(a, stamps, 3)

        def post(q):
            s, m, t, A = S + 4 * q, t0 + q, t1 + q, al + 2 * q
            return ([f'v_max3_f32 v{m}, v{s}, v{s + 1}, v{s + 2}', f'v_max_f32 v{m}, v{s + 3}, v{m}'] + xl('v_max_f32', m, t)
                    + [f'v_mul_f32 v{m}, s{sC}, v{m}', f'v_max_f32 v{m}, v{m}, v{mx + q}', f'v_sub_f32 v{A}, v{mx + q}, v{m}']
                    + [f'v_fma_f32 v{s + k}, v{s + k}, s{sC}, -v{m}' for k in range(4)]
                    + [f'v_exp_f32 v{A}, v{A}'] + [f'v_exp_f32 v{s + k}, v{s + k}' for k in range(4)]
                    + [f'v_fma_f32 v{m}, v{lx + q}, v{A}, v{s}', f'v_add_f32 v{t}, v{s + 1}, v{s + 2}',
                       f'v_add_f32 v{m}, v{m}, v{s + 3}', f'v_add_f32 v{m}, v{m}, v{t}'] + xl('v_add_f32', m, t)
                    + [f'v_rcp_f32 v{m}, v{m}', f'v_mul_f32 v{A}, v{m}, v{A}']
                    + [f'v_mul_f32 v{s + k}, v{m}, v{s + k}' for k in range(4)]
                    + [f'v_cvt_pk_bf16_f32 v{PM + 2 * q}, v{s}, v{s + 1}', f'v_cvt_pk_bf16_f32 v{PM + 2 * q + 1}, v{s + 2}, v{s + 3}'])
        poll(a, 4)
        run(zipb(post), 18)
        run([f'v_pk_mul_f32 {R(OX + 2 * n, 2)}, {R(OX + 2 * n, 2)}, {R(al + 2 * (n >> 4), 2)} op_sel_hi:[1,0]' for n in range(32)], 20)
        low = []
        for n in range(16):
            o = OX + 4 * n
            a.mfma(o, VM + 2 * (n & 7), PM + 2 * (n >> 3), o, k=16)
            a.fill(low, 3)
            if n >= 3 and n % 2 == 1 or n == 15:
                for f in ([(n - 3) // 2] if n < 15 else [6, 7]):
                    o = OX + 8 * f
                    low += [f'v_cvt_pk_bf16_f32 v{o + k}, v{o + 2 * k}, v{o + 2 * k + 1}' for k in range(4)]
                    low.append(lambda o=o, f=f: a.i(
                        f'buffer_store_dwordx4 {R(o, 4)}, v{vLn}, {WS}, s{sOo if f < 4 else 66} offen offset:{(f & 3) * 1024} sc1', tag='o'))
        a.fill(low, 999)
        stamp(a, stamps, 4)
        print('atn: loads left after stores', len(bulk))
        assert len(bulk) == 4
        a.waitcnt(vm=8)
        for p in bulk:
            a.i(p)
        a.i(f's_add_u32 s{sOo}, s{sOo}, {O_UNIT}')
        a.i('s_mov_b64 s[54:55], 1')
        stamp(a, stamps, 5)
        stamp_flush(a, stamps, 6, sS, S)
        a.i(f's_add_u32 s{sS}, s{sS}, 1')
        a.i('s_cmp_lg_u32 s10, 0')
        a.i(f's_cbranch_scc1 L_atn_{tag}c', nohaz=True)
        a.waitcnt(vm=0)
        a.i('s_mov_b64 exec, 1')
        a.i(f'buffer_store_dword v{vFa}, off, {WS}, s{sFp} sc1')
        a.i('s_mov_b64 exec, -1')
        a.i('s_mov_b64 s[54:55], 0')
        a.i(f's_cmp_eq_u32 s{sS}, 64')
        a.i('s_cbranch_scc1 L_atn_done')
        block(nxt, 15, vFa)
        poll(a, 4)
        a.waitcnt(vm=0)
        a.label(f'L_atn_{tag}c')
        a.i(f's_add_u32 s{sFn}, s{sFn}, 4')
        if other:
            a.i(f's_branch L_atn_{other}')
    for p in PTR:
        a.i(p)
    block(24, 13, vT)
    poll(a)
    a.waitcnt(vm=0)
    unit(24, 256, 'e', None)
    unit(256, 24, 'o', 'e')
    a.label('L_atn_done')
    rt_stamp(a, stamps, 2, 40)
    a.i('s_endpgm')
```

```python
import math
from common import *
from chain import f2u

vLn, vXe, vXo, vFa, vFl, vT = 0, 1, 2, 3, 4, 5
vD9 = 6
sS, sPre, sSrc, sFn, sLb, sW1k, sW9k, sOut, sFp, sFq, sPq = range(30, 41)
sDx = 44
UPP = int(os.environ.get('UPP', 56))
PJP = int(os.environ.get('PJP', 20))
PJD = int(os.environ.get('PJD', 7))
UPF = int(os.environ.get('UPF', 38))
XB = UNIT


def publish(a, sflag, vnz=vXo):
    a.i('s_mov_b64 exec, 1')
    a.i(f'buffer_store_dword v{vnz}, off, {WS}, s{sflag} sc1')
    a.i('s_mov_b64 exec, -1')


def x_setup(a, nbase, fbase, t0, t1, t2):
    dma_voff_72(a, vD9, SWZ['x'], t0, t1, t2)
    for n in range(9):
        a.i(f'v_add_u32 v{vD9 + n}, {4096 - (n & 3) * 1024}, v{vD9 + n}')
    a.i(f'v_and_b32 v{t0}, 15, v0')
    a.i(f'v_bfe_u32 v{t1}, v0, 1, 3')
    a.i(f'v_lshrrev_b32 v{t2}, 4, v0')
    a.i(f'v_xor_b32 v{t1}, v{t1}, v{t2}')
    a.i(f'v_mul_u32_u24 v{t0}, 1152, v{t0}')
    a.i(f'v_lshl_add_u32 v{vXe}, v{t1}, 4, v{t0}')
    a.i(f'v_xor_b32 v{t1}, 4, v{t1}')
    a.i(f'v_lshl_add_u32 v{vXo}, v{t1}, 4, v{t0}')
    a.i(f'v_and_b32 v{vFa}, 15, v0')
    a.i(f'v_lshlrev_b32 v{vFa}, 9, v{vFa}')
    a.i(f's_mul_i32 s{sSrc}, s{sL}, {64 * UNIT}')
    a.i(f's_add_u32 s{sSrc}, s{sSrc}, {nbase - 4096}')
    a.i(f's_lshl_b32 s{sFn}, s{sW}, 13')
    a.i(f's_lshl_b32 s28, s{sL}, 8')
    a.i(f's_add_u32 s{sFn}, s{sFn}, s28')
    a.i(f's_add_u32 s{sFn}, s{sFn}, {fbase}')
    a.i(f's_mov_b32 s{sLb}, s{sW9k}')
    a.i(f's_mov_b32 s{sS}, 0')
    a.i(f's_mov_b32 s{sDx}, {XB}')
    a.i(f's_mov_b64 s[{sPq}:{sPq + 1}], 0')
    srd(a, 8, K_WS, 0)
    a.i(f'v_lshlrev_b32 v{vLn}, 4, v0')


def x_poll(a):
    a.i(f'buffer_load_dword v{vFl}, v{vFa}, {WS}, s{sFn} offen sc1')


def x_dma_list(srdn):
    o = []
    for n in range(9):
        if n % 4 == 0:
            o.append(f's_add_u32 m0, s{sLb}, {n * 1024}')
        o.append(f'buffer_load_dwordx4 v{vD9 + n}, {srdn}, s{sSrc} offen offset:{(n & 3) * 1024} sc1 lds')
    return o


def x_adv(a):
    a.i(f's_add_u32 s{sSrc}, s{sSrc}, {UNIT}')
    a.i(f's_add_u32 s{sFn}, s{sFn}, 4')
    a.i(f's_add_u32 s{sLb}, s{sLb}, s{sDx}')


def x_flag(a):
    a.waitcnt(vm=0)
    a.i(f's_mov_b64 exec, s[{sPq}:{sPq + 1}]')
    a.i(f'buffer_store_dword v{vXo}, off, {WS}, s{sFq} sc1')
    a.vm.pop()
    a.i('s_mov_b64 exec, -1')


def x_chk(a):
    a.i(f'v_cmp_eq_u32 vcc, 0, v{vFl}')
    a.i('s_cmp_eq_u64 vcc, 0')
    a.i(f's_cselect_b32 s10, {WS_BYTES}, 0')


def x_block(a, code):
    l = spin_head(a, code)
    x_poll(a)
    a.i(f'v_cmp_eq_u32 vcc, 0, v{vFl}')
    a.i(f's_cbranch_vccnz {l}', nohaz=True)
    for p in x_dma_list(WS):
        a.i(p)
    a.waitcnt(vm=0)


def x_next(a, pfx, code, regs, tail, nxt=None):
    nxt = nxt or f'{pfx}_loop'
    a.i(f's_add_u32 s{sFq}, s{sFq}, 4')
    a.i(f's_add_u32 s{sS}, s{sS}, 1')
    a.i(f's_cmp_eq_u32 s{sS}, 64')
    a.i(f's_cselect_b32 s10, 0, s10')
    a.i(f's_mov_b64 s[{sPq}:{sPq + 1}], 1')
    for r in regs:
        a.i(f'v_add_u32 v{r}, s{sDx}, v{r}')
    a.i(f's_sub_u32 s{sDx}, 0, s{sDx}')
    a.i('s_cmp_lg_u32 s10, 0')
    a.wait_tag('x')
    a.i(f's_cbranch_scc1 {nxt}')
    for p in tail:
        a.i(p)
    l = spin_head(a, code)
    x_poll(a)
    x_flag(a)
    a.i(f's_mov_b64 s[{sPq}:{sPq + 1}], 0')
    a.i(f's_cmp_eq_u32 s{sS}, 64')
    a.i(f's_cbranch_scc1 {pfx}_done')
    a.i(f'v_cmp_eq_u32 vcc, 0, v{vFl}')
    a.i(f's_cbranch_vccnz {l}', nohaz=True)
    for p in x_dma_list(WS):
        a.i(p)
    a.waitcnt(vm=0)
    a.i(f's_branch {nxt}')


def xread(a, dst, rt, j):
    a.i(f'ds_read_b128 {R(dst, 4)}, v{(vXe, vXo)[j & 1]} offset:{(j >> 1) * 128 + rt * 18432}')


def stage256(a, mats, gpitch, scol, W, qk_style):
    vq, a0, a1, aq, tA = 20, 21, 22, 23, 24
    sw = SWZ['p2', 'nat']
    dma_voff_pow2(a, vq, 16, gpitch, sw, 30, 31)
    a.i(f's_lshl_b32 s62, s{sW}, 2')

    def u_qk(t):
        a.i(f'v_and_b32 v{t}, 3, v0')
        a.i(f'v_add_u32 v{t}, s62, v{t}')

    def u_nat(add):
        def f(t):
            a.i(f'v_bfe_u32 v{t}, v0, 1, 1')
            a.i(f'v_add_u32 v{t}, s62, v{t}')
            if add:
                a.i(f'v_add_u32 v{t}, {add}, v{t}')
        return f

    def sub8(t):
        a.i(f'v_and_b32 v{t}, 1, v0')
        a.i(f'v_lshlrev_b32 v{t}, 3, v{t}')
    tr_addr(a, aq, 256, 'nat', sw, u_qk, None, 30, 31)
    tr_addr(a, a0, 256, 'nat', sw, u_nat(0), sub8, 30, 31)
    tr_addr(a, a1, 256, 'nat', sw, u_nat(2), sub8, 30, 31)
    ds = DsAddr(a, tA)
    chunks = [(m, h) for m in mats for h in range(2)]

    def issue(c):
        (m, karg, nb), h = chunks[c]
        srd(a, 8, karg, nb)
        for bi in range(9):
            for hh in range(2):
                dma(a, vq, WT, sW1k, (BUF0, BUF1)[c & 1] + bi * 8192 + hh * 4096, scol, (32 * (9 * h + bi) + 16 * hh) * gpitch)
    issue(0)
    issue(1)
    for c in range(len(chunks)):
        a.waitcnt(vm=18 if c + 1 < len(chunks) else 0)
        a.i('s_barrier')
        (m, _, _), h = chunks[c]
        for bi in range(9):
            for b in range(2):
                ar, o = (aq, 8 * b) if m in qk_style else ((a0, a1)[b], 0)
                tr_frag(a, ds, W[(m, b, 9 * h + bi)], ar, (BUF0, BUF1)[c & 1] + bi * 8192 + o, 256, 'nat')
        a.barrier()
        if c + 2 < len(chunks):
            issue(c + 2)


def proj(a, stamps=False):
    a.label('L_proj')
    rt_stamp(a, stamps, 0)
    arrive(a)
    W = {}
    for m in 'kvq':
        for j in range(18):
            for b in range(2):
                W[(m, b, j)] = 80 + 4 * len(W)
    a.i(f's_lshl_b32 s{sW1k}, s{sW}, 10')
    a.i(f's_mul_i32 s{sW9k}, s{sW}, 9216')
    a.i(f's_lshl_b32 s61, s{sIDX}, 8')
    nb = 576 * 4096 * 2
    stage256(a, [('k', K_WK, nb), ('v', K_WV, nb), ('q', K_WQ, nb)], 8192, 61, W, 'qk')
    x_setup(a, NA, F_NA, 30, 31, 32)
    a.i(f's_mul_i32 s{sOut}, s{sL}, {64 * QKV_UNIT}')
    a.i(f's_mul_i32 s28, s{sIDX}, 24576')
    a.i(f's_add_u32 s{sOut}, s{sOut}, s28')
    a.i(f's_lshl_b32 s28, s{sW}, 11')
    a.i(f's_add_u32 s{sOut}, s{sOut}, s28')
    a.i(f's_add_u32 s{sOut}, s{sOut}, {QKV}')
    a.i(f's_lshl_b32 s{sFp}, s{sIDX}, 11')
    a.i(f's_lshl_b32 s28, s{sW}, 9')
    a.i(f's_add_u32 s{sFp}, s{sFp}, s28')
    a.i(f's_lshl_b32 s28, s{sL}, 8')
    a.i(f's_add_u32 s{sFp}, s{sFp}, s28')
    a.i(f's_add_u32 s{sFq}, s{sFp}, {F_Q - 4}')
    a.i(f's_add_u32 s{sFp}, s{sFp}, {F_KV}')
    wait_init(a, 30)
    rt_stamp(a, stamps, 1, 30)
    x_block(a, 5)
    KA, VA, QA, RG = 16, 32, 48, 64
    a.label('L_proj_loop')
    a.i('s_barrier')
    stamp(a, stamps, 0)
    a.batch = 1
    r1 = [RG, RG + 4, RG + 8, RG + 12, QA + 4, QA + 12]
    for n in range(4):
        xread(a, r1[n], n & 1, n >> 1)
    tail = []
    for rt in range(2):
        base = QA + 8 * rt
        tail += [f'v_cvt_pk_bf16_f32 v{base + 4 + x}, v{base + 2 * x}, v{base + 2 * x + 1}' for x in (2, 3)][::-1] if False else []
        tail += [f'v_cvt_pk_bf16_f32 v{base + x}, v{base + 2 * x}, v{base + 2 * x + 1}' for x in range(4)]
        tail.append(f'buffer_store_dwordx4 {R(base, 4)}, v{vLn}, {WS}, s{sOut} offen offset:{rt * 1024} sc1')
    tail.append(f's_add_u32 s{sOut}, s{sOut}, {QKV_UNIT}')
    lg = list(a.lg)
    a.i('s_cmp_eq_u32 s10, 0')
    a.i('s_cbranch_scc1 L_proj_nt', nohaz=True)
    for p in tail:
        a.i(p)
    a.out.append('L_proj_nt:')
    a.lg = lg
    for n in range(4, 6):
        xread(a, r1[n], n & 1, n >> 1)
    x_adv(a)
    r2 = [RG, RG + 4, RG + 8, RG + 12, KA + 4, KA + 12]
    low = []
    at = {12: [lambda: x_flag(a)], PJP: [lambda: x_poll(a)], PJP + 9: [lambda: x_chk(a)]}
    dl = x_dma_list(WT)
    for n in range(36):
        j, rt = n >> 1, n & 1
        x = r1[n % 6]
        low += at.get(n, [])
        if n > PJP + 9:
            low += [dl.pop(0) for _ in range(2) if dl]
        for q in range(4):
            b = q >> 1
            if q & 1:
                acc = VA + 8 * b + 4 * rt
                a.mfma(acc, x, W[('v', b, j)], None if j == 0 else acc)
            else:
                acc = KA + 8 * rt + 4 * b
                a.mfma(acc, W[('k', b, j)], x, None if j == 0 else acc)
            if q == 3:
                if n + 6 < 36:
                    xread(a, x, (n + 6) & 1, (n + 6) >> 1)
                elif x in r2[:4]:
                    m = r2.index(x)
                    xread(a, x, m & 1, m >> 1)
                a.prewait_regs(r1[(n + 1) % 6] if n < 35 else r2[0])
            elif q != 1:
                a.fill(low)
    assert not low
    stamp(a, stamps, 1)
    low = [f's_add_u32 s60, s{sOut}, 8192', f's_add_u32 s61, s{sOut}, 16384']
    st = []
    for gi, (base, so) in enumerate(((KA, 60), (KA + 8, 60), (VA, 61), (VA + 8, 61))):
        low += [f'v_cvt_pk_bf16_f32 v{base + x}, v{base + 2 * x}, v{base + 2 * x + 1}' for x in range(4)]
        if gi < 2:
            low.append(lambda gi=gi: xread(a, r2[4 + gi], gi, 2))
        st.append(lambda base=base, so=so, gi=gi: a.i(
            f'buffer_store_dwordx4 {R(base, 4)}, v{vLn}, {WS}, s{so} offen offset:{(gi & 1) * 1024} sc1', tag='kv'))
        if gi:
            low.append(st[gi - 1])
    low.append(st[3])
    if not dl:
        a.join_vm_tag('x')
    for n in range(36):
        j, rt = n >> 1, n & 1
        x = r2[n % 6]
        if n >= PJD and dl:
            low.append(dl.pop(0))
            if not dl:
                low.append(lambda: a.join_vm_tag('x'))
        for b in range(2):
            acc = QA + 8 * rt + 4 * b
            a.mfma(acc, W[('q', b, j)], x, None if j == 0 else acc)
            if b == 1:
                if n + 6 < 36:
                    xread(a, x, (n + 6) & 1, (n + 6) >> 1)
                if n < 35:
                    if n < 5:
                        a.fill(low, 4)
                    a.prewait_regs(r2[(n + 1) % 6])
            a.fill(low, 3 if n < 5 else 2)
    assert not low and not dl
    a.batch = 0
    a.wait_tag('kv')
    publish(a, sFp)
    a.i(f's_add_u32 s{sFp}, s{sFp}, 4')
    stamp(a, stamps, 2)
    stamp_flush(a, stamps, 3, sS, KA)
    x_next(a, 'L_proj', 6, (vXe, vXo), tail)
    a.label('L_proj_done')
    rt_stamp(a, stamps, 2, 30)
    a.i('s_endpgm')


def ln_init(a, add=0):
    X, F, t = 16, 64, 140
    srd(a, 12, K_X, 2048 * 1152)
    a.i(f's_lshl_b32 s60, s{sL}, 5')
    a.i(f's_add_u32 s60, s60, s{sIDX}')
    a.i(f's_add_u32 s60, s60, {add}')
    a.i(f's_mul_i32 s61, s60, {UNIT}')
    a.i(f's_mul_i32 s28, s{sW}, 9216')
    a.i(f's_add_u32 s61, s61, s28')
    a.i(f'v_lshrrev_b32 v{t}, 3, v0')
    a.i(f'v_mul_u32_u24 v{t}, 1152, v{t}')
    a.i(f'v_and_b32 v{t + 1}, 7, v0')
    a.i(f'v_lshl_add_u32 v{t}, v{t + 1}, 4, v{t}')
    for i in range(9):
        a.i(f'buffer_load_dwordx4 {R(X + 4 * i, 4)}, v{t}, {IO}, s61 offen offset:{i * 128}')
    for d in range(36):
        a.i(f'v_lshlrev_b32 v{F + 2 * d}, 16, v{X + d}')
        a.i(f'v_and_b32 v{F + 2 * d + 1}, 0xffff0000, v{X + d}')
    s_, q_ = t + 2, t + 3

    def red(r):
        for m in ('quad_perm:[1,0,3,2]', 'quad_perm:[2,3,0,1]', 'row_half_mirror'):
            a.i(f'v_add_f32_dpp v{r}, v{r}, v{r} {m} row_mask:0xf bank_mask:0xf')
    a.i(f'v_add_f32 v{s_}, v{F}, v{F + 1}')
    for d in range(2, 72):
        a.i(f'v_add_f32 v{s_}, v{s_}, v{F + d}')
    red(s_)
    a.i(f'v_mul_f32 v{s_}, {hex(f2u(1 / 576))}, v{s_}')
    for d in range(72):
        a.i(f'v_sub_f32 v{F + d}, v{F + d}, v{s_}')
    a.i(f'v_mul_f32 v{q_}, v{F}, v{F}')
    for d in range(1, 72):
        a.i(f'v_fmac_f32 v{q_}, v{F + d}, v{F + d}')
    red(q_)
    a.i(f'v_mov_b32 v{s_}, {hex(f2u(1e-5))}')
    a.i(f'v_fmac_f32 v{s_}, {hex(f2u(1 / 576))}, v{q_}')
    a.i(f'v_rsq_f32 v{s_}, v{s_}')
    for d in range(72):
        a.i(f'v_mul_f32 v{F + d}, v{F + d}, v{s_}')
    for d in range(36):
        a.i(f'v_cvt_pk_bf16_f32 v{X + d}, v{F + 2 * d}, v{F + 2 * d + 1}')
    a.i(f's_add_u32 s61, s61, {NA}')
    for i in range(9):
        a.i(f'buffer_store_dwordx4 {R(X + 4 * i, 4)}, v{t}, {WS}, s61 offen offset:{i * 128} sc1')
    wait_init(a, t + 1)
    a.i(f'v_and_b32 v{t}, 15, v0')
    a.i(f'v_lshlrev_b32 v{t}, 9, v{t}')
    a.i(f's_lshl_b32 s61, s{sW}, 13')
    a.i('s_lshl_b32 s60, s60, 2')
    a.i('s_add_u32 s61, s61, s60')
    a.i(f'v_mov_b32 v{t + 1}, 1')
    a.i('s_mov_b64 exec, 0xffff')
    a.i(f'buffer_store_dword v{t + 1}, v{t}, {WS}, s61 offen offset:{F_NA} sc1')
    a.i('s_mov_b64 exec, -1')


def geglu(g, u, t, vc0, sc1):
    return [f'v_mul_f32 v{t}, v{g}, v{g}',
            f'v_fma_f32 v{t}, v{t}, s{sc1}, v{vc0}',
            f'v_mul_f32 v{t}, v{t}, v{g}',
            f'v_exp_f32 v{t}, v{t}',
            f'v_mul_f32 v{g}, v{g}, v{u}',
            f'v_add_f32 v{t}, 1.0, v{t}',
            f'v_rcp_f32 v{t}, v{t}',
            f'v_mul_f32 v{g}, v{g}, v{t}']


def up(a, stamps=False):
    a.label('L_up')
    rt_stamp(a, stamps, 0)
    arrive(a)
    a.i(f's_lshl_b32 s{sW1k}, s{sW}, 10')
    a.i(f's_mul_i32 s{sW9k}, s{sW}, 9216')
    ln_init(a)
    W = {}
    for j in range(36):
        for b in range(3):
            W[(b, j)] = 80 + 4 * len(W)
    v3, at, tA = 20, 23, 26
    sw = SWZ['p1', 'nat']
    dma_voff_72(a, v3, sw, 30, 31, 32, upr=24, gpitch=9216)
    a.i(f's_mul_i32 s62, s{sW}, 6')
    bits(a, 30, 0, [(2, 3, 0), (5, 1, 3)], 31)
    bits(a, 32, 30, sw, 31)
    a.i('v_mul_u32_u24 v30, 384, v30')
    a.i('v_bfe_u32 v31, v0, 4, 1')
    a.i('v_mul_u32_u24 v31, 36864, v31')
    a.i('v_add_u32 v30, v30, v31')
    a.i('v_and_b32 v31, 2, v0')
    a.i('v_lshl_add_u32 v30, v31, 2, v30')
    for b in range(3):
        a.i('v_and_b32 v31, 1, v0')
        a.i('v_add_u32 v31, s62, v31')
        a.i(f'v_add_u32 v31, {2 * b}, v31')
        a.i('v_xor_b32 v31, v31, v32')
        a.i(f'v_lshl_add_u32 v{at + b}, v31, 4, v30')
    ds = DsAddr(a, tA)
    a.i(f's_mul_i32 s60, s{sW}, 3072')
    a.i(f's_mul_i32 s61, s{sIDX}, 384')

    def issue(c):
        for mi, karg in enumerate((K_WG, K_WU)):
            srd(a, 8, karg, 576 * 4608 * 2)
            for bi in range(3):
                for k in range(3):
                    dma(a, v3 + k, WT, 60, (BUF0, BUF1)[c & 1] + mi * 36864 + bi * 12288 + k * 1024, 61, 32 * (3 * c + bi) * 9216)
    issue(0)
    issue(1)
    for c in range(6):
        a.waitcnt(vm=18 if c < 5 else 0)
        a.i('s_barrier')
        for b in range(3):
            for jj in range(6):
                tr_frag(a, ds, W[(b, 6 * c + jj)], at + b, (BUF0, BUF1)[c & 1] + jj * 6144, 384, 'nat')
        a.barrier()
        if c + 2 < 6:
            issue(c + 2)
    vC0, vX2, vX3, vH, sC1 = 15, 16, 17, vT, 42
    bits(a, vH, 0, [(0, 15, 4), (5, 1, 8)], 30)
    a.i('v_bfe_u32 v30, v0, 4, 1')
    a.i(f'v_mul_u32_u24 v30, {144 * 1024}, v30')
    a.i(f'v_add_u32 v{vH}, v{vH}, v30')
    a.i('v_and_b32 v33, 31, v0')
    a.i('v_mul_u32_u24 v33, 1152, v33')
    a.i('v_bfe_u32 v34, v0, 1, 3')
    a.i('v_lshrrev_b32 v35, 5, v0')
    a.i('v_xor_b32 v34, v34, v35')
    x_setup(a, NB, F_NB, 30, 31, 32)
    xa = [vXe, vXo, vX2, vX3]
    for q in range(4):
        a.i(f'v_xor_b32 v35, {2 * q}, v34')
        a.i(f'v_lshl_add_u32 v{xa[q]}, v35, 4, v33')
    c0 = -2 * math.sqrt(2 / math.pi) * math.log2(math.e)
    a.i(f'v_mov_b32 v{vC0}, {hex(f2u(c0))}')
    a.i(f's_mov_b32 s{sC1}, {hex(f2u(c0 * 0.044715))}')
    a.i(f's_mul_i32 s{sOut}, s{sL}, {64 * H_UNIT}')
    a.i(f's_add_u32 s{sOut}, s{sOut}, {HB}')
    a.i(f's_mul_i32 s28, s{sIDX}, 6144')
    a.i(f's_add_u32 s{sOut}, s{sOut}, s28')
    a.i(f's_mul_i32 s28, s{sW}, 1536')
    a.i(f's_add_u32 s{sOut}, s{sOut}, s28')
    a.i(f's_lshl_b32 s{sFq}, s{sIDX}, 11')
    a.i(f's_lshl_b32 s28, s{sW}, 9')
    a.i(f's_add_u32 s{sFq}, s{sFq}, s28')
    a.i(f's_lshl_b32 s28, s{sL}, 8')
    a.i(f's_add_u32 s{sFq}, s{sFq}, s28')
    a.i(f's_add_u32 s{sFq}, s{sFq}, {F_H - 4}')
    code_touch(a, 30)
    rt_stamp(a, stamps, 1, 30)
    x_block(a, 7)
    ACC, RG, TM = 20, 52, 72
    a.i(f'v_mov_b32 v18, s{sC1}')
    a.i(f'v_mov_b32 v19, v{vC0}')

    def fin(b, base, srdn=WS, so=sOut):
        return [f'v_cvt_pk_bf16_f32 v{base + k}, v{base + 2 * k}, v{base + 2 * k + 1}' for k in range(4)] + \
               [f'buffer_store_dwordx4 {R(base, 4)}, v{vH}, {srdn}, s{so} offen offset:{b * 512} sc1']

    def epi(base):
        ls = [geglu(base + k, base + 8 + k, TM + k, vC0, sC1) for k in range(8)]
        return [l[st] for st in range(8) for l in ls]

    def epi_pk(g):
        P = lambda r: R(r, 2)
        o = [f'v_pk_mul_f32 {P(TM + k)}, {P(g + k)}, {P(g + k)}' for k in (0, 2, 4, 6)]
        o += [f'v_pk_fma_f32 {P(TM + k)}, {P(TM + k)}, v[18:19], v[18:19] op_sel:[0,0,1] op_sel_hi:[1,0,1]' for k in (0, 2, 4, 6)]
        o += [f'v_pk_mul_f32 {P(TM + k)}, {P(TM + k)}, {P(g + k)}' for k in (0, 2, 4, 6)]
        o += [f'v_exp_f32 v{TM + k}, v{TM + k}' for k in range(8)]
        o += [f'v_pk_mul_f32 {P(g + k)}, {P(g + k)}, {P(g + 8 + k)}' for k in (0, 2, 4, 6)]
        o += [f'v_pk_add_f32 {P(TM + k)}, {P(TM + k)}, 1.0 op_sel_hi:[1,0]' for k in (0, 2, 4, 6)]
        o += [f'v_rcp_f32 v{TM + k}, v{TM + k}' for k in range(8)]
        o += [f'v_pk_mul_f32 {P(g + k)}, {P(g + k)}, {P(TM + k)}' for k in (0, 2, 4, 6)]
        return o

    def rd(n):
        j = n % 36
        a.i(f'ds_read_b128 {R(RG + 4 * (n % 5), 4)}, v{xa[j & 3]} offset:{(j >> 2) * 128}')

    def unit(par):
        AC = lambda b: ACC + 16 * ((b + par) & 1)
        a.label(f'L_up_{par}')
        a.i('s_barrier')
        stamp(a, stamps, 0)
        a.batch = 1
        for n in range(5):
            rd(n)
        x_adv(a)
        low = epi(AC(1)) + fin(2, AC(1), WT, 43)
        at = {UPF: [lambda: x_flag(a)], 39: epi(AC(0)) + fin(0, AC(0)), 75: epi(AC(1)) + fin(1, AC(1))}
        dl = x_dma_list(WT)
        for n in range(108):
            b, j = divmod(n, 36)
            if j == 0 and b:
                assert not low
            a.mfma(AC(b), W[(b, j)], RG + 4 * (n % 5), None if j == 0 else AC(b), k='big')
            if n + 5 < 108:
                rd(n + 5)
            if n < 107:
                a.prewait_regs(RG + 4 * ((n + 1) % 5))
            if n == UPP:
                x_poll(a)
            if n == UPP + 16:
                x_chk(a)
            if n > UPP + 16 and dl:
                a.i(dl.pop(0))
                if dl and not dl[0].startswith('s_') and a.hist[-1].kind == 'salu':
                    a.i(dl.pop(0))
                if not dl:
                    a.join_vm_tag('x')
            if n == UPF:
                x_flag(a)
            else:
                low += at.get(n, [])
            a.fill(low, 6)
        assert not low and not dl
        a.batch = 0
        stamp(a, stamps, 1)
        a.i(f's_mov_b32 s43, s{sOut}')
        a.i(f's_add_u32 s{sOut}, s{sOut}, {H_UNIT}')
        stamp(a, stamps, 2)
        stamp_flush(a, stamps, 3, sS, AC(1))
        x_next(a, 'L_up', 8, xa, epi_pk(AC(2)) + fin(2, AC(2), WS, 43), f'L_up_{1 - par}')
    a.i('s_mov_b32 s43, 0')
    unit(0)
    unit(1)
    a.label('L_up_done')
    rt_stamp(a, stamps, 2, 30)
    a.i('s_endpgm')
```

```python
import math
import struct
from common import *

WORK = 147456
HC = int(os.environ.get('HC', 5))
MEMO, SAO, S1O, OO = 0, 9216, 9216 + 4096, 9216 + 5120
vLn, vMd, vWc, vPs, vAg, vSa, vFl, vT, vQw, vSh, vS1, vQr = range(12)
SEL, KV, A, Dr, C, E0, E1 = 12, 16, 32, 48, 64, 72, 80
LBLK = [0, 1, 4, 5, 8, 9, 12, 13, 16]
sT, sTask, sRS, sAG0, sAG1, sAG2, sPst, sPs8, sU, sC, sKV, sAGb, sXb, sYb, sFo, sFk = range(30, 46)
sM1, sHi, sPx = 46, 48, 50
sH256, sW1k, sW256 = 52, 53, 54


def f2u(x):
    return struct.unpack('<I', struct.pack('<f', x))[0]


def frag_map():
    m = {('q', 0, 17): 76, ('q', 1, 17): 84}
    nxt = [88]

    def al(key):
        m[key] = nxt[0]
        nxt[0] += 4
    for mt in 'kvq':
        for J in range(9):
            for b in range(2):
                for j in (2 * J, 2 * J + 1):
                    if mt != 'q' or (j not in LBLK and j != 17):
                        al((mt, b, j))
    for i in range(9):
        al(('o', i, 0))
        al(('o', i, 1))
    assert nxt[0] == 512, nxt
    return m


def task_id(a):
    a.i(f's_lshl_b32 s{sTask}, s{sW}, 5')
    a.i(f's_add_u32 s{sTask}, s{sTask}, s{sIDX}')


def chain(a, stamps=False):
    W = frag_map()
    a.label('L_chain')
    rt_stamp(a, stamps, 0)
    a.i(f's_lshl_b32 s{sH256}, s{sIDX}, 8')
    a.i(f's_lshl_b32 s{sW1k}, s{sW}, 10')
    a.i(f's_lshl_b32 s{sW256}, s{sW}, 8')
    task_id(a)
    a.i(f's_mov_b32 s{sM1}, 0x00ff00ff')
    a.i(f's_mov_b32 s{sM1 + 1}, 0x00ff00ff')
    a.i(f's_mov_b32 s{sHi}, 0')
    a.i(f's_mov_b32 s{sHi + 1}, -1')
    a.i(f's_mov_b32 s{sC}, {hex(f2u(128 ** -0.5 * math.log2(math.e)))}')
    a.i(f's_mul_i32 s{sRS}, s{sL}, {CRS_L}')
    a.i(f's_add_u32 s{sPst}, s{sRS}, {CRS}')
    a.i(f's_lshl_b32 s28, s{sTask}, 12')
    a.i(f's_add_u32 s{sRS}, s{sPst}, s28')
    a.i(f's_cmp_ge_u32 s{sTask}, 72')
    a.i(f's_cselect_b32 s{sRS}, {OOB}, s{sRS}')
    a.i(f's_mul_i32 s{sAG0}, s{sL}, {CAG_L}')
    a.i(f's_add_u32 s{sAG0}, s{sAG0}, {CAG}')
    a.i(f's_add_u32 s{sAG1}, s{sAG0}, {CAG_SLOT}')
    a.i(f's_add_u32 s{sAG2}, s{sAG0}, {2 * CAG_SLOT}')
    a.i('v_lshlrev_b32 v10, 4, v0')
    bits(a, vAg, 0, [(0, 7, 4), (4, 1, 3)], 12)
    srd(a, 12, K_MEM0, 9216)
    a.i(f's_cmp_ge_u32 s{sTask}, 72')
    a.i('s_cbranch_scc1 L_ch_noinit')
    for k in range(4):
        a.i(f'v_mov_b32 v{16 + k}, 1')
    a.i('v_mov_b32 v20, -1')
    a.i('v_mov_b32 v21, -1')
    for i in range(4):
        a.i(f'buffer_store_dwordx4 v[16:19], v10, {WS}, s{sRS} offen offset:{i * 1024}')
    a.i(f's_lshl_b32 s60, s{sTask}, 7')
    for sl in (sAG1, sAG2):
        a.i(f's_add_u32 s28, s60, s{sl}')
        a.i(f'buffer_store_dwordx2 v[20:21], v{vAg}, {WS}, s28 offen')
    a.i('v_and_b32 v12, 7, v0')
    a.i('v_mul_u32_u24 v12, 1152, v12')
    a.i('v_bfe_u32 v13, v0, 4, 1')
    a.i('v_lshl_add_u32 v12, v13, 5, v12')
    a.i(f's_lshr_b32 s28, s{sTask}, 2')
    a.i('s_lshl_b32 s28, s28, 6')
    a.i(f's_and_b32 s61, s{sTask}, 3')
    a.i('s_lshl_b32 s61, s61, 3')
    a.i('s_add_u32 s28, s28, s61')
    a.i(f'buffer_load_dwordx2 v[22:23], v12, {IO}, s28 offen')
    a.i('v_min_u32 v22, -2, v22')
    a.i('v_min_u32 v23, -2, v23')
    a.i(f's_add_u32 s28, s60, s{sAG0}')
    a.i(f'buffer_store_dwordx2 v[22:23], v{vAg}, {WS}, s28 offen')
    a.label('L_ch_noinit')
    arrive(a)
    hold(a, True)
    vq, v9 = 16, 17
    aQK, aV0, aV1, aO0, aO1, aO8, tA = 26, 27, 28, 29, 30, 31, 32
    dma_voff_pow2(a, vq, 16, 8192, SWZ['p2', 'sp'], 40, 41)
    dma_voff_72(a, v9, SWZ['p1', 'pair'], 40, 41, 42)
    a.i(f's_lshl_b32 s62, s{sW}, 2')
    a.i(f's_lshl_b32 s63, s{sW}, 1')

    def u_qk(t):
        a.i(f'v_and_b32 v{t}, 3, v0')
        a.i(f'v_add_u32 v{t}, s62, v{t}')

    def u_nat(sreg, add):
        def f(t):
            a.i(f'v_bfe_u32 v{t}, v0, 1, 1')
            a.i(f'v_add_u32 v{t}, s{sreg}, v{t}')
            if add:
                a.i(f'v_add_u32 v{t}, {add}, v{t}')
        return f

    def sub8(t):
        a.i(f'v_and_b32 v{t}, 1, v0')
        a.i(f'v_lshlrev_b32 v{t}, 3, v{t}')
    tr_addr(a, aV0, 256, 'sp', SWZ['p2', 'sp'], u_nat(62, 0), sub8, 40, 41)
    tr_addr(a, aV1, 256, 'sp', SWZ['p2', 'sp'], u_nat(62, 2), sub8, 40, 41)
    tr_addr(a, aO0, 1152, 'pair', SWZ['p1', 'pair'], u_nat(62, 0), sub8, 40, 41)
    tr_addr(a, aO1, 1152, 'pair', SWZ['p1', 'pair'], u_nat(62, 2), sub8, 40, 41)
    tr_addr(a, aO8, 1152, 'pair', SWZ['p1', 'pair'], u_nat(63, 64), sub8, 40, 41)
    ds = DsAddr(a, tA)
    a.i(f's_mul_i32 s60, s{sW}, 9216')
    a.i(f's_mul_i32 s61, s{sIDX}, {128 * 1152}')
    chunks = [('k', list(range(0, 9))), ('k', list(range(9, 18))), ('v', list(range(0, 9))), ('v', list(range(9, 18))),
              ('q', [j for j in range(18) if j not in LBLK]), ('o', [0, 1]), ('q', LBLK), ('o', [2, 3])]
    karg = {'q': K_WQ, 'k': K_WK, 'v': K_WV, 'o': K_WO}

    def issue(c):
        m, blks = chunks[c]
        buf = (BUF0, BUF1)[c & 1]
        srd(a, 8, karg[m], 576 * 4096 * 2)
        for bi, j in enumerate(blks):
            if m != 'o':
                for hh in range(2):
                    dma(a, vq, WT, sW1k, buf + bi * 8192 + hh * 4096, sH256, (32 * j + 16 * hh) * 8192)
            else:
                for n in range(9):
                    dma(a, v9 + n, WT, 60, buf + bi * 36864 + n * 1024, 61, j * 36864)

    def reads(c, sel=None, dst=None):
        m, blks = chunks[c]
        buf = (BUF0, BUF1)[c & 1]
        for bi, j in enumerate(blks):
            if sel is not None and bi not in sel:
                continue
            if m == 'o':
                for i in range(9):
                    ar, o = (aO8, 0) if i == 8 else ((aO0, aO1)[i & 1], 256 * (i >> 1))
                    tr_frag(a, ds, dst(('o', i, j)), ar, buf + bi * 36864 + o, 1152, 'pair')
            else:
                for b in range(2):
                    tr_frag(a, ds, dst((m, b, j)), (aV0, aV1)[b], buf + bi * 8192, 256, 'sp')
    issue(0)
    issue(1)
    for c in range(6):
        a.waitcnt(vm=18)
        a.i('s_barrier')
        reads(c, dst=lambda k: W[k])
        a.barrier()
        issue(c + 2)
        if c == HC:
            a.i(f's_add_u32 s28, s{sGID}, s{sW}')
            a.i('s_cmp_lg_u32 s28, 0')
            a.i('s_cbranch_scc1 L_ch_nh')
            wait_init(a, 43)
            a.i(f's_mov_b32 s28, {F_HOLD}')
            a.i(f'buffer_store_dword v43, off, {WS}, s28 sc1')
            a.label('L_ch_nh')
    a.i('v_lshlrev_b32 v33, 4, v0')
    a.i(f's_lshl_b32 s{sXb}, s{sW}, 11')
    a.i(f's_add_u32 s{sYb}, s60, {BUF1}')
    a.waitcnt(vm=18)
    a.i('s_barrier')
    for sel in ([0, 1, 2, 3], [4, 5, 6, 7], [8]):
        tmp = {}
        reads(6, sel, dst=lambda k: tmp.setdefault(k, 40 + 4 * len(tmp)))
        a.barrier()
        a.i(f'v_add_u32 v34, s{sXb}, v33')
        a.i(f'v_add_u32 v34, {sel[0] * 8192}, v34')
        for (m, b, j), r in tmp.items():
            a.i(f'ds_write_b128 v34, {R(r, 4)} offset:{(LBLK.index(j) - sel[0]) * 8192 + b * 1024}')
    a.waitcnt(vm=0)
    a.barrier()
    a.i(f'v_add_u32 v34, s{sYb}, v33')
    for bi in range(2):
        tmp = {}
        reads(7, [bi], dst=lambda k: tmp.setdefault(k, 40 + 4 * len(tmp)))
        a.barrier()
        for (m, i, j), r in tmp.items():
            a.i(f'ds_write_b128 v34, {R(r, 4)} offset:{bi * 36864 + i * 1024}')
    sel_frag(a, SEL, 16, 17)
    bits(a, vMd, 0, [(0, 7, 4), (4, 3, 7)], 16)
    bits(a, vPs, 0, [(0, 7, 4), (4, 3, 12), (3, 1, 30)], 16)
    bits(a, vQw, 0, [(0, 15, 4), (5, 1, 8), (4, 1, 3)], 16)
    bits(a, vQr, 0, [(2, 3, 4), (4, 3, 7), (0, 1, 3)], 16)
    a.i(f's_add_u32 s28, s{sW1k}, {WORK}')
    a.i(f'v_add_u32 v{vQw}, s28, v{vQw}')
    a.i(f'v_add_u32 v{vQr}, s28, v{vQr}')
    a.i(f's_add_u32 s57, s{sXb}, 65536')
    a.i(f's_lshl_b32 s64, s{sW}, 9')
    bits(a, vSh, 0, [(5, 1, 4)], 16)
    a.i(f'v_add_u32 v{vMd}, {WORK}, v{vMd}')
    a.i(f'v_lshlrev_b32 v{vS1}, 2, v0')
    a.i(f'v_add_u32 v{vS1}, {WORK + S1O}, v{vS1}')
    a.i(f'v_lshlrev_b32 v{vLn}, 4, v0')
    a.i(f'v_add_u32 v{vSa}, {WORK}, v{vLn}')
    a.i(f's_lshl_b32 s28, s{sIDX}, 7')
    a.i(f's_add_u32 s{sPst}, s{sPst}, s28')
    a.i(f's_lshr_b32 s28, s{sW}, 1')
    a.i('s_add_u32 s28, s28, 16')
    a.i('s_lshl_b32 s28, s28, 14')
    a.i(f's_add_u32 s{sPs8}, s{sPst}, s28')
    a.i(f's_and_b32 s28, s{sW}, 1')
    a.i('s_lshl_b32 s28, s28, 3')
    a.i(f's_add_u32 s{sPs8}, s{sPs8}, s28')
    a.i(f's_lshl_b32 s28, s{sW}, 14')
    a.i(f's_add_u32 s{sPst}, s{sPst}, s28')
    a.i(f's_mul_i32 s{sAGb}, s{sW}, 3072')
    a.i(f's_lshl_b32 s55, s{sTask}, 7')
    a.i(f's_mul_i32 s{sU}, s{sIDX}, 24576')
    a.i(f's_add_u32 s{sU}, s{sU}, s{sXb}')
    a.i(f's_mul_i32 s28, s{sL}, {64 * QKV_UNIT}')
    a.i(f's_add_u32 s{sU}, s{sU}, s28')
    a.i(f's_add_u32 s{sU}, s{sU}, {QKV + 8192}')
    a.i(f's_lshl_b32 s{sFo}, s{sIDX}, 11')
    a.i(f's_lshl_b32 s28, s{sW}, 9')
    a.i(f's_add_u32 s{sFo}, s{sFo}, s28')
    a.i(f's_lshl_b32 s{sKV}, s{sIDX}, 12')
    a.i(f's_add_u32 s{sKV}, s{sKV}, s28')
    a.i(f's_lshl_b32 s28, s{sL}, 8')
    a.i(f's_add_u32 s{sFo}, s{sFo}, s28')
    a.i(f's_add_u32 s{sFo}, s{sFo}, {F_KV}')
    a.i(f's_lshl_b32 s{sFk}, s{sIDX}, 9')
    a.i(f's_add_u32 s{sFk}, s{sFk}, s28')
    a.i(f's_add_u32 s{sFk}, s{sFk}, {F_KVM - 4}')
    a.i(f's_mul_i32 s28, s{sL}, {64 * KVM_UNIT}')
    a.i(f's_add_u32 s{sKV}, s{sKV}, s28')
    a.i(f's_add_u32 s{sKV}, s{sKV}, {KVM}')
    a.i(f's_mov_b64 s[{sPx}:{sPx + 1}], 0')
    a.i(f's_add_u32 s56, s{sW256}, {(MEMO + 8192 - S1O) & 0xffffffff}')
    a.i(f's_mov_b32 s{sT}, 0')
    wait_init(a, 32)
    a.barrier()
    rt_stamp(a, stamps, 1, 32)

    def I(text, **kw):
        return lambda: a.i(text, **kw)

    def k_loads():
        return [f'buffer_load_dwordx4 {R(KV + 4 * x, 4)}, v{vLn}, {WS}, s{sU} offen offset:{x * 1024} sc1' for x in range(2)]

    def kv_block(code):
        l = spin_head(a, code)
        a.i(f'buffer_load_dword v{vFl}, off, {WS}, s{sFo} sc1')
        a.i(f'v_cmp_eq_u32 vcc, 0, v{vFl}')
        a.i(f's_cbranch_vccnz {l}', nohaz=True)
        for p in k_loads():
            a.i(p)
        a.waitcnt(vm=0)
    kv_block(3)
    a.label('L_ch_loop')
    Ls = [C, Dr + 8]
    r0, r1 = Dr, Dr + 4
    QA, KA = A, A + 8
    a.i(f'v_add_u32 v{vWc}, s57, v{vLn}')

    def lread(J, b):
        for f in range(2):
            a.i(f'ds_read_b128 {R(Ls[b] + 4 * f, 4)}, v{vWc} offset:{(J + f) * 8192 + b * 1024}')
    a.i(f'ds_read_b128 {R(E0, 4)}, v{vWc} offset:0')
    a.i(f'ds_read_b128 {R(E1, 4)}, v{vWc} offset:1024')
    a.i(f'v_add_u32 v{vWc}, s{sXb}, v{vLn}')
    lread(0, 0)
    lread(0, 1)
    for x in range(16):
        a.i(f'v_mov_b32 v{A + x}, 0')
    stamp(a, stamps, 0)
    a.i(f's_add_u32 s60, s{sAG0}, s{sAGb}')
    a.i(f'v_add_u32 v{vT}, s{sAGb}, v{vSa}')
    a.i(f's_mov_b32 s{sTO}, {TIMEOUT}')
    a.i('s_mov_b32 s29, 2')
    a.i(f's_cmp_lg_u32 s{sW}, 3')
    a.i('s_cbranch_scc1 L_ch_ag', nohaz=True)
    a.waitcnt(vm=0)
    a.i('s_branch L_ch_agok')
    a.label('L_ch_ag')
    AG = [r0, r1, KV + 8]
    for i in range(3):
        a.i(f'buffer_load_dwordx4 {R(AG[i], 4)}, v{vLn}, {WS}, s60 offen offset:{i * 1024} sc1')
    a.i(f's_sub_u32 s{sTO}, s{sTO}, 1')
    a.i('s_cbranch_scc1 L_abort', nohaz=True)
    m0 = KV + 12
    for i in range(3):
        r = AG[i]
        a.i(f'ds_write_b128 v{vT}, {R(r, 4)} offset:{MEMO + i * 1024}')
        if i == 0:
            a.i(f'v_max_u32 v{m0}, v{r}, v{r + 1}')
        else:
            a.i(f'v_max3_u32 v{m0}, v{r}, v{r + 1}, v{m0}')
        a.i(f'v_max3_u32 v{m0}, v{r + 2}, v{r + 3}, v{m0}')
    a.i(f'v_cmp_eq_u32 vcc, -1, v{m0}')
    a.i('s_cbranch_vccnz L_ch_ag', nohaz=True)
    a.label('L_ch_agok')
    stamp(a, stamps, 1)
    a.i(f'v_mov_b32 v{vFl}, 0x4444')
    a.i(f'v_mov_b32 v{vT}, 0xeeee')
    a.i(f'v_cndmask_b32 v{vT}, v{vT}, v{vFl}, s[{sM1}:{sM1 + 1}]')
    a.barrier()
    order = [8, 0, 1, 2, 3, 4, 5, 6, 7]
    slot = [r0, r1, KV + 8, KV + 12, r0, E0, E1, r1, r0]
    vslot = [r1, C, C + 4, Dr + 8, Dr + 12, r0, r1, C, C + 4]

    def mread(dst, J):
        a.i(f'ds_read_b128 {R(dst, 4)}, v{vSa} offset:{MEMO + J * 1024}')
    for n in range(4):
        mread(slot[n], order[n])
    stamp(a, stamps, 2)

    def pub():
        a.i(f's_mov_b64 exec, s[{sPx}:{sPx + 1}]')
        a.i(f'buffer_store_dword v{vMd}, off, {WS}, s{sFk} sc1')
        a.vm.pop()
        a.i('s_mov_b64 exec, -1')
    low = [f's_add_u32 s60, s{sU}, 8192', f's_add_u32 s{sFo}, s{sFo}, 4', f'buffer_load_dword v{vFl}, off, {WS}, s{sFo} sc1', pub,
           f's_add_u32 s{sU}, s{sU}, {QKV_UNIT}']
    after = {0: [(4,), (5,), (6,)], 1: [(7,)], 4: [(8,)]}
    for n, J in enumerate(order):
        for oi, (m, b) in enumerate([('q', 0), ('q', 1), ('k', 0), ('k', 1)]):
            acc = (QA if m == 'q' else KA) + 4 * b
            if m == 'q' and J == 8:
                wr = (E0, E1)[b]
            elif (m, b, 2 * J) in W:
                wr = W[(m, b, 2 * J)]
            else:
                wr = Ls[b]
            a.mfma(acc, slot[n], wr, vT, k='sp')
            if wr in Ls and J + 2 < 8:
                lread(J + 2, b)
            if wr in Ls and J == 6:
                for x in (1, 3):
                    if Ls[b] == vslot[x]:
                        mread(vslot[x], order[x])
                        mread(vslot[x + 1], order[x + 1])
            if oi == 3:
                for (x,) in after.get(n, []):
                    mread(slot[x], order[x])
                if n == 2:
                    low.append(f'buffer_load_dwordx4 {R(KV + 8, 4)}, v{vLn}, {WS}, s60 offen sc1')
                if n == 3:
                    low.append(f'buffer_load_dwordx4 {R(KV + 12, 4)}, v{vLn}, {WS}, s60 offen offset:1024 sc1')
                if n == 6:
                    low += [f'v_mov_b32 v{E0 + x}, 0' for x in range(4)]
                if n == 7:
                    low += [f'v_mov_b32 v{E1 + x}, 0' for x in range(4)]
                if n == 7:
                    mread(vslot[0], order[0])
                if n == 8:
                    mread(vslot[5], order[5])
            a.fill(low)
    a.fill(low, 99)
    stamp(a, stamps, 3)
    B = KV
    qf, kf, sm = A, A + 8, A + 12
    X, xm, t0, t1 = A + 4, B + 4, B + 5, B + 6
    G = None

    def bar():
        a.wait_tag('sw')
        stamp(a, stamps, 4)
        a.i('s_barrier')
    def kst():
        a.i(f's_mov_b64 exec, s[{sM1}:{sM1 + 1}]')
        a.i(f'buffer_store_dwordx4 {R(kf, 4)}, v{vMd}, {WS}, s65 offen sc1')
        a.i('s_mov_b64 exec, -1')
    sv = [f's_sub_u32 s65, s{sKV}, {WORK}', G, G]
    for acc in (QA, KA):
        sv += [f'v_permlane32_swap_b32 v{acc + r}, v{acc + 4 + r}' for r in range(4)]
        sv += [f'v_add_f32 v{acc + r}, v{acc + r}, v{acc + 4 + r}' for r in range(4)]
        sv += [f'v_cvt_pk_bf16_f32 v{acc}, v{acc}, v{acc + 1}', f'v_cvt_pk_bf16_f32 v{acc + 1}, v{acc + 2}, v{acc + 3}',
               f'ds_write_b64 v{vQw}, {R(acc, 2)} offset:{SAO + (512 if acc == KA else 0)}']
    sv += [f'ds_read_b64_tr_b16 {R(d + 2 * h, 2)}, v{vQr} offset:{SAO + o + 64 * h}' for d, o in ((qf, 0), (kf, 512)) for h in range(2)]
    sv += [f'v_add_u32 v{vWc}, s{sW256}, v{vS1}', G, G, G, G,
           lambda: a.mfma(B, B, qf, None), lambda: a.mfma(B + 4, B + 4, qf, None), lambda: a.mfma(sm, kf, qf, None),
           kst, f'v_add_u32 v{A + 4}, s{sW1k}, v{vSa}', G, G]
    sv += [f'v_cndmask_b32 v{B + x}, v{B + 4 + x}, v{B + x}, s[{sM1}:{sM1 + 1}]' for x in range(4)]
    sv += [I(f'ds_write_b128 v{A + 4}, {R(B, 4)} offset:{SAO}', tag='sw'),
           f'v_cndmask_b32 v{sm}, v{sm}, v{sm + 1}, s[{sHi}:{sHi + 1}]',
           f'v_cndmask_b32 v{sm + 2}, v{sm + 2}, v{sm + 3}, s[{sHi}:{sHi + 1}]',
           f'v_cndmask_b32 v{sm}, v{sm + 2}, v{sm}, s[{sM1}:{sM1 + 1}]',
           I(f'ds_write_b32 v{vWc}, v{sm}', tag='sw'), G, G, G, bar]
    sv += [f'ds_read_b128 {R(A + 4 * w, 4)}, v{vSa} offset:{SAO + w * 1024}' for w in range(4)]
    sv += [f'ds_read2st64_b32 {R(B + 4, 2)}, v{vS1} offset0:0 offset1:1', f'ds_read2st64_b32 {R(B + 6, 2)}, v{vS1} offset0:2 offset1:3',
           G, G, G, G, G, G]
    wring = [Dr, Dr + 4, Dr + 8, KV + 8, KV + 12]
    groups = [(0, 1), (2, 3), (4, 5), (6, 7, 8)]
    lorder = [(i, kb) for g in groups for kb in (2, 3) for i in g]

    def wread(n):
        i, kb = lorder[n]
        a.i(f'ds_read_b128 {R(wring[n % 5], 4)}, v{vWc} offset:{(kb - 2) * 36864 + i * 1024}')
    nv = 0
    while sv or nv < 18:
        if nv < 18:
            n, b = divmod(nv, 2)
            a.mfma((E0, E1)[b], vslot[n], W[('v', b, 2 * order[n])], vT, k='sp')
            if b == 1 and n < 3:
                mread(vslot[n + 6], order[n + 6])
            nv += 1
        while sv:
            p = sv.pop(0)
            if p is None:
                if nv < 18:
                    break
                continue
            p() if callable(p) else a.i(p)
    stamp(a, stamps, 5)
    ON, LS = C + 4, Dr + 12
    P, Pm = A, C + 2
    OA, OB = A + 8, A + 12
    a.i(f'v_add_u32 v{vWc}, s{sYb}, v{vLn}')
    Q2 = lambda r: R(r, 2)
    for x in (0, 2):
        a.i(f'v_pk_add_f32 {Q2(A + x)}, {Q2(A + x)}, {Q2(A + 4 + x)}')
        a.i(f'v_pk_add_f32 {Q2(A + 8 + x)}, {Q2(A + 8 + x)}, {Q2(A + 12 + x)}')
    a.i(f'v_pk_add_f32 {Q2(B + 4)}, {Q2(B + 4)}, {Q2(B + 6)}')
    for x in (0, 2):
        a.i(f'v_pk_add_f32 {Q2(X + x)}, {Q2(A + x)}, {Q2(A + 8 + x)}')
    a.i(f'v_add_f32 v{xm}, v{B + 4}, v{B + 5}')
    a.i(f'v_max3_f32 v{t0}, v{X}, v{X + 1}, v{X + 2}')
    a.i(f'v_max3_f32 v{t0}, v{X + 3}, v{xm}, v{t0}')
    fl = [f'v_permlane32_swap_b32 v{E0 + r}, v{E1 + r}' for r in range(4)] + \
         [f'v_pk_add_f32 {Q2(E0 + x)}, {Q2(E0 + x)}, {Q2(E1 + x)}' for x in (0, 2)]
    for p in fl[:2]:
        a.i(p)
    a.i(f'v_max_f32_dpp v{t0}, v{t0}, v{t0} row_ror:8 row_mask:0xf bank_mask:0xf')
    for ix, sw in enumerate((16, 32)):
        a.i(f'v_mov_b32 v{t1}, v{t0}')
        for p in fl[2 + 2 * ix:4 + 2 * ix]:
            a.i(p)
        a.i(f'v_permlane{sw}_swap_b32 v{t0}, v{t1}')
        a.i(f'v_max_f32 v{t0}, v{t0}, v{t1}')
    a.i(f'v_mul_f32 v{t0}, s{sC}, v{t0}')
    for r in (X, X + 1, X + 2, X + 3, xm):
        a.i(f'v_fma_f32 v{r}, v{r}, s{sC}, -v{t0}')
    for r in (X, X + 1, X + 2, X + 3, xm):
        a.i(f'v_exp_f32 v{r}, v{r}')
    a.i(f'v_cvt_pk_bf16_f32 v{E1}, v{E0}, v{E0 + 1}')
    a.i(f'v_cvt_pk_bf16_f32 v{E1 + 1}, v{E0 + 2}, v{E0 + 3}')
    a.i(f'v_cvt_pk_bf16_f32 v{P}, v{X}, v{X + 1}')
    a.i(f'v_cvt_pk_bf16_f32 v{P + 1}, v{X + 2}, v{X + 3}')
    a.i(f'v_cvt_pk_bf16_f32 v{Pm}, v{xm}, 0')
    a.i(f'v_mov_b32_dpp v{P + 2}, v{P} row_ror:8 row_mask:0xf bank_mask:0xf')
    a.i(f'v_mov_b32_dpp v{P + 3}, v{P + 1} row_ror:8 row_mask:0xf bank_mask:0xf')
    a.i(f'v_lshlrev_b32 v{Pm}, v{vSh}, v{Pm}')
    a.i(f'v_mov_b32 v{E1 + 2}, v{E1}')
    a.mfma(OA, B + 8, P, None)
    a.i(f'v_mov_b32 v{E1 + 3}, v{E1 + 1}')
    a.i(f'v_mov_b32_dpp v{Pm + 1}, v{Pm} row_ror:8 row_mask:0xf bank_mask:0xf')
    a.mfma(OB, B + 12, P, None)
    a.i(f'v_permlane32_swap_b32 v{E1}, v{E1 + 2}')
    a.i(f'v_permlane32_swap_b32 v{E1 + 1}, v{E1 + 3}')
    for x in range(4):
        a.i(f'v_mov_b32 v{ON + x}, 0x3f803f80')
    a.mfma(OA, E1, Pm, OA, k=16)
    a.mfma(LS, ON, P, None)
    wread(0)
    a.mfma(OB, E1 + 2, Pm, OB, k=16)
    wread(1)
    a.mfma(LS, ON, Pm, LS, k=16)
    a.i(f'v_cmp_eq_u32 s[58:59], 0, v{vFl}')
    a.i(f's_not_b64 exec, s[{sHi}:{sHi + 1}]')
    a.i(f'buffer_store_dwordx4 {R(E1, 4)}, v{vLn}, {WS}, s{sKV} offen offset:2048 sc1')
    a.i('s_not_b64 exec, s[58:59]')
    vm = list(a.vm)
    for p in k_loads():
        a.i(p)
    a.vm = vm
    a.i(f's_mov_b64 exec, s[{sM1}:{sM1 + 1}]')
    a.i(f'v_add_u32 v{vT}, s64, v{vMd}')
    a.i(f'v_rcp_f32 v{LS}, v{LS}')
    a.i(f's_cmp_eq_u32 s{sT}, 63')
    for x in range(0, 8, 2):
        a.i(f'v_pk_mul_f32 {R(OA + x, 2)}, {R(OA + x, 2)}, {R(LS, 2)} op_sel_hi:[1,0]')
    for x in range(4):
        a.i(f'v_cvt_pk_bf16_f32 v{P + x}, v{OA + 2 * x}, v{OA + 2 * x + 1}')
    a.i(f'ds_write_b128 v{vT}, {R(P, 4)} offset:{OO}')
    a.i('s_mov_b64 exec, -1')
    a.i('s_cbranch_scc1 L_ch_end', nohaz=True)
    a.barrier()
    for kb in (2, 0, 3, 1):
        a.i(f'ds_read_b128 {R(A + 4 * kb, 4)}, v{vMd} offset:{OO + kb * 512}')
    wread(2)
    wread(3)
    wread(4)
    stamp(a, stamps, 6)
    low = [f's_mov_b32 s60, s{sPst}', f's_add_u32 s{sKV}, s{sKV}, {KVM_UNIT}', f's_add_u32 s63, s55, s{sAG0}',
           f's_add_u32 s62, s55, s{sAG1}',
           lambda: (a.i(f's_cmp_eq_u32 s{sW}, 3'), a.i(f's_cselect_b32 s{sPx}, 1, 0')), f's_add_u32 s{sFk}, s{sFk}, 4']
    RL = [A, A + 4, A + 8, A + 12]
    rs = [f'buffer_load_dwordx4 {R(RL[i], 4)}, v{vLn}, {WS}, s{sRS} offen offset:{i * 1024} sc1' for i in range(4)]
    ln = 0
    for gi, g in enumerate(groups):
        n = 0
        for kb in (2, 0, 3, 1):
            for i in g:
                acc = ((C, C + 4), (E0, E1))[gi & 1][i & 1] if i < 8 else Dr + 12
                if kb < 2:
                    a.mfma(acc, W[('o', i, kb)], A + 4 * kb, acc)
                else:
                    a.mfma(acc, wring[ln % 5], A + 4 * kb, None if kb == 2 else acc)
                    if ln + 5 < 18:
                        wread(ln + 5)
                    ln += 1
                n += 1
                if n >= 3 or gi == 0:
                    a.fill(low, 3)
        a.fill(low, 99)
        pk, p2 = ((C, C + 4), (E0, E1))[gi & 1]
        low = [f'v_cvt_pk_bf16_f32 v{pk + x}, v{(pk, p2 - 4)[x >> 1] + 2 * x}, v{(pk, p2 - 4)[x >> 1] + 2 * x + 1}' for x in range(4)]
        low.insert(1, f'v_bfi_b32 v{pk}, 1, s{sT}, v{pk}')
        low += [f'v_bfi_b32 v{pk + 2}, 1, s{sT}, v{pk + 2}', f'buffer_store_dwordx4 {R(pk, 4)}, v{vPs}, {WS}, s60 offen']
        if gi < 3:
            low.append('s_add_u32 s60, s60, 65536')
    a.i(f's_cmp_ge_u32 s{sTask}, 72')
    a.i(f's_mov_b32 s{sTO}, {TIMEOUT}')
    a.i('s_mov_b32 s29, 4')
    a.fill(low, 99)
    t8 = Dr + 12
    a.i(f'v_cvt_pk_bf16_f32 v{t8}, v{t8}, v{t8 + 1}')
    a.i(f'v_cvt_pk_bf16_f32 v{t8 + 1}, v{t8 + 2}, v{t8 + 3}')
    a.i(f'v_bfi_b32 v{t8}, 1, s{sT}, v{t8}')
    a.i(f'buffer_store_dwordx2 {R(t8, 2)}, v{vPs}, {WS}, s{sPs8} offen')
    stamp(a, stamps, 7)
    a.i('s_cbranch_scc1 L_ch_next', nohaz=True)
    a.i(f's_cmp_eq_u32 s{sW}, 0')
    a.i('s_cbranch_scc1 L_ch_rs', nohaz=True)
    a.waitcnt(vm=0)
    a.label('L_ch_rs')
    for p in rs:
        a.i(p)
    a.i(f's_sub_u32 s{sTO}, s{sTO}, 1')
    a.i('s_cbranch_scc1 L_abort', nohaz=True)
    a.i(f'v_mov_b32 v{Dr + 2}, -1')
    a.i(f'v_mov_b32 v{Dr + 3}, -1')
    R4, T4 = Dr + 4, Dr + 8
    for i in range(4):
        a.mfma(R4, SEL, RL[i], None if i == 0 else R4)
        a.i(f'v_bitop3_b32 v{T4 + i}, v{RL[i]}, v{RL[i] + 2}, s{sT} bitop3:0x7e')
    a.i(f'v_or3_b32 v{T4}, v{T4}, v{T4 + 1}, v{T4 + 2}')
    a.i(f'v_bitop3_b32 v{T4}, v{T4}, v{T4 + 3}, 1 bitop3:0xa8')
    a.i(f'v_cmp_ne_u32 vcc, 0, v{T4}')
    a.i('s_cbranch_vccnz L_ch_rs', nohaz=True)
    for x in range(4):
        a.i(f'v_add_f32_dpp v{R4 + x}, v{R4 + x}, v{R4 + x} row_ror:8 row_mask:0xf bank_mask:0xf')
    a.i(f'v_cvt_pk_bf16_f32 v{Dr}, v{R4}, v{R4 + 1}')
    a.i(f'v_cvt_pk_bf16_f32 v{Dr + 1}, v{R4 + 2}, v{R4 + 3}')
    a.i(f'v_min_u32 v{Dr}, -2, v{Dr}')
    a.i(f'v_min_u32 v{Dr + 1}, -2, v{Dr + 1}')
    a.i(f'buffer_store_dwordx2 {R(Dr, 2)}, v{vAg}, {WS}, s62 offen')
    a.i(f'buffer_store_dwordx2 {R(Dr + 2, 2)}, v{vAg}, {WS}, s63 offen')
    a.label('L_ch_next')
    stamp(a, stamps, 8)
    stamp_flush(a, stamps, 9, sT, A)
    a.i(f's_mov_b32 s60, s{sAG0}')
    a.i(f's_mov_b32 s{sAG0}, s{sAG1}')
    a.i(f's_mov_b32 s{sAG1}, s{sAG2}')
    a.i(f's_mov_b32 s{sAG2}, s60')
    a.i(f's_add_u32 s{sT}, s{sT}, 1')
    a.i('s_cmp_eq_u64 s[58:59], 0')
    a.i('s_cbranch_scc1 L_ch_loop')
    kv_block(6)
    a.i('s_branch L_ch_loop')
    a.label('L_ch_end')
    a.waitcnt(vm=0, lg=0)
    a.i('s_barrier')
    rt_stamp(a, stamps, 2, 32)
    a.i(f's_cmp_lg_u32 s{sW}, 3')
    a.i('s_cbranch_scc1 L_exit')
    a.i('s_mov_b64 exec, 1')
    a.i(f'buffer_store_dword v{vMd}, off, {WS}, s{sFk} offset:4 sc1')
    a.i('s_endpgm')
    a.out += a.tail
    a.tail = []
```

```python
from asmlib import *
from layout import *
import os

WS = 's[4:7]'
WT = 's[8:11]'
IO = 's[12:15]'
DBG = 's[16:19]'
sW, sIDX, sGID, sTO = 20, 21, 22, 23
sL = 24
TIMEOUT = 1 << 15
BUF0, BUF1 = 0, 73728


def srd(a, base, karg, nbytes):
    a.i(f's_load_dwordx2 s[{base}:{base + 1}], s[0:1], {karg}')
    a.i(f's_mov_b32 s{base + 2}, {nbytes}')
    a.i(f's_mov_b32 s{base + 3}, 0x20000')
    a.waitcnt(lg=0)


def prologue(a, roles):
    if os.environ.get('DBGT'):
        a.i('s_memrealtime s[74:75]')
    a.i(f's_load_dwordx2 s[4:5], s[0:1], {K_WS}')
    a.i(f's_load_dwordx2 s[16:17], s[0:1], {K_DBG}')
    a.i(f's_load_dwordx2 s[8:9], s[0:1], {K_WQ}')
    a.i(f's_load_dwordx2 s[12:13], s[0:1], {K_X}')
    a.i('s_getreg_b32 s25, hwreg(HW_REG_XCC_ID)')
    a.i('s_and_b32 s25, s25, 7')
    a.i('v_lshrrev_b32 v1, 6, v0')
    a.i(f'v_readfirstlane_b32 s{sW}, v1')
    a.i(f's_mov_b32 s6, {WS_BYTES}')
    a.i('s_mov_b32 s7, 0x20000')
    a.i('s_mov_b32 s10, 0')
    a.i('s_mov_b32 s11, 0x20000')
    a.i('s_mov_b32 s14, 0')
    a.i('s_mov_b32 s15, 0x20000')
    a.i('s_mov_b32 s18, 256')
    a.i('s_mov_b32 s19, 0x20000')
    a.i('v_lshlrev_b32 v4, 3, v0')
    a.i('v_and_b32 v0, 63, v0')
    a.i('v_mov_b32 v2, 1')
    a.i('s_lshl_b32 s26, s25, 5')
    a.i('v_mov_b32 v3, s26')
    a.i('v_mov_b32 v5, 0')
    a.waitcnt(lg=0)
    a.i(f's_cmp_lg_u32 s{sW}, 0')
    a.i('s_cbranch_scc1 L_tick_done')
    a.i('s_mov_b64 exec, 1')
    a.i(f'buffer_atomic_add v2, v3, {DBG}, 0 offen sc0 sc1')
    a.i('ds_write_b32 v5, v2')
    a.i('s_mov_b64 exec, -1')
    a.label('L_tick_done')
    a.waitcnt(vm=0, lg=0)
    a.i('s_barrier')
    a.i('ds_read_b32 v2, v5')
    a.i('v_readfirstlane_b32 s27, v2')
    a.i('s_cmp_ge_u32 s27, 32')
    a.i('s_cbranch_scc1 L_exit')
    a.i(f's_add_u32 s{sGID}, s26, s27')
    a.i('s_barrier')
    a.i('s_getpc_b64 s[68:69]')
    a.out.append('L_pc:')
    a.i('s_mov_b32 s70, L_code_end-L_pc')
    a.i('s_mov_b32 s71, 0x20000')
    a.i('s_lshl_b32 s72, s27, 12')
    a.i(f's_lshl_b32 s28, s{sW}, 10')
    a.i('s_add_u32 s72, s72, s28')
    a.i('v_mov_b32 v6, 0')
    a.i('v_mov_b32 v7, 0')
    a.i(f's_lshl_b32 s28, s{sGID}, 11')
    a.i(f'buffer_store_dwordx2 v[6:7], v4, {WS}, s28 offen sc1')
    a.i(f's_and_b32 s{sL}, s25, 1')
    a.i('s_lshr_b32 s25, s25, 1')
    a.i(f's_mov_b32 s{sIDX}, s27')
    a.i('s_cmp_eq_u32 s25, 0')
    a.i(f's_cbranch_scc1 {roles["chain"]}')
    NSW = int(os.environ.get('NSW', 2))
    a.i('s_and_b32 s28, s27, 7')
    a.i('s_lshl_b32 s29, s25, 3')
    a.i('s_add_u32 s28, s28, s29')
    a.i(f's_cmp_lt_u32 s27, {8 * NSW}')
    a.i('s_cselect_b32 s28, s28, 0')
    a.i('s_cmp_eq_u32 s28, 21')
    a.i('s_cselect_b32 s25, 3, s25')
    a.i('s_cselect_b32 s29, 1, 0')
    a.i('s_cmp_eq_u32 s28, 28')
    a.i('s_cselect_b32 s25, 2, s25')
    a.i('s_cselect_b32 s29, 1, s29')
    a.i('s_xor_b32 s27, s27, s29')
    a.i('s_bitcmp1_b32 s27, 0')
    a.i('s_cbranch_scc1 L_disp_odd')
    a.i(f's_lshr_b32 s{sIDX}, s27, 1')
    a.i('s_cmp_eq_u32 s25, 1')
    a.i(f's_cbranch_scc1 {roles["oproj"]}')
    a.i('s_cmp_eq_u32 s25, 2')
    a.i(f's_cbranch_scc1 {roles["down"]}')
    a.i(f's_lshr_b32 s{sIDX}, s27, 2')
    a.i('s_bitcmp0_b32 s27, 1')
    a.i(f's_cbranch_scc1 {roles["atn"]}')
    a.i(f's_add_u32 s{sIDX}, s{sIDX}, 24')
    a.i(f's_branch {roles["proj"]}')
    a.label('L_disp_odd')
    a.i('s_lshl_b32 s28, s25, 3')
    a.i(f's_lshr_b32 s{sIDX}, s27, 2')
    a.i(f's_add_u32 s{sIDX}, s{sIDX}, s28')
    a.i(f's_sub_u32 s{sIDX}, s{sIDX}, 8')
    a.i('s_bitcmp1_b32 s27, 1')
    a.i(f's_cbranch_scc1 {roles["proj"]}')
    a.i(f's_branch {roles["up"]}')
    a.label('L_spare')
    arrive(a)
    a.label('L_exit')
    a.i('s_endpgm')
    a.label('L_abort')
    a.i('s_mov_b64 exec, 1')
    a.i(f's_lshl_b32 s28, s{sGID}, 8')
    a.i('s_or_b32 s29, s29, s28')
    a.i(f's_lshl_b32 s28, s{sW}, 16')
    a.i('s_or_b32 s29, s29, s28')
    a.i('s_or_b32 s29, s29, 0x40000000')
    a.i('v_mov_b32 v2, s29')
    a.i(f'buffer_store_dword v2, off, {DBG}, 0 offset:20 sc1')
    a.i('s_endpgm')


def arrive(a, v=2):
    l = a.new('L_arr')
    a.waitcnt(vm=0)
    a.i('s_barrier')
    a.i(f's_cmp_lg_u32 s{sW}, 0')
    a.i(f's_cbranch_scc1 {l}')
    a.i('s_mov_b64 exec, 1')
    a.i(f'v_mov_b32 v{v}, 1')
    a.i(f'buffer_atomic_add v{v}, off, {DBG}, 0 offset:16 sc1')
    a.i('s_mov_b64 exec, -1')
    a.label(l)


def spin_head(a, code):
    a.i(f's_mov_b32 s{sTO}, {TIMEOUT}')
    a.i(f's_mov_b32 s29, {code}')
    l = a.new('L_spin')
    a.label(l)
    a.i(f's_sub_u32 s{sTO}, s{sTO}, 1')
    a.i('s_cbranch_scc1 L_abort')
    a.i('s_sleep 2')
    return l


def code_touch(a, v):
    if not os.environ.get('CT'):
        return
    a.i(f'v_mbcnt_lo_u32_b32 v{v}, -1, 0')
    a.i(f'v_mbcnt_hi_u32_b32 v{v}, -1, v{v}')
    a.i(f'v_lshlrev_b32 v{v}, 4, v{v}')
    a.i(f'buffer_load_dword v{v}, v{v}, s[68:71], s72 offen')
    a.waitcnt(vm=0)


def wait_init(a, v=2):
    code_touch(a, v)
    l = spin_head(a, 1)
    a.i('s_sleep 4')
    a.i(f'buffer_load_dword v{v}, off, {DBG}, 0 offset:16 sc1')
    a.i(f'v_cmp_gt_u32 vcc, 256, v{v}')
    a.i(f's_cbranch_vccnz {l}')


def hold(a, first_layer_free, v=2):
    if os.environ.get('NOHOLD'):
        return
    e = a.new('L_hold')
    if first_layer_free:
        a.i(f's_cmp_eq_u32 s{sL}, 0')
        a.i(f's_cbranch_scc1 {e}')
    wait_init(a, v)
    a.i(f's_mov_b32 s60, {F_HOLD}')
    l = spin_head(a, 30)
    a.i('s_sleep 16')
    a.i(f'buffer_load_dword v{v}, off, {WS}, s60 sc1')
    a.i(f'v_cmp_eq_u32 vcc, 0, v{v}')
    a.i(f's_cbranch_vccnz {l}')
    a.label(e)


class DsAddr:
    def __init__(self, a, tmp):
        self.a, self.tmp, self.cur = a, tmp, None

    def __call__(self, reg, off):
        if off < 65536:
            return f'v{reg}', off
        hi = off & ~0x7fff
        if self.cur != (reg, hi):
            if self.cur and self.cur[0] == reg and 0 <= off - self.cur[1] < 65536:
                return f'v{self.tmp}', off - self.cur[1]
            self.a.i(f'v_add_u32 v{self.tmp}, {hi}, v{reg}')
            self.cur = (reg, hi)
        return f'v{self.tmp}', off - hi


def bits(a, dst, src, spec, tmp):
    first = True
    for s, m, d in spec:
        t = dst if first else tmp
        a.i(f'v_lshrrev_b32 v{t}, {s}, v{src}')
        a.i(f'v_and_b32 v{t}, {m}, v{t}')
        if first:
            if d:
                a.i(f'v_lshlrev_b32 v{t}, {d}, v{t}')
        else:
            a.i(f'v_lshl_or_b32 v{dst}, v{t}, {d}, v{dst}')
        first = False


SWZ = {
    ('p2', 'pair'): [(0, 7, 1)],
    ('p1', 'pair'): [(1, 3, 1)],
    ('p1', 'nat'): [(1, 1, 1), (3, 1, 2)],
    ('p2', 'nat'): [(0, 3, 1), (3, 1, 3)],
    ('p2', 'sp'): [(0, 1, 1), (2, 1, 2)],
    'x': [(1, 7, 0)],
}


def dma_voff_pow2(a, dst, upr, gpitch, swz, t0, t1):
    lg = {8: 3, 16: 4}[upr]
    rpi = 64 // upr
    a.i(f'v_lshrrev_b32 v{t0}, {lg}, v0')
    a.i(f's_mul_i32 s28, s{sW}, {rpi}')
    a.i(f'v_add_u32 v{t0}, s28, v{t0}')
    bits(a, dst, t0, swz, t1)
    a.i(f'v_and_b32 v{t1}, {upr - 1}, v0')
    a.i(f'v_xor_b32 v{dst}, v{dst}, v{t1}')
    a.i(f'v_lshlrev_b32 v{dst}, 4, v{dst}')
    a.i(f'v_mul_u32_u24 v{t0}, {gpitch}, v{t0}')
    a.i(f'v_add_u32 v{dst}, v{dst}, v{t0}')


def dma_voff_72(a, dst9, swz, t0, t1, t2, upr=72, gpitch=1152):
    magic = {72: 911, 24: 2731}[upr]
    assert all((u * magic) >> 16 == u // upr for u in range(8 * upr))
    a.i(f's_lshl_b32 s28, s{sW}, 3')
    for n in range(upr // 8):
        d = dst9 + n
        a.i(f'v_add_u32 v{t2}, {64 * n}, v0')
        a.i(f'v_mul_u32_u24 v{t0}, {magic}, v{t2}')
        a.i(f'v_lshrrev_b32 v{t0}, 16, v{t0}')
        a.i(f'v_mul_u32_u24 v{t1}, {upr}, v{t0}')
        a.i(f'v_sub_u32 v{t2}, v{t2}, v{t1}')
        a.i(f'v_add_u32 v{t0}, s28, v{t0}')
        bits(a, d, t0, swz, t1)
        a.i(f'v_xor_b32 v{d}, v{d}, v{t2}')
        a.i(f'v_lshlrev_b32 v{d}, 4, v{d}')
        a.i(f'v_mul_u32_u24 v{t0}, {gpitch}, v{t0}')
        a.i(f'v_add_u32 v{d}, v{d}, v{t0}')


def dma(a, voff, srdn, s_lds, lds_off, s_src, src_off, mods='', tag=None):
    a.i(f's_add_u32 m0, s{s_lds}, {lds_off}')
    a.i(f's_add_u32 s28, s{s_src}, {src_off}')
    a.i(f'buffer_load_dwordx4 v{voff}, {srdn}, s28 offen{mods} lds', tag=tag)


def tr_addr(a, dst, pitch, korder, swz, unit_expr, sub_expr, t0, t1):
    if korder == 'pair':
        a.i(f'v_lshrrev_b32 v{t0}, 2, v0')
    elif korder == 'sp':
        bits(a, t0, 0, [(2, 1, 0), (3, 1, 2), (5, 1, 3), (4, 1, 4)], t1)
    else:
        bits(a, t0, 0, [(2, 3, 0), (4, 3, 3)], t1)
    bits(a, dst, t0, swz, t1)
    unit_expr(t1)
    a.i(f'v_xor_b32 v{dst}, v{dst}, v{t1}')
    a.i(f'v_lshlrev_b32 v{dst}, 4, v{dst}')
    a.i(f'v_mul_u32_u24 v{t0}, {pitch}, v{t0}')
    a.i(f'v_add_u32 v{dst}, v{dst}, v{t0}')
    if sub_expr:
        sub_expr(t1)
        a.i(f'v_add_u32 v{dst}, v{dst}, v{t1}')


def tr_frag(a, ds, dreg, areg, off, pitch, korder):
    half = {'pair': 16, 'nat': 4, 'sp': 2}[korder] * pitch
    for h in range(2):
        r, o = ds(areg, off + h * half)
        a.i(f'ds_read_b64_tr_b16 {R(dreg + 2 * h, 2)}, {r} offset:{o}')


import os
PROF = os.environ.get('PROF')


LITE = os.environ.get('LITE')


def stamp(a, on, k):
    if LITE:
        return
    if on and PROF:
        if k == 0:
            a.prof([int(x) for x in PROF.split(',')])
        return
    if on:
        a.i(f'{"s_memrealtime" if os.environ.get("RT") else "s_memtime"} s[{80 + 2 * k}:{81 + 2 * k}]')


def stamp_flush(a, on, n, sstep, v0):
    if not on or LITE:
        return
    if PROF:
        n = len(PROF.split(',')) + 1
        a.i(f's_memtime s[{80 + 2 * (n - 1)}:{81 + 2 * (n - 1)}]')
        a.pm = None
    a.waitcnt(lg=0)
    for k in range(n):
        a.i(f'v_mov_b32 v{v0 + k}, s{80 + 2 * k}')
    a.i(f's_lshl_b32 s28, s{sstep}, 8')
    a.i(f's_add_u32 s28, s28, s{sGID}')
    a.i('s_lshl_b32 s28, s28, 2')
    a.i(f's_add_u32 s28, s28, s{sW}')
    a.i('s_lshl_b32 s28, s28, 6')
    a.i(f's_add_u32 s28, s28, {STAMP + 65536}')
    a.i('s_mov_b64 exec, 1')
    for k in range(0, n, 4):
        a.i(f'buffer_store_dwordx4 {R(v0 + k, 4)}, off, {WS}, s28 offset:{4 * k}')
    a.i('s_mov_b64 exec, -1')


def rt_stamp(a, on, slot, v0=8):
    if not on:
        return
    if os.environ.get('DBGT'):
        tab = {0: [(0, 1), (31, 9)], 1: [(0, 2), (31, 10), (67, 11), (32, 12)], 2: [(0, 3), (32, 6), (160, 7), (128, 13), (64, 14)]}[slot]
        for gid, word in tab:
            l = a.new('L_rt')
            a.i(f's_lshl_b32 s28, s{sW}, 8')
            a.i(f's_add_u32 s28, s28, s{sGID}')
            a.i(f's_cmp_lg_u32 s28, {gid}')
            a.i(f's_cbranch_scc1 {l}')
            a.i('s_memrealtime s[76:77]')
            a.waitcnt(lg=0)
            a.i('s_sub_u32 s76, s76, s74')
            a.i(f'v_mov_b32 v{v0}, s76')
            a.i('s_mov_b64 exec, 1')
            a.i(f'buffer_store_dword v{v0}, off, {DBG}, 0 offset:{word * 4} sc1')
            a.i('s_mov_b64 exec, -1')
            a.label(l)
        return
    l = a.new('L_rt')
    a.i(f's_cmp_lg_u32 s{sW}, 0')
    a.i(f's_cbranch_scc1 {l}')
    a.i('s_memrealtime s[76:77]')
    a.waitcnt(lg=0)
    a.i(f'v_mov_b32 v{v0}, s76')
    a.i(f's_lshl_b32 s28, s{sGID}, 6')
    a.i(f's_add_u32 s28, s28, {STAMP}')
    a.i('s_mov_b64 exec, 1')
    a.i(f'buffer_store_dword v{v0}, off, {WS}, s28 offset:{slot * 4}')
    a.i('s_mov_b64 exec, -1')
    a.label(l)


def sel_frag(a, dst, t0, t1, dual=False):
    a.i(f'v_and_b32 v{t0}, 1, v0')
    a.i(f'v_lshlrev_b32 v{t0}, 4, v{t0}')
    a.i(f'v_mov_b32 v{t1}, 0x3f80')
    a.i(f'v_lshlrev_b32 v{t1}, v{t0}, v{t1}')
    if dual:
        a.i(f'v_lshrrev_b32 v{t0}, 2, v0')
        a.i(f'v_xor_b32 v{t0}, v{t0}, v0')
        a.i(f'v_and_b32 v{t0}, 8, v{t0}')
        a.i(f'v_cmp_eq_u32 vcc, 0, v{t0}')
        a.i(f'v_cndmask_b32 v{t1}, 0, v{t1}, vcc')
    a.i(f'v_bfe_u32 v{t0}, v0, 1, 2')
    for k in range(4):
        a.i(f'v_cmp_eq_u32 vcc, {k}, v{t0}')
        a.i(f'v_cndmask_b32 v{dst + k}, 0, v{t1}, vcc')
```

```python
import math
from common import *
from chain import f2u

vLn, vPs, vP1, vR1, vR2, vT1, vT2, vTr, vL2, vFa, vFl, vT, vKm, vVm, vXb, vXq = range(16)
SEL = 16
sS, sTag, sPst, sRd, sRes, sYo, sFp, sFn, sIn, sSl, sW1k, sSp, sPre, sLb, sDx = range(30, 45)
TBO = 16384
INB = 32768


def kstage(a, W, nkb, karg, nbytes, sbase, ko):
    v9, at, tA = 24, 33, 37
    sw = SWZ['p1', ko]
    dma_voff_72(a, v9, sw, 40, 41, 42)
    a.i(f's_mul_i32 s62, s{sW}, 18')
    for i in range(4):
        def un(t, i=i):
            a.i(f'v_bfe_u32 v{t}, v0, 1, 1')
            a.i(f'v_add_u32 v{t}, s62, v{t}')
            if i:
                a.i(f'v_add_u32 v{t}, {2 * i}, v{t}')

        def sub(t):
            a.i(f'v_and_b32 v{t}, 1, v0')
            a.i(f'v_lshlrev_b32 v{t}, 3, v{t}')
        tr_addr(a, at + i, 1152, ko, sw, un, sub, 40, 41)
    ds = DsAddr(a, tA)
    a.i(f's_mul_i32 s60, s{sW}, 9216')
    srd(a, 8, karg, nbytes)
    chunks = [list(range(k, min(k + 2, nkb))) for k in range(0, nkb, 2)]

    def issue(c):
        for bi, kb in enumerate(chunks[c]):
            for n in range(9):
                dma(a, v9 + n, WT, 60, (BUF0, BUF1)[c & 1] + bi * 36864 + n * 1024, sbase, kb * 36864)
    issue(0)
    issue(1)
    for c in range(len(chunks)):
        a.waitcnt(vm=9 * len(chunks[c + 1]) if c + 1 < len(chunks) else 0)
        a.i('s_barrier')
        for bi, kb in enumerate(chunks[c]):
            for i in range(9):
                tr_frag(a, ds, W[(i, kb)], at + (i & 3), (BUF0, BUF1)[c & 1] + bi * 36864 + 128 * (i >> 2), 1152, ko)
        a.barrier()
        if c + 2 < len(chunks):
            issue(c + 2)


def kinit(a, grp):
    a.i(f's_lshl_b32 s{sW1k}, s{sW}, 10')
    a.i(f's_add_u32 s28, s{sL}, {grp}')
    a.i(f's_mul_i32 s{sSl}, s28, {2 * PRS_SLOT}')
    a.i(f's_add_u32 s{sSl}, s{sSl}, {PRS}')
    a.i(f's_mul_i32 s{sRd}, s{sIDX}, {UNIT}')
    a.i(f's_add_u32 s{sRd}, s{sRd}, s{sSl}')
    a.i('v_lshlrev_b32 v10, 4, v0')
    for k in range(4):
        a.i(f'v_mov_b32 v{16 + k}, 1')
    a.i(f's_mul_i32 s60, s{sW}, 9216')
    a.i(f's_add_u32 s60, s60, s{sRd}')
    for sl in range(2):
        for n in range(9):
            a.i(f's_add_u32 s28, s60, {sl * PRS_SLOT + n * 1024}')
            a.i(f'buffer_store_dwordx4 v[16:19], v10, {WS}, s28 offen')
    arrive(a)


def ksetup(a, bufbytes):
    t0, t1, t2 = 40, 41, 42
    sel_frag(a, SEL, t0, t1)
    a.i(f'v_lshrrev_b32 v{t0}, 4, v0')
    a.i(f'v_and_b32 v{t1}, 15, v0')
    a.i(f'v_mul_u32_u24 v{t2}, {2 * UNIT}, v{t0}')
    a.i(f'v_lshl_add_u32 v{vPs}, v{t1}, 4, v{t2}')
    a.i(f'v_lshl_add_u32 v{vP1}, v{t1}, 2, v{t2}')
    a.i(f's_mul_i32 s60, s{sW}, 576')
    a.i(f's_add_u32 s61, s60, {TBO}')
    bits(a, vT1, 0, [(0, 15, 2), (4, 1, 7)], t2)
    a.i(f'v_add_u32 v{vT1}, s61, v{vT1}')
    bits(a, vT2, 0, [(0, 3, 4), (4, 1, 3)], t2)
    a.i(f'v_add_u32 v{vT2}, s61, v{vT2}')
    a.i(f'v_mul_u32_u24 v{t2}, 2304, v{t0}')
    a.i(f'v_lshl_add_u32 v{vR1}, v{t1}, 4, v{t2}')
    bits(a, t1, 0, [(2, 3, 2), (4, 3, 0)], t2)
    a.i(f'v_mul_u32_u24 v{vR2}, 2304, v{t1}')
    a.i(f'v_and_b32 v{t1}, 3, v0')
    a.i(f'v_lshl_add_u32 v{vR2}, v{t1}, 4, v{vR2}')
    a.i(f's_lshr_b32 s61, s{sW}, 1')
    a.i(f's_mul_i32 s62, s61, 2304')
    a.i(f's_add_u32 s62, s62, {TBO}')
    a.i(f'v_lshlrev_b32 v{vTr}, 5, v0')
    a.i(f'v_add_u32 v{vTr}, s62, v{vTr}')
    a.i(f'v_lshlrev_b32 v{vL2}, 1, v0')
    a.i(f's_mul_i32 s{sPst}, s{sIDX}, 2304')
    a.i(f's_mul_i32 s61, s61, 1152')
    a.i(f's_add_u32 s{sRes}, s{sPst}, s61')
    a.i(f's_add_u32 s{sPst}, s{sPst}, s60')
    a.i(f's_add_u32 s{sPst}, s{sPst}, s{sSl}')
    a.i(f's_add_u32 s{sRd}, s{sRd}, s60')
    a.i(f's_lshl_b32 s{sFp}, s{sIDX}, 11')
    a.i(f's_lshl_b32 s28, s{sW}, 9')
    a.i(f's_add_u32 s{sFp}, s{sFp}, s28')
    a.i(f's_add_u32 s28, s{sRd}, {PRS_SLOT}')
    a.i(f's_xor_b32 s{sSp}, s28, s{sRd}')
    a.i(f's_add_u32 s28, s{sPst}, {PRS_SLOT}')
    a.i(f's_xor_b32 s53, s28, s{sPst}')
    a.i(f's_bitcmp0_b32 s{sW}, 0')
    a.i(f's_cselect_b32 s{sEv}, -1, 0')
    a.i(f's_cselect_b32 s{sEv + 1}, 1.0, 0')
    a.i('s_mov_b64 s[56:57], 1')
    a.i(f's_add_u32 s28, s62, 2048')
    a.i(f'v_lshl_add_u32 v{vT}, v{vL2}, 1, s28')
    a.i(f's_lshl_b32 s28, s{sW}, 2')
    a.i(f's_add_u32 s28, s28, {VOTE}')
    a.i(f'v_mov_b32 v{vKm}, s28')
    a.i(f'v_mov_b32 v{vVm}, {VOTE}')
    a.i(f's_mov_b32 s{sDx}, {bufbytes}')
    a.i(f's_mov_b32 s{sS}, 0')
    a.i(f's_mov_b32 s{sPre}, 0')
    a.i('s_mov_b64 s[54:55], 0')
    a.i(f'v_lshlrev_b32 v{vLn}, 4, v0')


X, ACC, PK, L, F3, T, RS = 20, 92, 108, 128, 164, 176, 180
sTr, sEv = 51, 58
KDE = int(os.environ.get('KDE', 1))
KTB = int(os.environ.get('KTB', 13))
KC = int(os.environ.get('KC', 46))
KFO = int(os.environ.get('KFO', -15))
KRD = int(os.environ.get('KRD', 3))
KFL = int(os.environ.get('KFL', -6))
KRM = int(os.environ.get('KRM', 3))
VOTE = TBO + 6144
KST = os.environ.get('KST')


def kst(a, k):
    if KST:
        a._emit(Ins(f's_memtime s[{80 + 2 * k}:{81 + 2 * k}]'))


vF2 = 185


def rs_ld(n):
    if n == 8:
        return f'buffer_load_dwordx4 {R(L + 32, 4)}, v{vR2}, {WS}, s{sRd} offen offset:512 sc1'
    x, G = n & 3, n >> 2
    return f'buffer_load_dwordx4 {R(L + 4 * n, 4)}, v{vR1}, {WS}, s{63 + x if x else sRd} offen offset:{256 * G} sc1'


def rs_load(a, n):
    a.i(rs_ld(n))


RD_ADV = [f's_xor_b32 s{sRd}, s{sRd}, s{sSp}'] + [f's_add_u32 s{63 + x}, s{sRd}, {x * 9216}' for x in (1, 2, 3)]


def rs_group(a, code, ns, reload):
    lr, lc = a.new('L_rsr'), a.new('L_rsc')
    a.tail += [lr + ':', f'    s_mov_b32 s29, {code}', f'    s_sub_u32 s{sTO}, s{sTO}, 1', '    s_cbranch_scc1 L_abort', '    s_nop 7']
    a.tail += ['    ' + rs_ld(n) for n in reload] + ['    s_waitcnt vmcnt(0)', f'    s_branch {lc}']
    pm, a.pm = getattr(a, 'pm', None), None
    a.out.append(lc + ':')
    words = []
    for n in ns:
        words += [L + 4 * n] if n < 8 else [L + 32 + x for x in range(4)]
    chk = [f'v_bitop3_b32 v{T + x}, v{words[2 * x]}, v{words[2 * x + 1]}, s{sTr} bitop3:0x7e' for x in range(len(words) // 2)]
    if len(chk) == 6:
        chk = chk[:4] + [f'v_or3_b32 v{T + 1}, v{T + 1}, v{T + 2}, v{T + 3}'] + \
              [c.replace(f'v{T + 4},', f'v{T + 2},').replace(f'v{T + 5},', f'v{T + 3},') for c in chk[4:]]
    if len(chk) >= 4:
        chk.append(f'v_or3_b32 v{T + 1}, v{T + 1}, v{T + 2}, v{T + 3}')
    chk += [f'v_bitop3_b32 v{T}, v{T}, v{T + 1}, 1 bitop3:0xa8', f'v_cmp_ne_u32 vcc, 0, v{T}']
    a.prewait_regs(L + 4 * ns[-1])
    for n in ns:
        acc = F3 + 4 * (n >> 2)
        a.mfma(acc, SEL, L + 4 * n, None if n % 4 == 0 else acc)
        a.fill(chk)
    for p in chk:
        a.i(p)
    a.i(f's_cbranch_vccnz {lr}', nohaz=True)
    a.pm = pm


def t_wr(G):
    if G < 2:
        return [f'ds_write_b32 v{vT1}, v{F3 + 4 * G + r} offset:{256 * G + (r & 1) * 2304 + (r >> 1) * 64}' for r in range(4)]
    return [f'v_add_f32_dpp v{F3 + 8 + k}, v{F3 + 8 + k}, v{F3 + 8 + k} row_ror:{d} row_mask:0xf bank_mask:0xf'
            for d in (4, 8) for k in range(4)] + \
           [f'ds_write_b32 v{vT2}, v{F3 + 8 + r} offset:{512 + (r & 1) * 2304 + (r >> 1) * 4}' for r in range(4)]


def reduce_phase(a, code, fetch):
    kst(a, 5)
    rs_group(a, code, [0, 1, 2, 3], [0, 1, 2, 3])
    kst(a, 6)
    a.waitcnt(vm=4)
    for n in range(4, 8):
        rs_load(a, n)
    for p in t_wr(0):
        a.i(p)
    a.waitcnt(vm=4)
    kst(a, 7)
    rs_load(a, 8)
    fetch()
    kst(a, 8)
    rs_group(a, code, [4, 5, 6, 7], [4, 5, 6, 7, 8])
    kst(a, 9)
    rs_group(a, code, [8], [8])
    for p in t_wr(1) + t_wr(2):
        a.i(p)


def ln_stream(out_srd, pk=False):
    F, PKD = globals()['L'] + 26, globals()['L'] + 16
    s1, q1, s2, q2 = T, T + 1, T + 2, T + 3
    P = lambda r: R(r, 2)
    L = globals()['L'] + 16
    o = [f'ds_read_b128 {R(F, 4)}, v{vTr}', f'ds_read_b128 {R(F + 4, 4)}, v{vTr} offset:16', f'ds_read_b32 v{F + 8}, v{vT}']
    for k in range(4):
        o += [f'v_lshlrev_b32 v{L + 2 * k}, 16, v{RS + k}', f'v_and_b32 v{L + 2 * k + 1}, 0xffff0000, v{RS + k}']
    o += [f'v_lshlrev_b32 v{L + 8}, 16, v{RS + 4}']
    if pk:
        o += [f'v_pk_add_f32 {P(F + k)}, {P(F + k)}, {P(L + k)}' for k in (0, 2, 4, 6)] + [f'v_add_f32 v{F + 8}, v{F + 8}, v{L + 8}']
        o += [f'v_pk_add_f32 {P(L)}, {P(F)}, {P(F + 2)}', f'v_pk_add_f32 {P(L + 2)}, {P(F + 4)}, {P(F + 6)}',
              f'v_pk_mul_f32 {P(L + 4)}, {P(F)}, {P(F)}', f'v_pk_add_f32 {P(L)}, {P(L)}, {P(L + 2)}']
        o += [f'v_pk_fma_f32 {P(L + 4)}, {P(F + k)}, {P(F + k)}, {P(L + 4)}' for k in (2, 4, 6)]
        o += [f'v_add_f32 v{s1}, v{L}, v{L + 1}', f'v_fma_f32 v{q1}, v{F + 8}, v{F + 8}, v{L + 4}',
              f'v_add_f32 v{s1}, v{s1}, v{F + 8}', f'v_add_f32 v{q1}, v{q1}, v{L + 5}']
    else:
        o += [f'v_add_f32 v{F + k}, v{F + k}, v{L + k}' for k in range(9)]
        o += [f'v_add_f32 v{s1}, v{F}, v{F + 1}', f'v_mul_f32 v{q1}, v{F}, v{F}', f'v_fmac_f32 v{q1}, v{F + 1}, v{F + 1}']
        for k in range(2, 9):
            o += [f'v_add_f32 v{s1}, v{s1}, v{F + k}', f'v_fmac_f32 v{q1}, v{F + k}, v{F + k}']
    for m in ('quad_perm:[1,0,3,2]', 'quad_perm:[2,3,0,1]', 'row_half_mirror', 'row_mirror'):
        o += [f'v_add_f32_dpp v{r}, v{r}, v{r} {m} row_mask:0xf bank_mask:0xf' for r in (s1, q1)]
    o += [f'v_mov_b32 v{q2}, {hex(f2u(1e-5))}', f'v_permlane16_swap_b32 v{s1}, v{q1}', f'v_add_f32 v{s1}, v{s1}, v{q1}',
          f'v_mov_b32 v{s2}, v{s1}', f's_add_u32 s{sRes}, s{sRes}, {UNIT}', f'v_permlane32_swap_b32 v{s1}, v{s2}',
          f'v_add_f32 v{s1}, v{s1}, v{s2}', f'v_mul_f32 v{s1}, {hex(f2u(1 / 576))}, v{s1}',
          f'v_readlane_b32 s60, v{s1}, 0', f'v_readlane_b32 s28, v{s1}, 16',
          f'v_add_f32 v{q2}, s28, v{q2}', f'v_fma_f32 v{q2}, -v{s1}, s60, v{q2}']
    o += [f'v_rsq_f32 v{q2}, v{q2}', f's_andn2_b32 s60, s60, s{sEv}', f'v_readlane_b32 s28, v{q2}, 0',
          f's_andn2_b32 s28, s28, s{sEv}', f's_or_b32 s28, s28, s{sEv + 1}', f'v_mov_b32 v{s2}, s28', f'v_mul_f32 v{q2}, s60, v{s2}']
    if pk:
        o += [f'v_pk_fma_f32 {P(F + k)}, {P(F + k)}, {P(s2)}, {P(s2)} op_sel:[0,0,1] op_sel_hi:[1,0,1] neg_lo:[0,0,1] neg_hi:[0,0,1]'
              for k in (0, 2, 4, 6)] + [f'v_fma_f32 v{F + 8}, v{F + 8}, v{s2}, -v{q2}']
    else:
        o += [f'v_fma_f32 v{F + k}, v{F + k}, v{s2}, -v{q2}' for k in range(9)]
    o += [f'v_cvt_pk_bf16_f32 v{PKD + k}, v{F + 2 * k}, v{F + 2 * k + 1}' for k in range(4)] + [f'v_cvt_pk_bf16_f32 v{PKD + 4}, v{F + 8}, 0']
    o += [f'buffer_store_dwordx4 {R(PKD, 4)}, v{vLn}, {out_srd}, s{sYo} offen sc1',
          f'buffer_store_short v{PKD + 4}, v{vL2}, {out_srd}, s{sYo} offen offset:1024 sc1',
          f's_add_u32 s{sYo}, s{sYo}, {UNIT}']
    return o


def klate(a):
    a.i('s_mov_b64 exec, 1')
    a.i(f'buffer_store_dword v{vTr}, off, {WS}, s{sFp} sc1')
    a.i('s_mov_b64 exec, -1')
    a.i(f's_add_u32 s{sFp}, s{sFp}, 4')


def ktail():
    so = [67, 61, 62, 63]
    o = []
    for q in range(4):
        r = PK + 16 + q
        o += [f'v_cvt_pk_bf16_f32 v{r}, v{ACC + 2 * q}, v{ACC + 2 * q + 1}', f'v_bfi_b32 v{r}, 1, s{sTr}, v{r}',
              f'buffer_store_dword v{r}, v{vP1}, {WS}, s{so[q]} offen offset:512']
    return o


def kgemm(a, W, nkb, side, stream, pre=None):
    def xreg(n):
        return X + 4 * ((n & 1) * nkb + (n >> 1))

    def xr(n):
        a.i(f'ds_read_b128 {R(xreg(n), 4)}, v{vXb} offset:{((n & 1) * nkb + (n >> 1)) * 1024}')
    a.batch = 1
    for n in range(8):
        xr(n)
    if pre:
        pre()
    so = [sPst, 61, 62, 63]
    pend = []
    low = [f's_lshr_b32 s{sTag}, s{sS}, 1'] + [f's_add_u32 s{60 + q}, s{sPst}, {(8 * (q >> 1) + (q & 1)) * UNIT}' for q in range(1, 4)]
    k = 0
    for i in range(10):
        acc = ACC + 8 * (i & 1)
        if i < 9:
            for kb in range(nkb):
                for rt in range(2):
                    a.mfma(acc + 4 * rt, X + 4 * (rt * nkb + kb), W[(i, kb)], None if kb == 0 else acc + 4 * rt)
                    if k + 8 < 2 * nkb:
                        xr(k + 8)
                    if k + 1 < 2 * nkb:
                        a.prewait_regs(xreg(k + 1))
                    elif k + 1 == 2 * nkb:
                        a.batch = 0
                    for f in side.get(k, []):
                        if f == 'flush':
                            while low:
                                a.fill(low, 99)
                        else:
                            f()
                    while kb >= 2 and pend and a.gap < 1:
                        p = pend.pop(0)
                        if p:
                            a.i(p)
                        else:
                            break
                    low += stream.get(k, [])
                    a.fill(low, (KRM if nkb == 8 else KRD) if k > 4 * nkb else 2)
                    k += 1
        if i == 9:
            a.fill(low, 999)
        for p in pend:
            if p:
                a.i(p)
        pend = []
        if i == 9:
            break
        if i < 8:
            d = i & 3
            for q in range(4):
                r = PK + 4 * q + d
                pend.append(f'v_cvt_pk_bf16_f32 v{r}, v{acc + 2 * q}, v{acc + 2 * q + 1}')
                if d == 0:
                    pend.append(f'v_bfi_b32 v{r}, 1, s{sTag}, v{r}')
                if d == 3:
                    pend.append(f'buffer_store_dwordx4 {R(PK + 4 * q, 4)}, v{vPs}, {WS}, s{so[q]} offen offset:{256 * (i >> 2)}')
                    pend.append(None)
    a.i(f's_mov_b32 s{sTr}, s{sTag}')
    a.i(f's_mov_b32 s67, s{sPst}')
    a.i(f's_mov_b32 s{sTO}, {TIMEOUT}')
    a.i(f's_xor_b32 s{sPst}, s{sPst}, s53')


def res_load(a, srdn):
    a.i(f'buffer_load_dwordx4 {R(RS, 4)}, v{vLn}, {srdn}, s{sRes} offen sc1')
    a.i(f'buffer_load_ushort v{RS + 4}, v{vL2}, {srdn}, s{sRes} offen offset:1024 sc1')


def poll(a, off=0, dst=vFl):
    a.i(f'buffer_load_dword v{dst}, v{vFa}, {WS}, s{sFn} offen offset:{off} sc1')


def in_dma(n, srdn, sLb=sLb):
    o = [f's_mov_b32 m0, s{sLb}']
    o += [f'buffer_load_dwordx4 v{vLn}, {srdn}, s{sIn} offen offset:{k * 1024} sc1 lds' for k in range(4)]
    if n == 5:
        o += [f's_add_u32 m0, s{sLb}, 4096', f'buffer_load_dwordx4 v{vXq}, {srdn}, s{sIn} offen sc1 lds']
    return o


def krole(a, nm, stamps):
    dn = nm == 'down'
    nkb = 9 if dn else 8
    P = f'L_{nm}'
    a.label(P)
    rt_stamp(a, stamps, 0)
    kinit(a, 2 if dn else 0)
    hold(a, False)
    W = {}
    for i in range(9):
        for kb in range(nkb):
            W[(i, kb)] = 512 - 36 * nkb + 4 * len(W)
    a.i(f's_mul_i32 s61, s{sIDX}, {32 * nkb * 1152}')
    kstage(a, W, nkb, K_WD if dn else K_WO, 16 * 32 * nkb * 1152, 61, 'nat' if dn else 'pair')
    nfl = 6 if dn else 2
    a.i(f'v_min_u32 v{vFa}, {nfl - 1}, v0')
    a.i(f'v_lshlrev_b32 v{vFa}, 9, v{vFa}')
    BB = 2 * nkb * 1024
    IU, IB, FI = (H_UNIT, HB, F_H) if dn else (O_UNIT, OB, F_O)
    ksetup(a, BB)
    a.i(f'v_add_u32 v{vXq}, 4096, v{vLn}')
    srd(a, 8, K_WS, 0)
    for p in RD_ADV[1:]:
        a.i(p)
    a.i(f'v_add_u32 v{vXb}, {INB}, v{vLn}')
    a.i(f's_mul_i32 s60, s{sL}, {64 * UNIT}')
    a.i(f's_lshl_b32 s61, s{sL}, 8')
    if dn:
        srd(a, 12, K_OUT, 2048 * 1152)
        a.i(f's_bitcmp1_b32 s{sW}, 0')
        a.i(f's_cselect_b32 s{sYo}, {OOB}, s{sRes}')
        a.i('s_mov_b64 s[56:57], 0')
        a.i(f's_cmp_eq_u32 s{sL}, 1')
        a.i(f's_cbranch_scc1 {P}_o')
        srd(a, 12, K_WS, WS_BYTES)
        a.i('s_mov_b64 s[56:57], 1')
        a.i(f's_mov_b32 s{sYo}, s{sRes}')
        a.i(f's_bitcmp1_b32 s{sW}, 0')
        a.i(f's_mov_b32 s28, {X2}')
        a.i(f's_cselect_b32 s28, {NA + 64 * UNIT}, s28')
        a.i(f's_add_u32 s{sYo}, s{sYo}, s28')
        a.label(f'{P}_o')
        a.i(f's_add_u32 s{sRes}, s{sRes}, s60')
        a.i(f's_add_u32 s{sRes}, s{sRes}, {YB}')
        a.i(f's_add_u32 s{sFp}, s{sFp}, {F_NA + 256}')
        a.i(f's_cmp_eq_u32 s{sL}, 1')
        a.i(f's_cselect_b32 s{sFp}, {OOB}, s{sFp}')
        res_srd, out_srd = WS, IO
    else:
        a.i(f's_add_u32 s{sYo}, s60, s{sRes}')
        a.i(f's_bitcmp1_b32 s{sW}, 0')
        a.i(f's_mov_b32 s28, {YB}')
        a.i(f's_cselect_b32 s28, {NB}, s28')
        a.i(f's_add_u32 s{sYo}, s{sYo}, s28')
        a.i(f's_add_u32 s{sFp}, s{sFp}, s61')
        a.i(f's_add_u32 s{sFp}, s{sFp}, {F_NB}')
        srd(a, 12, K_X, 2048 * 1152)
        a.i(f's_cmp_eq_u32 s{sL}, 0')
        a.i(f's_cbranch_scc1 {P}_o')
        srd(a, 12, K_WS, WS_BYTES)
        a.i(f's_add_u32 s{sRes}, s{sRes}, {X2}')
        a.label(f'{P}_o')
        res_srd, out_srd = IO, WS
    a.i(f's_mul_i32 s{sFn}, s{sIDX}, {nfl * 512}')
    a.i(f's_add_u32 s{sFn}, s{sFn}, s61')
    a.i(f's_add_u32 s{sFn}, s{sFn}, {FI}')
    a.i(f's_mul_i32 s{sIn}, s{sL}, {64 * IU}')
    a.i(f's_mul_i32 s28, s{sIDX}, {nkb * 1024}')
    a.i(f's_add_u32 s{sIn}, s{sIn}, s28')
    a.i(f's_add_u32 s{sIn}, s{sIn}, {IB}')
    nd = nkb - 4
    a.i(f's_lshr_b32 s28, s{sW}, 1')
    a.i(f's_mul_i32 s{sLb}, s28, {nkb * 1024}')
    a.i(f's_mul_i32 s28, s28, {IU // 2}')
    a.i(f's_add_u32 s{sIn}, s{sIn}, s28')
    a.i(f's_and_b32 s28, s{sW}, 1')
    a.i('s_lshl_b32 s28, s28, 12')
    a.i(f's_add_u32 s{sLb}, s{sLb}, s28')
    a.i(f's_add_u32 s{sLb}, s{sLb}, {INB}')
    a.i(f's_add_u32 s{sIn}, s{sIn}, s28')
    wait_init(a, 40)
    rt_stamp(a, stamps, 1, 40)
    code = 10 if dn else 12

    def decide():
        a.i(f'v_cmp_eq_u32 vcc, 0, v{vFl}')
        a.i('s_cmp_eq_u64 vcc, 0')
        a.i(f's_cselect_b32 s10, s47, 0')

    def body(carry):
        n1, n8 = 2 * nkb, 2 * nkb * 8
        KDE = 1
        kD = 5 * n1 - 1 if KDE else n8 - 34
        side = {kD - 34: [lambda: poll(a)], kD: [decide]}
        stream = {1: [f's_add_u32 s{sFn}, s{sFn}, 4', f's_add_u32 s{sIn}, s{sIn}, {IU}', f's_add_u32 s{sLb}, s{sLb}, s{sDx}',
                      lambda: (a.i(f's_cmp_eq_u32 s{sS}, 63'), a.i(f's_cselect_b32 s47, 0, s6'))]}
        side[2 * n1 - 1] = ['flush']
        ad = lambda k, f: side.setdefault(k, []).append(f)
        if carry:
            for n in range(9):
                ad(3 + 4 * n, lambda n=n: rs_load(a, n))
            ad(29, lambda: rs_group(a, code, [0, 1, 2, 3], [0, 1, 2, 3]))
            stream[33] = t_wr(0)
            ad(KC, lambda: rs_group(a, code, [4, 5, 6, 7, 8], [4, 5, 6, 7, 8]))
            stream[KC + 2] = t_wr(1) + t_wr(2)
            ad(KC + KTB - 3, 'flush')
            ad(KC + KTB - 3, lambda: a.barrier())
            stream[KC + KTB - 3 + 1] = ln_stream(out_srd) + [lambda: a.join_vm_tag('n')] + RD_ADV
            ad(7 * n1 - 4, 'flush')
            ad(n8 - (KFL if dn else KFO), lambda: (a.wait_tag('n'), klate(a)))
        k = kD + 2
        for p in in_dma(nd, WT, sLb):
            ad(k - (1 if p.startswith('s_') else 0), lambda p=p: a.i(p, tag='x'))
            k += 0 if p.startswith('s_') else 3
        ad(7 * n1 + 1 if KDE else k, lambda: res_load(a, res_srd))

        def pre():
            l = a.new('L_kt')
            lg = list(a.lg)
            a.i('s_cmp_eq_u32 s10, 0')
            a.i(f's_cbranch_scc1 {l}', nohaz=True)
            vm = list(a.vm)
            for p in ktail():
                a.i(p)
            a.out.append(l + ':')
            a.i('s_nop 1')
            a.vm, a.lg = vm, lg
        kgemm(a, W, nkb, side, stream, pre if carry else None)

    def block():
        l = spin_head(a, 9 if dn else 11)
        poll(a)
        a.i(f'v_cmp_eq_u32 vcc, 0, v{vFl}')
        a.i(f's_cbranch_vccnz {l}', nohaz=True)
        for p in in_dma(nd, WS):
            a.i(p)
        a.waitcnt(vm=0)
    block()
    a.i('s_barrier')
    body(False)
    a.i(f's_branch {P}_end')
    vm = list(a.vm)
    a.label(f'{P}_carry')
    a.vm = [({('v', r) for r in range(RS, RS + 5)}, set())]
    a.i('s_barrier')
    stamp(a, stamps, 0)
    body(True)
    a.vm = vm
    a.out.append(f'{P}_end:')
    stamp(a, stamps, 1)
    a.i(f'v_add_u32 v{vXb}, s{sDx}, v{vXb}')
    a.i(f's_sub_u32 s{sDx}, 0, s{sDx}')
    a.wait_tag('x')
    for k in (2, 3):
        if stamps and not PROF:
            a.i(f's_mov_b32 s{80 + 2 * k}, 0')
    stamp_flush(a, stamps, 4, sS, L)
    a.i(f's_add_u32 s{sS}, s{sS}, 1')
    a.i('s_cmp_lg_u32 s10, 0')
    a.i(f's_cbranch_scc1 {P}_carry')
    for p in ktail():
        a.i(p)
    a.i(f's_cmp_eq_u32 s{sS}, 64')
    a.i(f's_cbranch_scc1 {P}_last', nohaz=True)
    block()
    a.i(f's_branch {P}_carry', nohaz=True)
    a.label(f'{P}_last')
    a.i('s_barrier')
    a.vm = []
    for n in range(4):
        rs_load(a, n)
    rs_group(a, code, [0, 1, 2, 3], [0, 1, 2, 3])
    for n in range(4, 9):
        rs_load(a, n)
    for p in t_wr(0):
        a.i(p)
    rs_group(a, code, [4, 5, 6, 7, 8], [4, 5, 6, 7, 8])
    for p in t_wr(1) + t_wr(2):
        a.i(p)
    a.barrier()
    for p in ln_stream(out_srd, pk=True):
        a.i(p)
    a.waitcnt(vm=0)
    klate(a)
    rt_stamp(a, stamps, 2, 40)
    a.i('s_endpgm')
    a.out += a.tail
    a.tail = []


def down(a, stamps=False):
    krole(a, 'down', stamps)


def oproj(a, stamps=False):
    krole(a, 'oproj', stamps)


def atn(a, stamps=False):
    from nsplit import ln_init
    a.label('L_atn')
    rt_stamp(a, stamps, 0)
    arrive(a)
    ln_init(a, 24)
    MC, MM = 16, 20
    sH, sC, sKm, sOo = 45, 47, 48, 51
    a.i(f's_lshl_b32 s{sH}, s{sIDX}, 2')
    a.i(f's_add_u32 s{sH}, s{sH}, s{sW}')
    a.i(f's_mov_b32 s{sC}, {hex(f2u(128 ** -0.5 * math.log2(math.e)))}')
    a.i('v_and_b32 v40, 15, v0')
    a.i('v_lshrrev_b32 v41, 4, v0')
    a.i('v_lshlrev_b32 v41, 2, v41')
    a.i('v_mov_b32 v42, 0xff800000')
    for r in range(4):
        a.i(f'v_add_u32 v43, {r}, v41')
        a.i('v_cmp_gt_u32 vcc, v43, v40')
        a.i(f'v_cndmask_b32 v{MC + r}, 0, v42, vcc')
    a.i('v_cmp_lt_u32 vcc, 31, v0')
    for r in range(4):
        a.i(f'v_cndmask_b32 v{MM + r}, 0, v42, vcc')
    bits(a, vFa, 0, [(0, 3, 9), (2, 1, 16)], 40)
    a.i(f's_lshl_b32 s28, s{sH}, 11')
    a.i(f's_add_u32 s28, s28, {F_Q + 4}')
    a.i(f'v_add_u32 v{vFa}, s28, v{vFa}')
    a.i(f's_lshl_b32 s{sFp}, s{sH}, 9')
    a.i(f's_add_u32 s28, s{sFp}, {F_KVM}')
    a.i('v_mov_b32 v40, s28')
    a.i(f'v_cndmask_b32 v{vFa}, v{vFa}, v40, vcc')
    bits(a, vKm, 0, [(0, 7, 4), (4, 3, 7)], 40)
    bits(a, vVm, 0, [(0, 31, 4)], 40)
    a.i(f'v_lshlrev_b32 v{vLn}, 4, v0')
    a.i(f's_lshl_b32 s{sFn}, s{sL}, 8')
    a.i(f's_add_u32 s{sFp}, s{sFp}, s{sFn}')
    a.i(f's_add_u32 s{sFp}, s{sFp}, {F_O - 4}')
    a.i(f's_mov_b32 s54, {OOB}')
    a.i(f'v_subrev_u32 v{vT}, 4, v{vFa}')
    a.i(f's_mul_i32 s{sIn}, s{sL}, {64 * QKV_UNIT}')
    a.i(f's_mul_i32 s28, s{sH}, 24576')
    a.i(f's_add_u32 s{sIn}, s{sIn}, s28')
    a.i(f's_add_u32 s{sIn}, s{sIn}, {QKV}')
    a.i(f's_mul_i32 s{sKm}, s{sL}, {64 * KVM_UNIT}')
    a.i(f's_lshl_b32 s28, s{sH}, 12')
    a.i(f's_add_u32 s{sKm}, s{sKm}, s28')
    a.i(f's_add_u32 s{sKm}, s{sKm}, {KVM}')
    a.i(f's_mul_i32 s{sOo}, s{sL}, {64 * O_UNIT}')
    a.i(f's_add_u32 s{sOo}, s{sOo}, s28')
    a.i(f's_add_u32 s{sOo}, s{sOo}, {OB}')
    a.i(f's_mov_b32 s{sS}, 0')
    OX, KM, VM, S, P, M = 120, 184, 200, 216, 228, 240
    mx, lx, t0, t1, al = M, M + 2, M + 4, M + 6, M + 8
    PM = S + 8
    a.i(f'v_mov_b32 v{P + 2}, 0')
    a.i(f'v_mov_b32 v{P + 3}, 0')
    srd(a, 8, K_WS, 0)
    rt_stamp(a, stamps, 1, 40)

    def lds(base, srdn):
        return [f'buffer_load_dwordx4 {R(base + 4 * n, 4)}, v{vLn}, {srdn}, s{60 + (n >> 2)} offen offset:{(n & 3) * 1024} sc1'
                for n in range(24)]
    PTR = [f's_add_u32 s{60 + k}, s{sIn}, {4096 * k}' for k in range(6)]

    def xl(op, r, t):
        out = []
        for sw in (16, 32):
            out += [f'v_mov_b32 v{t}, v{r}', f'v_permlane{sw}_swap_b32 v{r}, v{t}', f'{op} v{r}, v{r}, v{t}']
        return out

    def zipb(fn):
        return [x for ins in zip(fn(0), fn(1)) for x in ins]

    def block(base, code, addr):
        l = spin_head(a, code)
        a.i(f'buffer_load_dword v{vFl}, v{addr}, {WS}, s{sFn} offen sc1')
        a.i(f'v_cmp_eq_u32 vcc, 0, v{vFl}')
        a.i('s_cmp_lg_u32 vcc_lo, 0')
        a.i(f's_cbranch_scc1 {l}', nohaz=True)
        for p in lds(base, WS):
            a.i(p)
        a.waitcnt(vm=0)

    def unit(cur, nxt, tag, other):
        Q, K, V = cur, cur + 32, cur + 64
        a.label(f'L_atn_{tag}')
        a.vm = []
        stamp(a, stamps, 0)
        a.i(f'v_cmp_eq_u32 s[52:53], 0, v{vFl}')
        a.i(f's_add_u32 s{sIn}, s{sIn}, {QKV_UNIT}')
        for p in PTR:
            a.i(p)
        a.i('s_cmp_eq_u32 s52, 0')
        a.i('s_cselect_b32 s10, s6, 0')
        a.i(f's_cmp_eq_u32 s{sS}, 63')
        a.i('s_cselect_b32 s10, 0, s10')
        bulk = lds(nxt, WT)
        kvm = [f'buffer_load_dwordx4 {R(KM + 4 * kb, 4)}, v{vKm}, {WS}, s{sKm} offen offset:{kb * 512} sc1' for kb in range(4)] + \
              [f'buffer_load_dwordx4 {R(VM + 4 * kb, 4)}, v{vVm}, {WS}, s{sKm} offen offset:{2048 + kb * 512} sc1' for kb in range(4)]
        a.i('s_cmp_lg_u32 s53, 0')
        a.i(f's_cbranch_scc1 L_atn_{tag}a', nohaz=True)
        for p in kvm:
            a.i(p)
        a.out.append(f'L_atn_{tag}a:')
        a.vm = [(set(), {'n'})] + [({('v', r) for r in range(cur + 4 * n, cur + 4 * n + 4)}, set()) for n in range(20, 24)]

        def flag():
            a.wait_tag('n')
            a.i(f's_or_b32 s28, s{sFp}, s54')
            a.i('s_mov_b64 exec, 1')
            a.i(f'buffer_store_dword v{vFa}, off, {WS}, s28 sc1')
            a.i('s_mov_b64 exec, -1')
            a.i(f's_add_u32 s{sFp}, s{sFp}, 4')

        def run(ins, every):
            for ix, p in enumerate(ins):
                p() if callable(p) else a.i(p)
                if ix % every == every - 1 and bulk:
                    a.i(bulk.pop(0))
        x = []
        for kb in range(4):
            x += [lambda kb=kb: a.mfma(S, K + 8 * kb, Q + 8 * kb, MC if kb == 0 else S),
                  lambda kb=kb: a.mfma(S + 4, K + 8 * kb, Q + 8 * kb + 4, None if kb == 0 else S + 4),
                  lambda kb=kb: a.mfma(S + 8, K + 8 * kb + 4, Q + 8 * kb + 4, MC if kb == 0 else S + 8)]
        run(x, 4)
        x = [f'v_max3_f32 v{mx}, v{S}, v{S + 1}, v{S + 2}', f'v_max3_f32 v{mx + 1}, v{S + 4}, v{S + 5}, v{S + 6}',
             f'v_max_f32 v{mx}, v{S + 3}, v{mx}', f'v_max3_f32 v{mx + 1}, v{S + 7}, v{S + 8}, v{mx + 1}',
             f'v_max3_f32 v{mx + 1}, v{S + 9}, v{S + 10}, v{mx + 1}', f'v_max_f32 v{mx + 1}, v{S + 11}, v{mx + 1}']
        x += zipb(lambda q: xl('v_max_f32', mx + q, t1 + q) + [f'v_mul_f32 v{mx + q}, s{sC}, v{mx + q}'])
        x += [f'v_fma_f32 v{S + k}, v{S + k}, s{sC}, -v{mx + (k >= 4)}' for k in range(12)]
        x += [f'v_exp_f32 v{S + k}, v{S + k}' for k in range(12)]
        x += [f'v_cvt_pk_bf16_f32 v{P + k + (2 if k >= 2 else 0)}, v{S + 2 * k}, v{S + 2 * k + 1}' for k in range(6)]
        run(x, 16)
        flag()
        adds = [f'v_add_f32 v{lx}, v{S}, v{S + 1}', f'v_add_f32 v{lx + 1}, v{S + 4}, v{S + 5}']
        adds += [f'v_add_f32 v{lx}, v{lx}, v{S + k}' for k in (2, 3)] + [f'v_add_f32 v{lx + 1}, v{lx + 1}, v{S + k}' for k in range(6, 12)]
        x = []
        for d in range(8):
            for q in range(2):
                x.append(lambda d=d, q=q: a.mfma(OX + 32 * q + 4 * d, V + 4 * d, P + 4 * q, None))
                if adds:
                    x.append(adds.pop(0))
        run(x, 8)
        stamp(a, stamps, 1)
        nb = 6
        a.i('s_cmp_eq_u32 s53, 0')
        a.i(f's_cbranch_scc1 L_atn_{tag}b', nohaz=True)
        l = spin_head(a, 14)
        poll(a)
        a.i(f'v_cmp_eq_u32 vcc, 0, v{vFl}')
        a.i('s_cmp_lg_u32 vcc_hi, 0')
        a.i(f's_cbranch_scc1 {l}', nohaz=True)
        for p in kvm:
            a.i(p)
        a.out.append(f'L_atn_{tag}b:')
        for _ in range(nb):
            a.i(bulk.pop(0))
        a.i(f's_add_u32 s{sKm}, s{sKm}, {KVM_UNIT}')
        a.i(f's_add_u32 s66, s{sOo}, {O_UNIT // 2}')
        stamp(a, stamps, 2)
        for kb in range(4):
            for q in range(2):
                a.mfma(S + 4 * q, KM + 4 * kb, Q + 8 * kb + 4 * q, MM if kb == 0 else S + 4 * q)
        stamp(a, stamps, 3)

        def post(q):
            s, m, t, A = S + 4 * q, t0 + q, t1 + q, al + 2 * q
            return ([f'v_max3_f32 v{m}, v{s}, v{s + 1}, v{s + 2}', f'v_max_f32 v{m}, v{s + 3}, v{m}'] + xl('v_max_f32', m, t)
                    + [f'v_mul_f32 v{m}, s{sC}, v{m}', f'v_max_f32 v{m}, v{m}, v{mx + q}', f'v_sub_f32 v{A}, v{mx + q}, v{m}']
                    + [f'v_fma_f32 v{s + k}, v{s + k}, s{sC}, -v{m}' for k in range(4)]
                    + [f'v_exp_f32 v{A}, v{A}'] + [f'v_exp_f32 v{s + k}, v{s + k}' for k in range(4)]
                    + [f'v_fma_f32 v{m}, v{lx + q}, v{A}, v{s}', f'v_add_f32 v{t}, v{s + 1}, v{s + 2}',
                       f'v_add_f32 v{m}, v{m}, v{s + 3}', f'v_add_f32 v{m}, v{m}, v{t}'] + xl('v_add_f32', m, t)
                    + [f'v_rcp_f32 v{m}, v{m}', f'v_mul_f32 v{A}, v{m}, v{A}']
                    + [f'v_mul_f32 v{s + k}, v{m}, v{s + k}' for k in range(4)]
                    + [f'v_cvt_pk_bf16_f32 v{PM + 2 * q}, v{s}, v{s + 1}', f'v_cvt_pk_bf16_f32 v{PM + 2 * q + 1}, v{s + 2}, v{s + 3}'])
        poll(a, 4)
        run(zipb(post), 18)
        run([f'v_pk_mul_f32 {R(OX + 2 * n, 2)}, {R(OX + 2 * n, 2)}, {R(al + 2 * (n >> 4), 2)} op_sel_hi:[1,0]' for n in range(32)], 20)
        low = []
        for n in range(16):
            o = OX + 4 * n
            a.mfma(o, VM + 2 * (n & 7), PM + 2 * (n >> 3), o, k=16)
            a.fill(low, 3)
            if n >= 3 and n % 2 == 1 or n == 15:
                for f in ([(n - 3) // 2] if n < 15 else [6, 7]):
                    o = OX + 8 * f
                    low += [f'v_cvt_pk_bf16_f32 v{o + k}, v{o + 2 * k}, v{o + 2 * k + 1}' for k in range(4)]
                    low.append(lambda o=o, f=f: a.i(
                        f'buffer_store_dwordx4 {R(o, 4)}, v{vLn}, {WS}, s{sOo if f < 4 else 66} offen offset:{(f & 3) * 1024} sc1', tag='o'))
        a.fill(low, 999)
        stamp(a, stamps, 4)
        print('atn: loads left after stores', len(bulk))
        assert len(bulk) == 4
        a.waitcnt(vm=8)
        for p in bulk:
            a.i(p)
        a.i(f's_add_u32 s{sOo}, s{sOo}, {O_UNIT}')
        a.i('s_mov_b32 s54, 0')
        stamp(a, stamps, 5)
        stamp_flush(a, stamps, 6, sS, S)
        a.i(f's_add_u32 s{sS}, s{sS}, 1')
        a.i('s_cmp_lg_u32 s10, 0')
        a.i(f's_cbranch_scc1 L_atn_{tag}c', nohaz=True)
        a.waitcnt(vm=0)
        a.i('s_mov_b64 exec, 1')
        a.i(f'buffer_store_dword v{vFa}, off, {WS}, s{sFp} sc1')
        a.i('s_mov_b64 exec, -1')
        a.i(f's_mov_b32 s54, {OOB}')
        a.i(f's_cmp_eq_u32 s{sS}, 64')
        a.i('s_cbranch_scc1 L_atn_done')
        block(nxt, 15, vFa)
        poll(a, 4)
        a.waitcnt(vm=0)
        a.label(f'L_atn_{tag}c')
        a.i(f's_add_u32 s{sFn}, s{sFn}, 4')
        if other:
            a.i(f's_branch L_atn_{other}')
    for p in PTR:
        a.i(p)
    block(24, 13, vT)
    poll(a)
    a.waitcnt(vm=0)
    unit(24, 256, 'e', None)
    unit(256, 24, 'o', 'e')
    a.label('L_atn_done')
    rt_stamp(a, stamps, 2, 40)
    a.i('s_endpgm')
```

```python
import math
from common import *
from chain import f2u

vLn, vXe, vXo, vFa, vFl, vT = 0, 1, 2, 3, 4, 5
vD9 = 6
sS, sPre, sSrc, sFn, sLb, sW1k, sW9k, sOut, sFp, sFq, sPq = range(30, 41)
sDx = 44
UPP = int(os.environ.get('UPP', 46))
PJP = int(os.environ.get('PJP', 15))
PJD = int(os.environ.get('PJD', 7))
UPF = int(os.environ.get('UPF', 47))
XB = UNIT


def publish(a, sflag, vnz=vXo):
    a.i('s_mov_b64 exec, 1')
    a.i(f'buffer_store_dword v{vnz}, off, {WS}, s{sflag} sc1')
    a.i('s_mov_b64 exec, -1')


def x_setup(a, nbase, fbase, t0, t1, t2):
    dma_voff_72(a, vD9, SWZ['x'], t0, t1, t2)
    for n in range(9):
        a.i(f'v_add_u32 v{vD9 + n}, {4096 - (n & 3) * 1024}, v{vD9 + n}')
    a.i(f'v_and_b32 v{t0}, 15, v0')
    a.i(f'v_bfe_u32 v{t1}, v0, 1, 3')
    a.i(f'v_lshrrev_b32 v{t2}, 4, v0')
    a.i(f'v_xor_b32 v{t1}, v{t1}, v{t2}')
    a.i(f'v_mul_u32_u24 v{t0}, 1152, v{t0}')
    a.i(f'v_lshl_add_u32 v{vXe}, v{t1}, 4, v{t0}')
    a.i(f'v_xor_b32 v{t1}, 4, v{t1}')
    a.i(f'v_lshl_add_u32 v{vXo}, v{t1}, 4, v{t0}')
    a.i(f'v_and_b32 v{vFa}, 15, v0')
    a.i(f'v_lshlrev_b32 v{vFa}, 9, v{vFa}')
    a.i(f's_mul_i32 s{sSrc}, s{sL}, {64 * UNIT}')
    a.i(f's_add_u32 s{sSrc}, s{sSrc}, {nbase - 4096}')
    a.i(f's_lshl_b32 s{sFn}, s{sW}, 13')
    a.i(f's_lshl_b32 s28, s{sL}, 8')
    a.i(f's_add_u32 s{sFn}, s{sFn}, s28')
    a.i(f's_add_u32 s{sFn}, s{sFn}, {fbase}')
    a.i(f's_mov_b32 s{sLb}, s{sW9k}')
    a.i(f's_mov_b32 s{sS}, 0')
    a.i(f's_mov_b32 s{sDx}, {XB}')
    a.i(f's_mov_b32 s{sPq}, {OOB}')
    srd(a, 8, K_WS, 0)
    a.i(f'v_lshlrev_b32 v{vLn}, 4, v0')


def x_poll(a):
    a.i(f'buffer_load_dword v{vFl}, v{vFa}, {WS}, s{sFn} offen sc1')


def x_dma_list(srdn):
    o = []
    for n in range(9):
        if n % 4 == 0:
            o.append(f's_add_u32 m0, s{sLb}, {n * 1024}')
        o.append(f'buffer_load_dwordx4 v{vD9 + n}, {srdn}, s{sSrc} offen offset:{(n & 3) * 1024} sc1 lds')
    return o


def x_adv(a):
    a.i(f's_add_u32 s{sSrc}, s{sSrc}, {UNIT}')
    a.i(f's_add_u32 s{sFn}, s{sFn}, 4')
    a.i(f's_add_u32 s{sLb}, s{sLb}, s{sDx}')


def x_flag(a, tag=None):
    a.wait_tag(tag) if tag else a.waitcnt(vm=0)
    a.i(f's_or_b32 s28, s{sFq}, s{sPq}')
    a.i('s_mov_b64 exec, 1')
    a.i(f'buffer_store_dword v{vXo}, off, {WS}, s28 sc1')
    a.i('s_mov_b64 exec, -1')


def x_chk(a):
    a.i(f'v_cmp_eq_u32 vcc, 0, v{vFl}')
    a.i('s_cmp_eq_u64 vcc, 0')
    a.i(f's_cselect_b32 s10, {WS_BYTES}, 0')
    a.i(f's_cmp_eq_u32 s{sS}, 63')
    a.i('s_cselect_b32 s10, 0, s10')


def x_block(a, code):
    l = spin_head(a, code)
    x_poll(a)
    a.i(f'v_cmp_eq_u32 vcc, 0, v{vFl}')
    a.i(f's_cbranch_vccnz {l}', nohaz=True)
    for p in x_dma_list(WS):
        a.i(p)
    a.waitcnt(vm=0)


def x_book(a, regs):
    return [f's_add_u32 s{sFq}, s{sFq}, 4', f's_mov_b32 s{sPq}, 0'] + \
           [f'v_add_u32 v{r}, s{sDx}, v{r}' for r in regs] + [f's_sub_u32 s{sDx}, 0, s{sDx}']


def x_next(a, pfx, code, tail, nxt=None):
    nxt = nxt or f'{pfx}_loop'
    a.i(f's_add_u32 s{sS}, s{sS}, 1')
    a.i('s_cmp_lg_u32 s10, 0')
    a.wait_tag('x')
    a.i(f's_cbranch_scc1 {nxt}', nohaz=True)
    for p in tail:
        p() if callable(p) else a.i(p)
    l = spin_head(a, code)
    x_poll(a)
    x_flag(a)
    a.i(f's_mov_b32 s{sPq}, {OOB}')
    a.i(f's_cmp_eq_u32 s{sS}, 64')
    a.i(f's_cbranch_scc1 {pfx}_done')
    a.i(f'v_cmp_eq_u32 vcc, 0, v{vFl}')
    a.i(f's_cbranch_vccnz {l}', nohaz=True)
    for p in x_dma_list(WS):
        a.i(p)
    a.waitcnt(vm=0)
    a.i(f's_branch {nxt}')


def xread(a, dst, rt, j):
    a.i(f'ds_read_b128 {R(dst, 4)}, v{(vXe, vXo)[j & 1]} offset:{(j >> 1) * 128 + rt * 18432}')


def stage256(a, mats, gpitch, scol, W, qk_style):
    vq, a0, a1, aq, tA = 20, 21, 22, 23, 24
    sw = SWZ['p2', 'nat']
    dma_voff_pow2(a, vq, 16, gpitch, sw, 30, 31)
    a.i(f's_lshl_b32 s62, s{sW}, 2')

    def u_qk(t):
        a.i(f'v_and_b32 v{t}, 3, v0')
        a.i(f'v_add_u32 v{t}, s62, v{t}')

    def u_nat(add):
        def f(t):
            a.i(f'v_bfe_u32 v{t}, v0, 1, 1')
            a.i(f'v_add_u32 v{t}, s62, v{t}')
            if add:
                a.i(f'v_add_u32 v{t}, {add}, v{t}')
        return f

    def sub8(t):
        a.i(f'v_and_b32 v{t}, 1, v0')
        a.i(f'v_lshlrev_b32 v{t}, 3, v{t}')
    tr_addr(a, aq, 256, 'nat', sw, u_qk, None, 30, 31)
    tr_addr(a, a0, 256, 'nat', sw, u_nat(0), sub8, 30, 31)
    tr_addr(a, a1, 256, 'nat', sw, u_nat(2), sub8, 30, 31)
    ds = DsAddr(a, tA)
    chunks = [(m, h) for m in mats for h in range(2)]

    def issue(c):
        (m, karg, nb), h = chunks[c]
        srd(a, 8, karg, nb)
        for bi in range(9):
            for hh in range(2):
                dma(a, vq, WT, sW1k, (BUF0, BUF1)[c & 1] + bi * 8192 + hh * 4096, scol, (32 * (9 * h + bi) + 16 * hh) * gpitch)
    issue(0)
    issue(1)
    for c in range(len(chunks)):
        a.waitcnt(vm=18 if c + 1 < len(chunks) else 0)
        a.i('s_barrier')
        (m, _, _), h = chunks[c]
        for bi in range(9):
            for b in range(2):
                ar, o = (aq, 8 * b) if m in qk_style else ((a0, a1)[b], 0)
                tr_frag(a, ds, W[(m, b, 9 * h + bi)], ar, (BUF0, BUF1)[c & 1] + bi * 8192 + o, 256, 'nat')
        a.barrier()
        if c + 2 < len(chunks):
            issue(c + 2)


def proj(a, stamps=False):
    a.label('L_proj')
    rt_stamp(a, stamps, 0)
    arrive(a)
    hold(a, True)
    W = {}
    for m in 'kvq':
        for j in range(18):
            for b in range(2):
                W[(m, b, j)] = 80 + 4 * len(W)
    a.i(f's_lshl_b32 s{sW1k}, s{sW}, 10')
    a.i(f's_mul_i32 s{sW9k}, s{sW}, 9216')
    a.i(f's_lshl_b32 s61, s{sIDX}, 8')
    nb = 576 * 4096 * 2
    stage256(a, [('k', K_WK, nb), ('v', K_WV, nb), ('q', K_WQ, nb)], 8192, 61, W, 'qk')
    x_setup(a, NA, F_NA, 30, 31, 32)
    a.i(f's_mul_i32 s{sOut}, s{sL}, {64 * QKV_UNIT}')
    a.i(f's_mul_i32 s28, s{sIDX}, 24576')
    a.i(f's_add_u32 s{sOut}, s{sOut}, s28')
    a.i(f's_lshl_b32 s28, s{sW}, 11')
    a.i(f's_add_u32 s{sOut}, s{sOut}, s28')
    a.i(f's_add_u32 s{sOut}, s{sOut}, {QKV}')
    a.i(f's_lshl_b32 s{sFp}, s{sIDX}, 11')
    a.i(f's_lshl_b32 s28, s{sW}, 9')
    a.i(f's_add_u32 s{sFp}, s{sFp}, s28')
    a.i(f's_lshl_b32 s28, s{sL}, 8')
    a.i(f's_add_u32 s{sFp}, s{sFp}, s28')
    a.i(f's_add_u32 s{sFq}, s{sFp}, {F_Q - 4}')
    a.i(f's_add_u32 s{sFp}, s{sFp}, {F_KV - 4}')
    a.i('s_mov_b32 s43, 0')
    wait_init(a, 30)
    rt_stamp(a, stamps, 1, 30)
    x_block(a, 5)
    KA, VA, QA, RG = 16, 32, 48, 64
    a.label('L_proj_loop')
    a.i('s_barrier')
    stamp(a, stamps, 0)
    a.batch = 1
    r1 = [RG, RG + 4, RG + 8, RG + 12, QA + 4, QA + 12]
    for n in range(4):
        xread(a, r1[n], n & 1, n >> 1)
    def qtail(srdn, extra):
        o = []
        for rt in range(2):
            base = QA + 8 * rt
            o += [f'v_cvt_pk_bf16_f32 v{base + x}, v{base + 2 * x}, v{base + 2 * x + 1}' for x in range(4)] + extra[rt:rt + 1]
            o.append(f'buffer_store_dwordx4 {R(base, 4)}, v{vLn}, {srdn}, s43 offen offset:{rt * 1024} sc1')
        return o

    def kvflag():
        a.wait_tag('kv')
        a.i(f's_or_b32 s28, s{sFp}, s{sPq}')
        publish(a, 28)
    tail = qtail(WS, []) + [kvflag]
    a.vm = [(set(), {'kv'})]
    x_adv(a)
    r2 = [RG, RG + 4, RG + 8, RG + 12, KA + 4, KA + 12]
    low = qtail(WT, [lambda: xread(a, r1[4], 0, 2), lambda: xread(a, r1[5], 1, 2)]) + [lambda: a.join_vm_tag('n'), kvflag]
    at = {PJP: [lambda: x_poll(a), lambda: x_flag(a, 'n')], PJP + 9: [lambda: x_chk(a)]}
    dl = x_dma_list(WT)
    for n in range(36):
        j, rt = n >> 1, n & 1
        x = r1[n % 6]
        low += at.get(n, [])
        if n > PJP + 9:
            low += [dl.pop(0) for _ in range(2 if dl and dl[0].startswith('s_') else 1) if dl]
        for q in range(4):
            b = q >> 1
            if q & 1:
                acc = VA + 8 * b + 4 * rt
                a.mfma(acc, x, W[('v', b, j)], None if j == 0 else acc)
            else:
                acc = KA + 8 * rt + 4 * b
                a.mfma(acc, W[('k', b, j)], x, None if j == 0 else acc)
            if q == 3:
                if n + 6 < 36:
                    xread(a, x, (n + 6) & 1, (n + 6) >> 1)
                elif x in r2[:4]:
                    m = r2.index(x)
                    xread(a, x, m & 1, m >> 1)
                a.prewait_regs(r1[(n + 1) % 6] if n < 35 else r2[0])
            elif q != 1 or n < 4:
                a.fill(low)
    assert not low
    stamp(a, stamps, 1)
    low = [f's_add_u32 s60, s{sOut}, 8192', f's_add_u32 s61, s{sOut}, 16384']
    st = []
    for gi, (base, so) in enumerate(((KA, 60), (KA + 8, 60), (VA, 61), (VA + 8, 61))):
        low += [f'v_cvt_pk_bf16_f32 v{base + x}, v{base + 2 * x}, v{base + 2 * x + 1}' for x in range(4)]
        if gi < 2:
            low.append(lambda gi=gi: xread(a, r2[4 + gi], gi, 2))
        st.append(lambda base=base, so=so, gi=gi: a.i(
            f'buffer_store_dwordx4 {R(base, 4)}, v{vLn}, {WS}, s{so} offen offset:{(gi & 1) * 1024} sc1', tag='kv'))
        if gi:
            low.append(st[gi - 1])
    low.append(st[3])
    if not dl:
        a.join_vm_tag('x')
    for n in range(36):
        j, rt = n >> 1, n & 1
        x = r2[n % 6]
        if n == 30:
            low += x_book(a, (vXe, vXo)) + [f's_add_u32 s{sFp}, s{sFp}, 4', f's_mov_b32 s43, s{sOut}', f's_add_u32 s{sOut}, s{sOut}, {QKV_UNIT}']
        if n >= PJD and dl:
            low.append(dl.pop(0))
            if not dl:
                low.append(lambda: a.join_vm_tag('x'))
        for b in range(2):
            acc = QA + 8 * rt + 4 * b
            a.mfma(acc, W[('q', b, j)], x, None if j == 0 else acc)
            if b == 1:
                if n + 6 < 36:
                    xread(a, x, (n + 6) & 1, (n + 6) >> 1)
                if n < 35:
                    if n < 3:
                        a.fill(low, 4)
                    a.prewait_regs(r2[(n + 1) % 6])
            a.fill(low, 3 if n < 3 else 2)
    assert not low and not dl
    a.batch = 0
    stamp(a, stamps, 2)
    stamp_flush(a, stamps, 3, sS, KA)
    x_next(a, 'L_proj', 6, tail)
    a.label('L_proj_done')
    rt_stamp(a, stamps, 2, 30)
    a.i('s_endpgm')


def ln_init(a, add=0):
    X, F, t = 16, 64, 140
    srd(a, 12, K_X, 2048 * 1152)
    a.i(f's_lshl_b32 s60, s{sL}, 5')
    a.i(f's_add_u32 s60, s60, s{sIDX}')
    a.i(f's_add_u32 s60, s60, {add}')
    a.i(f's_mul_i32 s61, s60, {UNIT}')
    a.i(f's_mul_i32 s28, s{sW}, 9216')
    a.i(f's_add_u32 s61, s61, s28')
    a.i(f'v_lshrrev_b32 v{t}, 3, v0')
    a.i(f'v_mul_u32_u24 v{t}, 1152, v{t}')
    a.i(f'v_and_b32 v{t + 1}, 7, v0')
    a.i(f'v_lshl_add_u32 v{t}, v{t + 1}, 4, v{t}')
    for i in range(9):
        a.i(f'buffer_load_dwordx4 {R(X + 4 * i, 4)}, v{t}, {IO}, s61 offen offset:{i * 128}')
    for d in range(36):
        a.i(f'v_lshlrev_b32 v{F + 2 * d}, 16, v{X + d}')
        a.i(f'v_and_b32 v{F + 2 * d + 1}, 0xffff0000, v{X + d}')
    s_, q_ = t + 2, t + 3

    def red(r):
        for m in ('quad_perm:[1,0,3,2]', 'quad_perm:[2,3,0,1]', 'row_half_mirror'):
            a.i(f'v_add_f32_dpp v{r}, v{r}, v{r} {m} row_mask:0xf bank_mask:0xf')
    a.i(f'v_add_f32 v{s_}, v{F}, v{F + 1}')
    for d in range(2, 72):
        a.i(f'v_add_f32 v{s_}, v{s_}, v{F + d}')
    red(s_)
    a.i(f'v_mul_f32 v{s_}, {hex(f2u(1 / 576))}, v{s_}')
    for d in range(72):
        a.i(f'v_sub_f32 v{F + d}, v{F + d}, v{s_}')
    a.i(f'v_mul_f32 v{q_}, v{F}, v{F}')
    for d in range(1, 72):
        a.i(f'v_fmac_f32 v{q_}, v{F + d}, v{F + d}')
    red(q_)
    a.i(f'v_mov_b32 v{s_}, {hex(f2u(1e-5))}')
    a.i(f'v_fmac_f32 v{s_}, {hex(f2u(1 / 576))}, v{q_}')
    a.i(f'v_rsq_f32 v{s_}, v{s_}')
    for d in range(72):
        a.i(f'v_mul_f32 v{F + d}, v{F + d}, v{s_}')
    for d in range(36):
        a.i(f'v_cvt_pk_bf16_f32 v{X + d}, v{F + 2 * d}, v{F + 2 * d + 1}')
    a.i(f's_add_u32 s61, s61, {NA}')
    for i in range(9):
        a.i(f'buffer_store_dwordx4 {R(X + 4 * i, 4)}, v{t}, {WS}, s61 offen offset:{i * 128} sc1')
    wait_init(a, t + 1)
    a.i(f'v_and_b32 v{t}, 15, v0')
    a.i(f'v_lshlrev_b32 v{t}, 9, v{t}')
    a.i(f's_lshl_b32 s61, s{sW}, 13')
    a.i('s_lshl_b32 s60, s60, 2')
    a.i('s_add_u32 s61, s61, s60')
    a.i(f'v_mov_b32 v{t + 1}, 1')
    a.i('s_mov_b64 exec, 0xffff')
    a.i(f'buffer_store_dword v{t + 1}, v{t}, {WS}, s61 offen offset:{F_NA} sc1')
    a.i('s_mov_b64 exec, -1')


def geglu(g, u, t, vc0, sc1):
    return [f'v_mul_f32 v{t}, v{g}, v{g}',
            f'v_fma_f32 v{t}, v{t}, s{sc1}, v{vc0}',
            f'v_mul_f32 v{t}, v{t}, v{g}',
            f'v_exp_f32 v{t}, v{t}',
            f'v_mul_f32 v{g}, v{g}, v{u}',
            f'v_add_f32 v{t}, 1.0, v{t}',
            f'v_rcp_f32 v{t}, v{t}',
            f'v_mul_f32 v{g}, v{g}, v{t}']


def up(a, stamps=False):
    a.label('L_up')
    rt_stamp(a, stamps, 0)
    arrive(a)
    a.i(f's_lshl_b32 s{sW1k}, s{sW}, 10')
    a.i(f's_mul_i32 s{sW9k}, s{sW}, 9216')
    ln_init(a)
    hold(a, False)
    W = {}
    for j in range(36):
        for b in range(3):
            W[(b, j)] = 80 + 4 * len(W)
    v3, at, tA = 20, 23, 26
    sw = SWZ['p1', 'nat']
    dma_voff_72(a, v3, sw, 30, 31, 32, upr=24, gpitch=9216)
    a.i(f's_mul_i32 s62, s{sW}, 6')
    bits(a, 30, 0, [(2, 3, 0), (5, 1, 3)], 31)
    bits(a, 32, 30, sw, 31)
    a.i('v_mul_u32_u24 v30, 384, v30')
    a.i('v_bfe_u32 v31, v0, 4, 1')
    a.i('v_mul_u32_u24 v31, 36864, v31')
    a.i('v_add_u32 v30, v30, v31')
    a.i('v_and_b32 v31, 2, v0')
    a.i('v_lshl_add_u32 v30, v31, 2, v30')
    for b in range(3):
        a.i('v_and_b32 v31, 1, v0')
        a.i('v_add_u32 v31, s62, v31')
        a.i(f'v_add_u32 v31, {2 * b}, v31')
        a.i('v_xor_b32 v31, v31, v32')
        a.i(f'v_lshl_add_u32 v{at + b}, v31, 4, v30')
    ds = DsAddr(a, tA)
    a.i(f's_mul_i32 s60, s{sW}, 3072')
    a.i(f's_mul_i32 s61, s{sIDX}, 384')

    def issue(c):
        for mi, karg in enumerate((K_WG, K_WU)):
            srd(a, 8, karg, 576 * 4608 * 2)
            for bi in range(3):
                for k in range(3):
                    dma(a, v3 + k, WT, 60, (BUF0, BUF1)[c & 1] + mi * 36864 + bi * 12288 + k * 1024, 61, 32 * (3 * c + bi) * 9216)
    issue(0)
    issue(1)
    for c in range(6):
        a.waitcnt(vm=18 if c < 5 else 0)
        a.i('s_barrier')
        for b in range(3):
            for jj in range(6):
                tr_frag(a, ds, W[(b, 6 * c + jj)], at + b, (BUF0, BUF1)[c & 1] + jj * 6144, 384, 'nat')
        a.barrier()
        if c + 2 < 6:
            issue(c + 2)
    vC0, vX2, vX3, vH, sC1 = 15, 16, 17, vT, 42
    bits(a, vH, 0, [(0, 15, 4), (5, 1, 8)], 30)
    a.i('v_bfe_u32 v30, v0, 4, 1')
    a.i(f'v_mul_u32_u24 v30, {144 * 1024}, v30')
    a.i(f'v_add_u32 v{vH}, v{vH}, v30')
    a.i('v_and_b32 v33, 31, v0')
    a.i('v_mul_u32_u24 v33, 1152, v33')
    a.i('v_bfe_u32 v34, v0, 1, 3')
    a.i('v_lshrrev_b32 v35, 5, v0')
    a.i('v_xor_b32 v34, v34, v35')
    x_setup(a, NB, F_NB, 30, 31, 32)
    xa = [vXe, vXo, vX2, vX3]
    for q in range(4):
        a.i(f'v_xor_b32 v35, {2 * q}, v34')
        a.i(f'v_lshl_add_u32 v{xa[q]}, v35, 4, v33')
    c0 = -2 * math.sqrt(2 / math.pi) * math.log2(math.e)
    a.i(f'v_mov_b32 v{vC0}, {hex(f2u(c0))}')
    a.i(f's_mov_b32 s{sC1}, {hex(f2u(c0 * 0.044715))}')
    a.i(f's_mul_i32 s{sOut}, s{sL}, {64 * H_UNIT}')
    a.i(f's_add_u32 s{sOut}, s{sOut}, {HB}')
    a.i(f's_mul_i32 s28, s{sIDX}, 6144')
    a.i(f's_add_u32 s{sOut}, s{sOut}, s28')
    a.i(f's_mul_i32 s28, s{sW}, 1536')
    a.i(f's_add_u32 s{sOut}, s{sOut}, s28')
    a.i(f's_lshl_b32 s{sFq}, s{sIDX}, 11')
    a.i(f's_lshl_b32 s28, s{sW}, 9')
    a.i(f's_add_u32 s{sFq}, s{sFq}, s28')
    a.i(f's_lshl_b32 s28, s{sL}, 8')
    a.i(f's_add_u32 s{sFq}, s{sFq}, s28')
    a.i(f's_add_u32 s{sFq}, s{sFq}, {F_H - 4}')
    code_touch(a, 30)
    rt_stamp(a, stamps, 1, 30)
    x_block(a, 7)
    ACC, RG, TM = 20, 52, 72
    a.i(f'v_mov_b32 v18, s{sC1}')
    a.i(f'v_mov_b32 v19, v{vC0}')

    def fin(b, base, srdn=WS, so=sOut):
        return [f'v_cvt_pk_bf16_f32 v{base + k}, v{base + 2 * k}, v{base + 2 * k + 1}' for k in range(4)] + \
               [f'buffer_store_dwordx4 {R(base, 4)}, v{vH}, {srdn}, s{so} offen offset:{b * 512} sc1']

    def epi(base):
        ls = [geglu(base + k, base + 8 + k, TM + k, vC0, sC1) for k in range(8)]
        return [l[st] for st in range(8) for l in ls]

    def epi_pk(g):
        P = lambda r: R(r, 2)
        o = [f'v_pk_mul_f32 {P(TM + k)}, {P(g + k)}, {P(g + k)}' for k in (0, 2, 4, 6)]
        o += [f'v_pk_fma_f32 {P(TM + k)}, {P(TM + k)}, v[18:19], v[18:19] op_sel:[0,0,1] op_sel_hi:[1,0,1]' for k in (0, 2, 4, 6)]
        o += [f'v_pk_mul_f32 {P(TM + k)}, {P(TM + k)}, {P(g + k)}' for k in (0, 2, 4, 6)]
        o += [f'v_exp_f32 v{TM + k}, v{TM + k}' for k in range(8)]
        o += [f'v_pk_mul_f32 {P(g + k)}, {P(g + k)}, {P(g + 8 + k)}' for k in (0, 2, 4, 6)]
        o += [f'v_pk_add_f32 {P(TM + k)}, {P(TM + k)}, 1.0 op_sel_hi:[1,0]' for k in (0, 2, 4, 6)]
        o += [f'v_rcp_f32 v{TM + k}, v{TM + k}' for k in range(8)]
        o += [f'v_pk_mul_f32 {P(g + k)}, {P(g + k)}, {P(TM + k)}' for k in (0, 2, 4, 6)]
        return o

    def rd(n):
        j = n % 36
        a.i(f'ds_read_b128 {R(RG + 4 * (n % 5), 4)}, v{xa[j & 3]} offset:{(j >> 2) * 128}')

    def unit(par):
        AC = lambda b: ACC + 16 * ((b + par) & 1)
        a.label(f'L_up_{par}')
        a.i('s_barrier')
        stamp(a, stamps, 0)
        a.batch = 1
        for n in range(5):
            rd(n)
        x_adv(a)
        low = epi(AC(1)) + fin(2, AC(1), WT, 43) + [lambda: a.join_vm_tag('n')]
        at = {UPF: [lambda: x_flag(a)], 39: epi(AC(0)) + fin(0, AC(0)), 75: epi(AC(1)) + fin(1, AC(1)),
              103: x_book(a, xa) + [f's_mov_b32 s43, s{sOut}', f's_add_u32 s{sOut}, s{sOut}, {H_UNIT}']}
        dl = x_dma_list(WT)
        for n in range(108):
            b, j = divmod(n, 36)
            if j == 0 and b:
                assert not low
            a.mfma(AC(b), W[(b, j)], RG + 4 * (n % 5), None if j == 0 else AC(b), k='big')
            if n + 5 < 108:
                rd(n + 5)
            if n < 107:
                a.prewait_regs(RG + 4 * ((n + 1) % 5))
            if n == UPP:
                x_poll(a)
            if n == UPP + 24:
                x_chk(a)
            if n > UPP + 24 and dl:
                a.i(dl.pop(0))
                if dl and not dl[0].startswith('s_') and a.hist[-1].kind == 'salu':
                    a.i(dl.pop(0))
                if not dl:
                    a.join_vm_tag('x')
            if n == UPF:
                x_flag(a, 'n')
            else:
                low += at.get(n, [])
            a.fill(low, 6 if n else 0)
        assert not low and not dl
        a.batch = 0
        stamp(a, stamps, 1)
        stamp(a, stamps, 2)
        stamp_flush(a, stamps, 3, sS, AC(1))
        x_next(a, 'L_up', 8, epi_pk(AC(2)) + fin(2, AC(2), WS, 43), f'L_up_{1 - par}')
    a.i('s_mov_b32 s43, 0')
    unit(0)
    unit(1)
    a.label('L_up_done')
    rt_stamp(a, stamps, 2, 30)
    a.i('s_endpgm')
```
